```python
import torch

def _softmax(x, axis=-1):
    return torch.softmax(x, dim=axis)
def _gelu(x):
    return torch.nn.functional.gelu(x, approximate="tanh")
def _silu(x):
    return torch.nn.functional.silu(x)
def _sigmoid(x):
    return torch.sigmoid(x)
def _layernorm(x, axis=-1, eps=1e-5):
    m = x.mean(dim=axis, keepdim=True)
    v = x.var(dim=axis, keepdim=True, unbiased=False)
    return (x - m) / torch.sqrt(v + eps)
def _scatter_add(tgt, idx, src, axis=0):
    return tgt.clone().index_add_(axis, idx, src)
def _segment_sum(src, seg, n):
    out = torch.zeros((n,) + src.shape[1:], dtype=src.dtype)
    return out.index_add_(0, seg, src)
def _pad(x, pw):
    flat = tuple(v for pair in reversed(pw) for v in pair)
    return torch.nn.functional.pad(x, flat)

kernel_name = 'gated_mix__sliding_block__softmax_full_mha__prompt'

def setup_inputs():

    _w = (lambda a: (lambda t: t.to(torch.bfloat16) if t.is_floating_point() else t)(torch.as_tensor(a)))
    def _A_setup():
        B, S, D = 1, 2048, 448
        return {
            "x": _w((lambda *s: torch.randn(*s, dtype=torch.bfloat16) * 0.05)(B, S, D)),
            "wqkv": _w((lambda *s: torch.randn(*s, dtype=torch.bfloat16) * 1.6)(D, 3 * D)),
            "wo": _w((lambda *s: torch.randn(*s, dtype=torch.bfloat16) * 0.05)(D, D)),
        }
    _A_in = _A_setup()

    def _B_setup():
        B, S, D = 1, 2048, 448
        return {
            "x": _w((lambda *s: torch.randn(*s, dtype=torch.bfloat16) * 0.05)(B, S, D)),
            "wqkv": _w((lambda *s: torch.randn(*s, dtype=torch.bfloat16) * 1.6)(D, 3 * D)),
            "wo": _w((lambda *s: torch.randn(*s, dtype=torch.bfloat16) * 0.1)(D, D)),
        }
    _B_in = _B_setup()

    return {
        "A_x": _A_in["x"],
        "A_wqkv": _A_in["wqkv"],
        "A_wo": _A_in["wo"],
        "B_x": _B_in["x"],
        "B_wqkv": _B_in["wqkv"],
        "B_wo": _B_in["wo"],
        "gate_w": _w((lambda *s: torch.randn(*s, dtype=torch.bfloat16) * 0.05)(448) * 16.0),
    }

def reference(A_x, A_wqkv, A_wo, B_x, B_wqkv, B_wo, gate_w):
    def _A_ref(x, wqkv, wo):
        B, S, D = x.shape
        H = 16; Dh = D // H; W = 256
        qkv = (lambda x, *d: x.permute(*d))((x @ wqkv).reshape(B, S, 3, H, Dh), 2, 0, 3, 1, 4)
        q, k, v = qkv[0], qkv[1], qkv[2]
        scores = torch.einsum("bhqd,bhkd->bhqk", q, k) * (Dh ** -0.5)
        idx = torch.arange(S)
        mask = (idx[:, None] - idx[None, :] >= 0) & (idx[:, None] - idx[None, :] < W)
        scores = torch.where(mask[None, None], scores, -1e9)
        p = _softmax(scores, axis=-1)
        o = torch.einsum("bhqk,bhkd->bhqd", p, v)
        return (lambda x, *d: x.permute(*d))(o, 0, 2, 1, 3).reshape(B, S, D) @ wo

    def _B_ref(x, wqkv, wo):
        B, S, D = x.shape
        H = 16; Dh = D // H
        qkv = (lambda x, *d: x.permute(*d))((x @ wqkv).reshape(B, S, 3, H, Dh), 2, 0, 3, 1, 4)
        q, k, v = qkv[0], qkv[1], qkv[2]
        scale = Dh ** -0.5
        scores = torch.einsum("bhqd,bhkd->bhqk", q, k) * scale
        p = _softmax(scores, axis=-1)
        o = torch.einsum("bhqk,bhkd->bhqd", p, v)
        return (lambda x, *d: x.permute(*d))(o, 0, 2, 1, 3).reshape(B, S, D) @ wo

    x = A_x
    g = _sigmoid((x * gate_w).sum(-1, keepdims=True))
    a = _A_ref(x, A_wqkv, A_wo)
    b = _B_ref(x, B_wqkv, B_wo)
    return g * a + (1 - g) * b
```

```python
import sys
HDR = '''; @launch grid=({grid},1,1) block=({block},1,1) lds=0
.amdgcn_target "amdgcn-amd-amdhsa--gfx950"
.text
.globl mb_kernel
.p2align 8
.type mb_kernel,@function
mb_kernel:
    s_load_dwordx2 s[4:5], s[0:1], 8
    s_waitcnt lgkmcnt(0)
    s_mov_b32 s8, s4
    s_mov_b32 s9, s5
    s_mov_b32 s10, 0x400000
    s_mov_b32 s11, 0x00020000
{init}
    s_barrier
    s_mov_b32 s20, {iters}
    s_memtime s[12:13]
    s_waitcnt lgkmcnt(0)
.p2align 6
LOOP:
{body}
    s_sub_u32 s20, s20, 1
    s_cmp_lg_u32 s20, 0
    s_cbranch_scc1 LOOP
    s_nop 15
    s_nop 15
    s_memtime s[14:15]
    s_waitcnt lgkmcnt(0)
    s_sub_u32 s14, s14, s12
    v_lshrrev_b32 v1, 6, v0
    s_mul_i32 s3, s2, {wpb}
    v_add_u32 v1, s3, v1
    v_lshlrev_b32 v1, 2, v1
    v_mov_b32 v2, s14
    buffer_store_dword v2, v1, s[8:11], 0 offen
    s_waitcnt vmcnt(0)
    s_endpgm
.section .rodata,"a"
.p2align 6
.amdhsa_kernel mb_kernel
  .amdhsa_next_free_vgpr {vgpr}
  .amdhsa_next_free_sgpr 32
  .amdhsa_accum_offset {vgpr}
  .amdhsa_group_segment_fixed_size 0
  .amdhsa_kernarg_size 32
  .amdhsa_user_sgpr_count 2
  .amdhsa_user_sgpr_kernarg_segment_ptr 1
  .amdhsa_system_sgpr_workgroup_id_x 1
.end_amdhsa_kernel
'''
def gen(fn, body, block, grid=256, iters=200, vgpr=128):
    init = '\n'.join(f'    v_mov_b32 v{i}, 0.5' for i in range(3, vgpr))
    open(fn, 'w').write(HDR.format(grid=grid, block=block, init=init, body=body, iters=iters, wpb=block//64, vgpr=vgpr))

def exp16(src=16, dst=32): return [f'    v_exp_f32 v{dst+i}, v{src+i}' for i in range(16)]
bodies = {}
bodies['exp64'] = '\n'.join(f'    v_exp_f32 v{32+i%32}, v{64+i%32}' for i in range(64))
bodies['fma64'] = '\n'.join(f'    v_fma_f32 v{32+i%32}, v{64+i%32}, v{64+i%32}, v{64+i%32}' for i in range(64))
bodies['add64'] = '\n'.join(f'    v_add_f32 v{32+i%32}, v{64+i%32}, v{64+i%32}' for i in range(64))
bodies['cvt64'] = '\n'.join(f'    v_cvt_pk_bf16_f32 v{32+i%32}, v{64+i%32}, v{65+i%32}' for i in range(64))
bodies['pkfma64'] = '\n'.join(f'    v_pk_fma_f32 v[{32+2*(i%16)}:{33+2*(i%16)}], v[{64+2*(i%16)}:{65+2*(i%16)}], v[{64+2*(i%16)}:{65+2*(i%16)}], v[{64+2*(i%16)}:{65+2*(i%16)}]' for i in range(64))
bodies['expadd'] = '\n'.join(f'    v_exp_f32 v{32+i%16}, v{64+i%16}\n    v_add_f32 v{48+i%16}, v{80+i%16}, v{80+i%16}' for i in range(32))
bodies['expf16'] = '\n'.join(f'    v_exp_f16 v{32+i%32}, v{64+i%32}' for i in range(64))
bodies['mfma16'] = '\n'.join(f'    v_mfma_f32_32x32x16_bf16 v[{32+16*(i%2)}:{47+16*(i%2)}], v[64:67], v[68:71], v[{32+16*(i%2)}:{47+16*(i%2)}]' for i in range(16))
def tile(order):
    L = []
    m = [f'    v_mfma_f32_32x32x16_bf16 v[96:111], v[64:67], v[68:71], 0',
         f'    v_mfma_f32_32x32x16_bf16 v[96:111], v[64:67], v[68:71], v[96:111]',
         f'    v_mfma_f32_32x32x16_bf16 v[112:127], v[72:75], v[76:79], v[112:127]',
         f'    v_mfma_f32_32x32x16_bf16 v[112:127], v[72:75], v[76:79], v[112:127]']
    e = [f'    v_exp_f32 v{32+i}, v{16+i}' for i in range(16)]
    c = [f'    v_cvt_pk_bf16_f32 v{48+i}, v{80+2*i}, v{81+2*i}' for i in range(8)]
    if order == 'inter':
        for j in range(4):
            L.append(m[j]); L += e[4*j:4*j+4]; L += c[2*j:2*j+2]
    elif order == 'inter2':
        for j in range(4):
            L.append(m[j]); L += [e[4*j], e[4*j+1], c[2*j], e[4*j+2], e[4*j+3], c[2*j+1]]
    elif order == 'noMfma':
        for j in range(4):
            L += e[4*j:4*j+4]; L += c[2*j:2*j+2]
    elif order == 'nocvt':
        for j in range(4):
            L.append(m[j]); L += e[4*j:4*j+4]
    return L
for o in ['inter', 'inter2', 'noMfma', 'nocvt']:
    bodies['att_'+o] = '\n'.join(tile(o)*4)
if __name__ != "__main__": bodies = {}
files = []
for name, b in bodies.items():
    for block in (256, 512, 1024):
        fn = f'mb_{name}_{block}.s'
        gen(fn, b, block)
        files.append(fn)
if __name__ == "__main__": print(" ".join(files))
```

```python
from gen_mb1 import HDR
def gen(fn, body, block, grid=256, iters=100, vgpr=160, lds=65536):
    init = '\n'.join(f'    v_mov_b32 v{i}, 0' for i in range(3, vgpr))
    init += '\n    v_and_b32 v3, 63, v0\n    v_lshlrev_b32 v3, 4, v3\n    v_mov_b32 v4, 0xdddddddd\n'
    s = HDR.format(grid=grid, block=block, init=init, body=body, iters=iters, wpb=block//64, vgpr=vgpr)
    s = s.replace('lds=0', f'lds={lds}')
    open(fn, 'w').write(s)
def tile(t, pos, nreads=4, wait=None, filler=None):
    nS = 2
    S = lambda i: 32 + 16*(i % nS)
    K = lambda i: 64 + 8*(i % 4)
    V = lambda i: 96 + 8*(i % 4)
    e = lambda i: f'    v_exp_f32 v{S(t)+i}, v{S(t)+i}'
    qk1 = f'    v_mfma_f32_32x32x16_bf16 v[{S(t+1)}:{S(t+1)+15}], v[{K(t+1)}:{K(t+1)+3}], v[8:11], 0'
    qk2 = f'    v_mfma_f32_32x32x16_bf16 v[{S(t+1)}:{S(t+1)+15}], v[{K(t+1)+4}:{K(t+1)+7}], v[12:15], v[{S(t+1)}:{S(t+1)+15}]'
    pv1 = f'    v_smfmac_f32_32x32x32_bf16 v[16:31], v[{V(t)}:{V(t)+3}], v[{S(t)}:{S(t)+7}], v4'
    pv2 = f'    v_smfmac_f32_32x32x32_bf16 v[16:31], v[{V(t-1)+4}:{V(t-1)+7}], v[{S(t-1)+8}:{S(t-1)+15}], v4'
    r = [f'    ds_read_b128 v[{K(t+3)}:{K(t+3)+3}], v3 offset:{(t%8)*4096}', f'    ds_read_b128 v[{K(t+3)+4}:{K(t+3)+7}], v3 offset:{(t%8)*4096+1024}',
         f'    ds_read_b128 v[{V(t+2)}:{V(t+2)+3}], v3 offset:{(t%8)*4096+2048}', f'    ds_read_b128 v[{V(t+2)+4}:{V(t+2)+7}], v3 offset:{(t%8)*4096+3072}']
    if filler: r = [filler]*4
    r = r[:nreads]
    seq = [e(0), e(1), pv2, e(2), e(3), e(4), e(5), qk1, e(6), e(7), e(8), e(9), qk2, e(10), e(11), e(12), e(13), pv1, e(14), e(15)]
    out = []
    ri = 0
    if wait: out.append(wait)
    for i, ins in enumerate(seq):
        out.append(ins)
        for p in pos:
            if p == i and ri < len(r):
                out.append(r[ri]); ri += 1
    return out
V = {
 'afterM': dict(pos=[2,7,12,17], wait='    s_waitcnt lgkmcnt(4)'),
 'afterM_nowait': dict(pos=[2,7,12,17]),
 'midexp': dict(pos=[4,9,14,19], wait='    s_waitcnt lgkmcnt(4)'),
 'beforeM': dict(pos=[1,6,11,16], wait='    s_waitcnt lgkmcnt(4)'),
 'burst': dict(pos=[2,2,2,2], wait='    s_waitcnt lgkmcnt(4)'),
 'two': dict(pos=[2,12], nreads=2, wait='    s_waitcnt lgkmcnt(2)'),
 'snop_afterM': dict(pos=[2,7,12,17], filler='    s_nop 0'),
 'snop_mid': dict(pos=[4,9,14,19], filler='    s_nop 0'),
 'sadd_mid': dict(pos=[4,9,14,19], filler='    s_add_u32 s22, s22, 1'),
}
files = []
for name, kw in V.items():
    body = []
    for t in range(8): body += tile(t, **kw)
    for block in (256, 512):
        fn = f'mb5_{name}_{block}.s'
        gen(fn, '\n'.join(body), block)
        files.append(fn)
print(' '.join(files))
```

```python
import math

NAME = 'gated_mix__sliding_block__softmax_full_mha__prompt'

WS_KV = 0
WS_Q = 8 << 20
WS_O = 12 << 20
WS_Z = 16 << 20
WS_STAMP = 17 << 20
WS_END = 18 << 20
DIAG = False

CSCALE = math.log2(math.e) / math.sqrt(28.0)

def f32bits(x):
    import struct
    return struct.unpack('<I', struct.pack('<f', x))[0]

class Asm:
    def __init__(self):
        self.lines = []
        self.uid = 0
    def __call__(self, s):
        for l in s.split('\n'):
            l = l.strip()
            if not l:
                continue
            if l.endswith(':') or l.startswith('.'):
                self.lines.append(l)
            else:
                self.lines.append('    ' + l)
    def c(self, s):
        self.lines.append('    ; ' + s)
    def label(self, s):
        self.lines.append(s + ':')
    def new(self, base):
        self.uid += 1
        return f'{base}_{self.uid}'
    def text(self):
        return '\n'.join(self.lines) + '\n'

def vr(b, n=1):
    return f'v{b}' if n == 1 else f'v[{b}:{b+n-1}]'
def sr(b, n=1):
    return f's{b}' if n == 1 else f's[{b}:{b+n-1}]'

def kernel_header(a, label):
    a(f'.globl {label}')
    a('.p2align 8')
    a(f'.type {label},@function')
    a.label(label)

def kernel_desc(label, vgpr, sgpr=100):
    acc = (vgpr + 3) // 4 * 4
    return f'''.amdhsa_kernel {label}
  .amdhsa_next_free_vgpr {vgpr}
  .amdhsa_next_free_sgpr {sgpr}
  .amdhsa_accum_offset {acc}
  .amdhsa_group_segment_fixed_size 0
  .amdhsa_kernarg_size 80
  .amdhsa_user_sgpr_count 2
  .amdhsa_user_sgpr_kernarg_segment_ptr 1
  .amdhsa_system_sgpr_workgroup_id_x 1
.end_amdhsa_kernel
'''

def srd(a, d, base_lo, base_hi, nbytes):
    a(f's_mov_b32 s{d}, s{base_lo}')
    a(f's_and_b32 s{d+1}, s{base_hi}, 0xffff')
    a(f's_mov_b32 s{d+2}, {nbytes}')
    a(f's_mov_b32 s{d+3}, 0x20000')

import common as _c
def stamp(a, i):
    if _c.DIAG:
        a(f's_memrealtime s[{72+2*i}:{73+2*i}]')
def stamp_init(a):
    if _c.DIAG:
        a('s_memrealtime s[72:73]')
        a('s_mov_b32 s92, 0')
        a('s_mov_b32 s94, 0')
        for i in range(1, 10):
            a(f's_mov_b32 s{72+2*i}, 0')
def dump_stamps(a, kidx, wave_s=34, wave_add=0):
    if not _c.DIAG:
        return
    a('s_waitcnt vmcnt(0)')
    a('s_memrealtime s[90:91]')
    a('s_mov_b64 exec, -1')
    a('s_lshl_b32 s70, s2, 3')
    a(f's_add_u32 s70, s70, s{wave_s}')
    a(f's_add_u32 s70, s70, {wave_add}')
    a('s_lshl_b32 s70, s70, 6')
    a(f's_add_u32 s70, s70, {WS_STAMP + kidx*(256<<10)}')
    a('s_waitcnt lgkmcnt(0)')
    a('v_mov_b32 v0, 0')
    for i in range(10):
        a(f'v_mov_b32 v1, s{72+2*i}')
        a(f'buffer_store_dword v1, v0, s[28:31], s70 offen offset:{4*i}')
        a('s_nop 1')
    a('s_getreg_b32 s71, hwreg(HW_REG_XCC_ID)')
    a('v_mov_b32 v1, s71')
    a('buffer_store_dword v1, v0, s[28:31], s70 offen offset:40')
    a('s_sub_u32 s71, s94, s92')
    a('s_nop 1')
    a('v_mov_b32 v1, s71')
    a('buffer_store_dword v1, v0, s[28:31], s70 offen offset:44')

def cstamp(a, i):
    if _c.DIAG:
        a(f's_memtime s[{92+2*i}:{93+2*i}]')
```

```python
import sys
from common import *
import common

WS_F1 = (16 << 20) + 65536
WS_F2 = WS_F1 + 8192
XRING = 0
WE = 65536
WRING = 98304
GATE = 159744
ZBUF = 160768
FBFLAG = 161280
LDS_SIZE = 163840
QBUF = 49152
COMB = 98304
WA_SLOT = [16384, 65536, 32768, 81920]
WB_SLOT = [0, 49152, 114688, 131072]

VARIANTS = ['QQQ', 'QKK', 'KKK', 'KKV', 'VVV']
SC = 'sc1'
SPIN_LIMIT = 1 << 16

P_X, P_AW, P_AWO, P_BW, P_BWO, P_G, P_OUT, P_DBG, P_WS = 4, 6, 8, 12, 14, 16, 18, 20, 22
R0, RWS, R1, R2, R3 = 24, 28, 64, 68, 96

def mksrd(a, d, p, nbytes):
    srd(a, d, p, p+1, nbytes)

def dispatch(a, sreg, prefix):
    a(f's_cmp_lt_u32 s{sreg}, 5')
    a(f's_cbranch_scc1 {prefix}_QQQ')
    a(f's_cmp_eq_u32 s{sreg}, 5')
    a(f's_cbranch_scc1 {prefix}_QKK')
    a(f's_cmp_lt_u32 s{sreg}, 10')
    a(f's_cbranch_scc1 {prefix}_KKK')
    a(f's_cmp_eq_u32 s{sreg}, 10')
    a(f's_cbranch_scc1 {prefix}_KKV')
    a(f's_branch {prefix}_VVV')

def window(a, cb_s, ws0_s, co_s, t):
    a(f's_mul_i32 s{ws0_s}, s{cb_s}, 168')
    a(f's_and_b32 s{co_s}, s{ws0_s}, 127')
    a(f's_and_b32 s{t}, s{co_s}, 0x70')
    a(f's_min_u32 s{t+1}, s{t}, 64')
    a(f's_cmp_le_u32 s{co_s}, 88')
    a(f's_cselect_b32 s{t}, s{t+1}, s{t}')
    a(f's_sub_u32 s{co_s}, s{co_s}, s{t}')
    a(f's_sub_u32 s{ws0_s}, s{ws0_s}, s{co_s}')

def wslot(g):
    if g < 7: return WRING + (g % 5)*12288
    if g < 9: return WE + (g - 7)*12288
    return WRING + ((g - 7) % 5)*12288

def spin_check(a, vdata, nd, vaddr, srdn, soff, name, first_waited=True):
    ok, lp = a.new(name + '_ok'), a.new(name + '_lp')
    a(f's_mov_b32 s61, {SPIN_LIMIT}')
    a.label(lp)
    if nd == 4:
        a(f'v_min_u32 v{vdata}, v{vdata}, v{vdata+1}')
        a(f'v_min3_u32 v{vdata}, v{vdata}, v{vdata+2}, v{vdata+3}')
    a(f'v_cmp_eq_u32 vcc, 0, v{vdata}')
    a('s_sub_u32 s61, s61, 1')
    a('s_cselect_b64 vcc, 0, vcc')
    a(f's_cbranch_vccz {ok}')
    a('s_sleep 1')
    ld = 'buffer_load_dwordx4' if nd == 4 else 'buffer_load_dword'
    a(f'{ld} {vr(vdata,nd)}, v{vaddr}, {sr(srdn,4)}, {soff} offen {SC}')
    a('s_waitcnt vmcnt(0)')
    a(f's_branch {lp}')
    a.label(ok)

XR = [8, 9, 10, 11]
WRB, WRA, WRE = 12, 13, 6
VL16, VT16, VPAD = 14, 15, 7
WF = [16, 28, 40]
PK = 52
ACC = 80
XF = 128
VGO = 76

def wread(g, n, i, e):
    ks = n % 4
    if g < 7: base, off = WRB, wslot(g) - WRING
    elif g < 9: base, off = WRE, wslot(g) - WE
    else: base, off = WRA, wslot(g) - WRING
    return f'ds_read_b64_tr_b16 {vr(WF[n%3]+4*i+2*e,2)}, v{base} offset:{off + ks*3072 + e*768 + i*56}'

def group(isA, n):
    g = (7 if isA else 0) + n//4
    p = [[wread(g, n, i, e) for e in range(2)] for i in range(3)]
    if not isA:
        p[0].insert(0, f'ds_read_b128 {vr(XF+4*n,4)}, v{XR[n%4]} offset:{XRING + ((n//4)%4)*16384}')
    return p

def first_reads(a, isA):
    for n in range(2):
        for part in group(isA, n):
            for x in part: a(x)

LAST_P1_BAR = 10
def gemm_pass(a, var, isA, hook=None):
    G = 6 if isA else 7
    for n in range(28):
        nx = group(isA, n+2) if n + 2 < 28 else [[], [], []]
        g1 = G if n + 1 < 28 else 0
        for i in range(3):
            if n + 2 < 28:
                if i == 0: a(f's_waitcnt lgkmcnt({g1})')
            else:
                a(f's_waitcnt lgkmcnt({2*(2 - i) + g1})')
            if i == 0 and n + 2 < 28 and (n+2) % 4 == 0:
                g = (7 if isA else 0) + (n+2)//4
                if g <= LAST_P1_BAR:
                    a('s_barrier')
            xf = vr(XF+4*n, 4); wf = vr(WF[n%3]+4*i, 4); d = vr(ACC+16*i, 16)
            cin = '0' if n == 0 else d
            if var[i] == 'V':
                a(f'v_mfma_f32_32x32x16_bf16 {d}, {xf}, {wf}, {cin}')
            else:
                a(f'v_mfma_f32_32x32x16_bf16 {d}, {wf}, {xf}, {cin}')
            for x in nx[i]: a(x)
            if hook: hook(n, i)

def store_offsets(a, var, cb_s, br):
    a(f's_mul_i32 s40, s{cb_s}, 3')
    a('s_lshl_b32 s41, s32, 2')
    a('s_add_u32 s41, s41, s34')
    if br:
        a('s_add_u32 s41, s41, 1024')
    for i in range(3):
        a(f's_add_u32 s42, s40, {i}')
        a('s_and_b32 s42, s42, 15')
        a('s_lshl_b32 s42, s42, 6')
        a('s_add_u32 s42, s42, s41')
        ty = var[i]
        if ty == 'Q':
            a(f's_lshl_b32 s42, s42, 11')
            a(f's_add_u32 s{44+i}, s42, {WS_Q}')
        elif ty == 'K':
            a(f's_lshl_b32 s{44+i}, s42, 12')
        else:
            a(f's_lshl_b32 s42, s42, 12')
            a(f's_add_u32 s{44+i}, s42, 2048')

def prefill(a, var):
    for i in range(3):
        p = PK + 8*i
        ty = var[i]
        if ty == 'Q':
            a(f'v_mov_b64 {vr(p+6,2)}, 0')
        elif ty == 'K':
            a(f'v_mov_b32 v{p+6}, 0x3f803f80')
            a(f'v_mov_b32 v{p+7}, 0x3f80')
        else:
            for r in range(8):
                a(f'v_mov_b32 v{p+r}, v{VPAD}')

def p1_epilogue(a, var):
    a('s_nop 9')
    for i in range(3):
        ty = var[i]
        d = ACC + 16*i; p = PK + 8*i
        if ty == 'Q':
            for r in range(0, 16, 2):
                a(f'v_pk_mul_f32 {vr(d+r,2)}, {vr(d+r,2)}, s[50:51]')
        if ty == 'V':
            a('s_mov_b32 exec_lo, 0x0fffffff')
            a('s_mov_b32 exec_hi, 0x0fffffff')
            for r in range(8):
                a(f'v_cvt_pk_bf16_f32 v{p+r}, v{d+2*r}, v{d+2*r+1}')
            a('s_mov_b64 exec, -1')
        else:
            for r in range(6):
                a(f'v_cvt_pk_bf16_f32 v{p+r}, v{d+2*r}, v{d+2*r+1}')
            a('s_mov_b32 exec_hi, 0')
            for r in range(6, 8):
                a(f'v_cvt_pk_bf16_f32 v{p+r}, v{d+2*r}, v{d+2*r+1}')
            a('s_mov_b32 exec_hi, -1')
        va = VT16 if ty == 'K' else VL16
        a(f'buffer_store_dwordx4 {vr(p,4)}, v{va}, {sr(RWS,4)}, s{44+i} offen {SC}')
        a(f'buffer_store_dwordx4 {vr(p+4,4)}, v{va}, {sr(RWS,4)}, s{44+i} offen offset:1024 {SC}')

def flag_store(a, vone, vzero, soff):
    a('s_mov_b64 exec, 1')
    a(f'buffer_store_dword v{vone}, v{vzero}, {sr(RWS,4)}, {soff} offen {SC}')
    a('s_mov_b64 exec, -1')

RA, RBA, RB0, RB1, VD, IDX, VZ, VWO = 8, 9, 10, 11, 12, 13, 14, 15
QB, QA, OB, OA, S0, K0, V0, CD, CE = 16, 24, 32, 48, 64, 128, 160, 192, 208
VA0 = 224
VSAV = 228
VPOLL = 232
VPA = 236
VZERO, VONE = 237, 238
VTMP = 240
NEGBIG = 0xff000000
LOG2E = f32bits(math.log2(math.e))

def Sb(t): return S0 + 16*(t % 4)
def Kb(t): return K0 + 8*(t % 4)
def Vb(t): return V0 + 8*(t % 4)

def qk(a, d, k, q, cin, half):
    if half == 0:
        a(f'v_mfma_f32_32x32x16_bf16 {vr(d,16)}, {vr(k,4)}, {vr(q,4)}, {cin}')
    else:
        a(f'v_mfma_f32_32x32x16_bf16 {vr(d,16)}, {vr(k+4,4)}, {vr(q+4,4)}, {vr(d,16)}')

def rowmax(a, s, out, t1, t2):
    a(f'v_max3_f32 v{out}, v{s}, v{s+1}, v{s+2}')
    a(f'v_max3_f32 v{t1}, v{s+3}, v{s+4}, v{s+5}')
    a(f'v_max3_f32 v{out}, v{out}, v{s+6}, v{s+7}')
    a(f'v_max3_f32 v{t1}, v{t1}, v{s+8}, v{s+9}')
    a(f'v_max3_f32 v{out}, v{out}, v{s+10}, v{s+11}')
    a(f'v_max3_f32 v{t1}, v{t1}, v{s+12}, v{s+13}')
    a(f'v_max3_f32 v{out}, v{out}, v{s+14}, v{s+15}')
    a(f'v_max_f32 v{t1}, v{out}, v{t1}')
    a(f'v_mov_b32 v{t2}, v{t1}')
    a('s_nop 1')
    a(f'v_permlane32_swap_b32 v{t1}, v{t2}')
    a('s_nop 1')
    a(f'v_max_f32 v{out}, v{t1}, v{t2}')

def zero16(a, r):
    for i in range(0, 16, 2):
        a(f'v_mov_b64 {vr(r+i,2)}, 0')

def dma_tile(srdn, m0base_s, m0imm, soff_imm, voff=VD, soff_s=None):
    L = []
    for f in range(4):
        g = []
        if f == 0:
            g.append(f's_add_u32 m0, s{m0base_s}, {m0imm}')
            g.append(f's_mov_b32 s48, {soff_imm}' if soff_s is None else 's_nop 0')
        so = 's48' if soff_s is None else soff_s
        g.append(f'buffer_load_dwordx4 v{voff}, {sr(srdn,4)}, {so} offen offset:{f*1024} {SC} lds')
        L.append(g)
    return L

def dma_wo(srdn, slot, kq):
    L = []
    for i in range(4):
        g = [f's_add_u32 m0, s39, {slot + i*1024}']
        if i < 2:
            g.append(f's_mov_b32 s48, {(kq*112 + 8*i)*896}')
        else:
            g.append(f's_add_u32 s48, s49, {(kq*112 + 8*i)*896}')
        g.append(f'buffer_load_dwordx4 v{VWO}, {sr(srdn,4)}, s48 offen lds')
        L.append(g)
    return L

def set_shift(a, s, q, sav, cin, kreg):
    l1, l2 = a.new('fbq'), a.new('fbq_e')
    a('s_cmp_lg_u32 s60, 0')
    a(f's_cbranch_scc1 {l1}')
    qk(a, s, kreg, q, cin, 0)
    qk(a, s, kreg, q, None, 1)
    a('s_nop 11')
    rowmax(a, s, 2, 3, 4)
    a('s_mov_b32 exec_lo, 0')
    a(f'v_cvt_pk_bf16_f32 v{q+6}, -v2, 0')
    a('s_mov_b32 exec_lo, -1')
    a(f's_branch {l2}')
    a.label(l1)
    a('s_mov_b32 exec_lo, 0')
    a(f'v_mov_b64 {vr(q+6,2)}, {vr(sav,2)}')
    a('s_mov_b32 exec_lo, -1')
    a.label(l2)
    a('s_nop 1')

def check(a, o, lower, dst=58):
    a(f'v_cmp_nle_f32 s[52:53], v{o+12}, s56')
    if lower:
        a(f'v_cmp_nge_f32 s[54:55], v{o+12}, s57')
        a('s_or_b32 s53, s53, s55')
    a(f's_or_b32 s{dst}, s{dst}, s53')

def finalize_calc(a, o, sign):
    a(f'v_mov_b32 v2, v{o+12}')
    a(f'v_mov_b32 v3, v{o+12}')
    a(f'v_mul_f32 v4, {LOG2E if sign > 0 else (LOG2E ^ 0x80000000)}, v{VZ}')
    a('v_exp_f32 v4, v4')
    a('v_permlane32_swap_b32 v2, v3')
    a('s_nop 1')
    a('v_fma_f32 v4, v4, v3, v3')
    a('v_rcp_f32 v4, v4')
    a('s_nop 0')
    a('v_mov_b32 v5, v4')
    for r in range(0, 16, 2):
        a(f'v_pk_mul_f32 {vr(o+r,2)}, {vr(o+r,2)}, v[4:5]')
    p = VTMP
    for r in range(8):
        a(f'v_cvt_pk_bf16_f32 v{p+r}, v{o+2*r}, v{o+2*r+1}')
    a('s_mov_b32 exec_lo, 0')
    a(f'v_mov_b64 {vr(p+6,2)}, 0')
    a('s_mov_b32 exec_lo, -1')

def finalize_store(a, soff):
    p = VTMP
    a(f'buffer_store_dwordx4 {vr(p,4)}, v{RA}, {sr(RWS,4)}, s{soff} offen {SC}')
    a(f'buffer_store_dwordx4 {vr(p+4,4)}, v{RA}, {sr(RWS,4)}, s{soff} offen offset:1024 {SC}')

def fbflag_publish(a):
    skip = a.new('noflag')
    a('s_cmp_eq_u32 s58, 0')
    a(f's_cbranch_scc1 {skip}')
    a(f'v_mov_b32 v2, {FBFLAG}')
    a(f'ds_write_b32 v2, v{VONE}')
    a.label(skip)

def split3(a, s, sav):
    rowmax(a, s, 2, 3, 4)
    a('v_cvt_pk_bf16_f32 v3, -v2, 0')
    a('v_lshlrev_b32 v4, 16, v3')
    a('v_sub_f32 v2, -v2, v4')
    a('v_cvt_pk_bf16_f32 v5, v2, 0')
    a('v_lshlrev_b32 v4, 16, v5')
    a('v_sub_f32 v2, v2, v4')
    a(f'v_or_b32 v{sav}, v3, v4')
    a(f'v_cvt_pk_bf16_f32 v{sav+1}, v2, 0')

def true_max_B(a):
    a('s_mov_b32 exec_lo, 0')
    a(f'v_mov_b64 {vr(QB+6,2)}, 0')
    a('s_mov_b32 exec_lo, -1')
    for i in range(16):
        a(f'v_mov_b32 v{Sb(1)+i}, {NEGBIG}')
    a('s_mov_b32 s48, 0')
    lp = a.new('fbB')
    a.label(lp)
    a(f'buffer_load_dwordx4 {vr(K0,4)}, v{RA}, {sr(R2,4)}, s48 offen {SC}')
    a(f'buffer_load_dwordx4 {vr(K0+4,4)}, v{RA}, {sr(R2,4)}, s48 offen offset:1024 {SC}')
    a('s_waitcnt vmcnt(0)')
    qk(a, Sb(0), K0, QB, '0', 0)
    qk(a, Sb(0), K0, QB, None, 1)
    a('s_nop 15')
    for i in range(16):
        a(f'v_max_f32 v{Sb(1)+i}, v{Sb(1)+i}, v{Sb(0)+i}')
    a('s_add_u32 s48, s48, 4096')
    a(f's_cmp_lt_u32 s48, {64*4096}')
    a(f's_cbranch_scc1 {lp}')
    split3(a, Sb(1), VSAV)

class VM:
    def __init__(self): self.q = []
    def add(self, tag, n=1): self.q += [tag]*n
    def wait_for(self, *tags):
        last = max((i for i, t in enumerate(self.q) if t in tags), default=-1)
        n = len(self.q) - 1 - last
        self.q = self.q[last+1:]
        return n

def pipeline(a, N, rd_addr, qreg, oreg, cin, at_start, at_slot, at_end, name):
    def rd(t, f):
        if t >= N: return
        base, off = rd_addr(t)
        dst = (Kb(t) + 4*f) if f < 2 else (Vb(t) + 4*(f-2))
        a(f'ds_read_b128 {vr(dst,4)}, v{base} offset:{off + f*1024}')
    qk(a, Sb(0), Kb(0), qreg(0), cin(0), 0)
    qk(a, Sb(0), Kb(0), qreg(0), None, 1)
    a('s_waitcnt lgkmcnt(0)')
    a('s_nop 7')
    for t in range(N):
        a.c(f'--- {name} period {t}')
        at_start(t)
        e = lambda i: a(f'v_exp_f32 v{Sb(t)+i}, v{Sb(t)+i}')
        if t + 1 < N:
            qk(a, Sb(t+1), Kb(t+1), qreg(t+1), cin(t+1), 0)
        rd(t+3, 0)
        if t == 0:
            a('s_nop 3')
        for i in range(0, 4): e(i)
        if t + 1 < N:
            qk(a, Sb(t+1), Kb(t+1), qreg(t+1), None, 1)
        rd(t+3, 1)
        for i in range(4, 8): e(i)
        if t >= 1:
            a(f'v_smfmac_f32_32x32x32_bf16 {vr(oreg(t-1),16)}, {vr(Vb(t-1)+4,4)}, {vr(Sb(t-1)+8,8)}, v{IDX}')
        if t + 2 < N:
            a(f's_waitcnt lgkmcnt({2 + (2 if t + 3 < N else 0)})')
        elif t + 2 == N:
            a('s_waitcnt lgkmcnt(0)')
        rd(t+3, 2)
        for i in range(8, 12): e(i)
        a(f'v_smfmac_f32_32x32x32_bf16 {vr(oreg(t),16)}, {vr(Vb(t),4)}, {vr(Sb(t),8)}, v{IDX}')
        rd(t+3, 3)
        at_slot(t)
        for i in range(12, 16): e(i)
        at_end(t)
    a('s_nop 1')
    t = N - 1
    a(f'v_smfmac_f32_32x32x32_bf16 {vr(oreg(t),16)}, {vr(Vb(t)+4,4)}, {vr(Sb(t)+8,8)}, v{IDX}')

def p2_scalars(a):
    a(f'v_lshlrev_b32 v{RA}, 4, v1')
    a(f'v_mov_b32 v{IDX}, 0xdddddddd')
    a('s_lshl_b32 s39, s35, 12')
    a(f'v_add_u32 v{VD}, s39, v{RA}')
    a('s_lshl_b32 s40, s32, 2')
    a('s_add_u32 s40, s40, s35')
    a('s_mov_b32 s60, 0')
    a('s_lshl_b32 s41, s33, 6')
    a('s_add_u32 s41, s41, s40')
    a('s_lshl_b32 s41, s41, 11')
    a(f's_add_u32 s41, s41, {WS_Q}')
    a(f's_add_u32 s42, s41, {16*64*2048}')
    a('s_lshl_b32 s45, s40, 5')
    a('s_add_u32 s45, s45, s33')
    a('s_lshl_b32 s43, s45, 11')
    a(f's_add_u32 s43, s43, {WS_O}')
    a(f's_add_u32 s44, s43, {16*2048}')
    a('s_lshl_b32 s45, s45, 2')
    a(f's_add_u32 s45, s45, {WS_F2}')
    a('s_lshl_b32 s46, s33, 18')
    a(f's_add_u32 s10, s{P_WS}, s46')
    a(f's_addc_u32 s11, s{P_WS+1}, 0')
    srd(a, R1, 10, 11, 262144)
    a(f's_add_u32 s10, s10, {16*262144}')
    a('s_addc_u32 s11, s11, 0')
    srd(a, R2, 10, 11, 262144)
    mksrd(a, R0, P_AWO, 448*896)
    a(f's_mov_b32 s56, {f32bits(2.0**40)}')
    a(f's_mov_b32 s57, {f32bits(2.0**-40)}')
    a('s_lshr_b32 s38, s2, 3')
    a('s_mul_i32 s36, s38, 37')
    a('s_lshr_b32 s36, s36, 8')
    a('s_mul_i32 s37, s36, 7')
    a('s_sub_u32 s37, s38, s37')
    a('s_and_b32 s46, s2, 1')
    a('s_lshl_b32 s46, s46, 4')
    a('s_add_u32 s36, s36, s46')
    a('s_and_b32 s46, s2, 6')
    a('s_lshl_b32 s46, s46, 1')
    a('s_add_u32 s36, s36, s46')
    a('v_lshrrev_b32 v3, 3, v1')
    a('s_lshl_b32 s46, s35, 5')
    a('v_add_u32 v3, s46, v3')
    a('v_mul_u32_u24 v3, 896, v3')
    a('v_and_b32 v4, 7, v1')
    a('v_bfe_u32 v5, v1, 4, 1')
    a('v_lshlrev_b32 v5, 2, v5')
    a('v_xor_b32 v4, v4, v5')
    a('v_lshl_add_u32 v3, v4, 4, v3')
    a('s_lshl_b32 s46, s37, 7')
    a(f'v_add_u32 v{VWO}, s46, v3')
    a('s_cmp_eq_u32 s35, 3')
    a('s_cselect_b32 s49, 0x40000000, 0')
    a(f'v_mov_b32 v{VZERO}, 0')
    a(f'v_mov_b32 v{VONE}, 1')

P3_WF = [16, 24]
P3_D = [32, 48]
P3_OF = 64
P3_WB = 128
def p3_setup(a):
    a('s_and_b32 s4, s34, 1')
    a('s_lshr_b32 s5, s34, 1')
    a('s_lshl_b32 s46, s36, 1')
    a('s_add_u32 s46, s46, s4')
    a('s_lshl_b32 s47, s46, 5')
    a('s_lshl_b32 s48, s5, 2')
    a('s_add_u32 s47, s47, s48')
    a('s_lshl_b32 s6, s47, 11')
    a(f's_add_u32 s6, s6, {WS_O}')
    a('s_lshl_b32 s7, s47, 2')
    a(f's_add_u32 s7, s7, {WS_F2}')

def p3_bases(a):
    a('v_lshrrev_b32 v3, 5, v1')
    a('v_bfe_u32 v4, v1, 2, 2')
    a('v_bfe_u32 v5, v1, 4, 1')
    a('v_and_b32 v6, 3, v1')
    a('v_lshlrev_b32 v6, 3, v6')
    a('v_lshl_add_u32 v6, v5, 5, v6')
    a('v_lshl_add_u32 v6, v4, 7, v6')
    a('v_lshrrev_b32 v4, 1, v4')
    a('v_lshl_add_u32 v6, v4, 6, v6')
    for dst, tab in ((12, WA_SLOT), (13, WB_SLOT)):
        a(f's_mov_b32 s{dst}, {tab[0]}')
        for k in (1, 2, 3):
            a(f's_cmp_eq_u32 s5, {k}')
            a(f's_cselect_b32 s{dst}, {tab[k]}, s{dst}')
    a('v_add_u32 v11, s12, v6')
    a('v_xor_b32 v12, 64, v11')
    a('v_lshl_add_u32 v9, v3, 9, v11')
    a('v_xor_b32 v10, 64, v9')

def p3_tr(dst, n, nt, e):
    hb, f = n//2, n % 2
    base = (9 + nt) if not (f == 1 and e == 1) else (11 + nt)
    return f'ds_read_b64_tr_b16 {vr(dst+2*e,2)}, v{base} offset:{(hb*28 + 16*f + 8*e)*128}'

def p3_oloads(a, soff):
    for i in range(8):
        if i == 4:
            a(f's_add_u32 s{soff}, s{soff}, 4096')
        a(f'buffer_load_dwordx4 {vr(P3_OF+4*i,4)}, v{RA}, {sr(RWS,4)}, s{soff} offen offset:{(i%4)*1024} {SC}')

def p3_main(a, vm):
    for n in range(8):
        for nt in range(2):
            for e in range(2):
                a(p3_tr(P3_WB + 8*n + 4*nt, n, nt, e))
        if n % 3 == 2:
            a('s_waitcnt lgkmcnt(0)')
    a('s_waitcnt lgkmcnt(0)')
    extra = len(vm.q) - 1 - max(i for i, t in enumerate(vm.q) if t == 'oa')
    for n in range(8):
        a(f's_waitcnt vmcnt({7 - n + extra})')
        for nt in range(2):
            cin = '0' if n == 0 else vr(P3_D[nt], 16)
            a(f'v_mfma_f32_32x32x16_bf16 {vr(P3_D[nt],16)}, {vr(P3_WB+8*n+4*nt,4)}, {vr(P3_OF+4*n,4)}, {cin}')
    a('s_sub_u32 s46, s13, s12')
    for r in (9, 10, 11, 12):
        a(f'v_add_u32 v{r}, s46, v{r}')
    a('s_add_u32 s7, s7, 64')
    a(f's_add_u32 s6, s6, {16*2048 - 4096}')
    a('s_waitcnt vmcnt(0)')
    stamp(a, 6)
    a('s_barrier')
    a(f'buffer_load_dwordx4 {vr(VPOLL,4)}, v{VZERO}, {sr(RWS,4)}, s7 offen {SC}')
    for n in range(8):
        for nt in range(2):
            for e in range(2):
                a(p3_tr(P3_WB + 8*n + 4*nt, n, nt, e))
        if n % 3 == 2:
            a('s_waitcnt lgkmcnt(0)')
    a('s_waitcnt vmcnt(0)')
    spin_check(a, VPOLL, 4, VZERO, RWS, 's7', 'f2b')
    stamp(a, 7)
    p3_oloads(a, 6)
    a('s_lshl_b32 s46, s4, 13')
    a('s_lshl_b32 s47, s5, 11')
    a('s_add_u32 s47, s47, s46')
    a(f'v_add_u32 v3, s47, v{RA}')
    a('v_add_u32 v2, 65536, v3')
    a('s_add_u32 s46, s46, s12')
    a(f'v_add_u32 v4, s46, v{RA}')
    a('v_and_b32 v5, 31, v1')
    a('s_lshl_b32 s46, s36, 1')
    a('s_add_u32 s46, s46, s4')
    a('s_lshl_b32 s46, s46, 5')
    a('v_add_u32 v5, s46, v5')
    a('v_mul_u32_u24 v5, 896, v5')
    a('v_lshrrev_b32 v6, 5, v1')
    a('v_lshl_add_u32 v5, v6, 4, v5')
    a('s_lshl_b32 s46, s37, 7')
    a('s_lshl_b32 s47, s5, 5')
    a('s_add_u32 s46, s46, s47')
    mksrd(a, R1, P_OUT, 2048*896)
    a('s_waitcnt lgkmcnt(0)')
    for n in range(8):
        a(f's_waitcnt vmcnt({7 - n})')
        for nt in range(2):
            a(f'v_mfma_f32_32x32x16_bf16 {vr(P3_D[nt],16)}, {vr(P3_WB+8*n+4*nt,4)}, {vr(P3_OF+4*n,4)}, {vr(P3_D[nt],16)}')
    stamp(a, 8)
    a('s_nop 10')
    for d in range(4):
        for u in range(2):
            off = WA_SLOT[d] + u*1024
            if off >= 65536:
                a(f'ds_write_b128 v2, {vr(32 + 8*d + 4*u, 4)} offset:{off - 65536}')
            else:
                a(f'ds_write_b128 v3, {vr(32 + 8*d + 4*u, 4)} offset:{off}')
    a('s_waitcnt lgkmcnt(0)')
    a('s_barrier')
    for s in range(4):
        for u in range(2):
            a(f'ds_read_b128 {vr(64 + 8*s + 4*u, 4)}, v4 offset:{s*2048 + u*1024}')
    a('s_waitcnt lgkmcnt(0)')
    for r in range(0, 8, 2):
        a(f'v_pk_add_f32 {vr(64+r,2)}, {vr(64+r,2)}, {vr(72+r,2)}')
        a(f'v_pk_add_f32 {vr(80+r,2)}, {vr(80+r,2)}, {vr(88+r,2)}')
    for r in range(0, 8, 2):
        a(f'v_pk_add_f32 {vr(64+r,2)}, {vr(64+r,2)}, {vr(80+r,2)}')
    for r in range(4):
        a(f'v_cvt_pk_bf16_f32 v{16+r}, v{64+2*r}, v{64+2*r+1}')
    a('s_nop 1')
    a('v_permlane32_swap_b32 v16, v18')
    a('v_permlane32_swap_b32 v17, v19')
    a(f'buffer_store_dwordx4 v[16:19], v5, {sr(R1,4)}, s46 offen')
    dump_stamps(a, 0)
    a('s_endpgm')

def gen(a, label, opt):
    kernel_header(a, label)
    a('s_cmp_ge_u32 s2, 256')
    a('s_cbranch_scc1 L_done')
    stamp_init(a)
    a('s_load_dwordx16 s[4:19], s[0:1], 0')
    a('s_load_dwordx4 s[20:23], s[0:1], 64')
    a('s_and_b32 s36, s2, 7')
    a('s_lshr_b32 s37, s2, 3')
    a('s_and_b32 s32, s36, 1')
    a('s_lshl_b32 s32, s32, 3')
    a('s_and_b32 s38, s37, 7')
    a('s_add_u32 s32, s32, s38')
    a('s_lshr_b32 s33, s36, 1')
    a('s_lshl_b32 s33, s33, 2')
    a('s_lshr_b32 s38, s37, 3')
    a('s_add_u32 s33, s33, s38')
    a('v_lshrrev_b32 v2, 6, v0')
    a('v_and_b32 v1, 63, v0')
    a('v_readfirstlane_b32 s34, v2')
    a('s_xor_b32 s62, s33, 1')
    window(a, 33, 36, 37, 40)
    window(a, 62, 38, 39, 40)
    a('s_and_b32 s35, s34, 3')
    a('s_cmp_lt_u32 s34, 4')
    a('s_cbranch_scc1 L_consumer')

    a('s_and_b32 s63, s33, 3')
    a('s_lshl_b32 s63, s63, 1')
    a('s_and_b32 s40, s32, 7')
    a('s_add_u32 s63, s63, s40')
    a('s_sub_u32 s40, s63, 7')
    a('s_cmp_ge_u32 s63, 7')
    a('s_cselect_b32 s63, s40, s63')
    XA = [8, 9, 10, 11]
    WA = [12, 13, 14]
    a('v_lshrrev_b32 v3, 3, v1')
    a('v_lshrrev_b32 v4, 4, v1')
    a('v_and_b32 v5, 7, v1')
    a('v_xor_b32 v5, v5, v4')
    a('s_lshl_b32 s40, s32, 7')
    a('s_lshl_b32 s41, s35, 5')
    a('s_add_u32 s40, s40, s41')
    a('v_add_u32 v3, s40, v3')
    a('v_mul_u32_u24 v3, 896, v3')
    a('v_lshlrev_b32 v6, 4, v5')
    a('v_xor_b32 v7, 64, v6')
    a(f'v_add_u32 v{XA[0]}, v3, v6')
    a(f'v_add_u32 v{XA[1]}, v3, v7')
    a(f'v_add_u32 v{XA[1]}, {8*896}, v{XA[1]}')
    a(f'v_add_u32 v{XA[2]}, {16*896}, v{XA[0]}')
    a(f'v_add_u32 v{XA[3]}, {16*896}, v{XA[1]}')
    a('s_mul_i32 s40, s35, 16*2688')
    for i in range(3):
        a(f'v_add_u32 v3, {64*i}, v1')
        a('v_mul_u32_u24 v4, 171, v3')
        a('v_lshrrev_b32 v4, 11, v4')
        a('v_mul_u32_u24 v5, 12, v4')
        a('v_sub_u32 v5, v3, v5')
        a('v_mul_u32_u24 v6, 2688, v4')
        a('v_lshl_add_u32 v6, v5, 4, v6')
        a(f'v_add_u32 v{WA[i]}, s40, v6')
    a('s_lshl_b32 s44, s35, 12')
    a('s_mul_i32 s45, s35, 3072')
    a('s_mov_b32 s46, s63')
    a('s_waitcnt lgkmcnt(0)')
    stamp(a, 1)
    mksrd(a, R0, P_X, 2048*896)
    mksrd(a, R1, P_BW, 448*2688)
    vm = VM()
    def issue(g):
        if g > 0:
            a('s_add_u32 s46, s46, 1')
            a('s_cmp_eq_u32 s46, 7')
            a('s_cselect_b32 s46, 0, s46')
        a(f's_mul_i32 s41, s46, {64*2688}')
        a(f's_add_u32 s41, s{36 if g < 7 else 38}, s41')
        for i in range(3):
            a(f's_add_u32 m0, s45, {wslot(g) + i*1024}')
            a('s_nop 0')
            a(f'buffer_load_dwordx4 v{WA[i]}, {sr(R1 if g < 7 else R2,4)}, s41 offen lds')
        vm.add(g, 3)
        if g < 7:
            a('s_lshl_b32 s40, s46, 7')
            for i in range(4):
                a(f's_add_u32 m0, s44, {XRING + (g % 4)*16384 + i*1024}')
                a('s_nop 0')
                a(f'buffer_load_dwordx4 v{XA[i]}, {sr(R0,4)}, s40 offen lds')
            vm.add(g, 4)
    issue(0)
    issue(1)
    mksrd(a, R2, P_AW, 448*2688)
    mksrd(a, RWS, P_WS, WS_END)
    mksrd(a, R3, P_G, 896)
    a('v_and_b32 v3, 31, v1')
    a('v_lshrrev_b32 v4, 5, v1')
    a('v_bfe_u32 v5, v3, 1, 3')
    a('v_xor_b32 v5, v5, v4')
    a('v_lshlrev_b32 v6, 7, v3')
    a('v_add_u32 v6, s44, v6')
    for ks in range(4):
        a(f'v_xor_b32 v7, {2*ks}, v5')
        a(f'v_lshl_add_u32 v{16+ks}, v7, 4, v6')
    a('v_lshlrev_b32 v20, 4, v4')
    a(f'v_add_u32 v20, {GATE}, v20')
    a('v_lshlrev_b32 v15, 4, v1')
    a('s_lshl_b32 s40, s63, 7')
    a('v_add_u32 v3, s40, v15')
    a('v_subrev_u32 v4, 896, v3')
    a('v_min_u32 v15, v3, v4')
    a('v_mov_b64 v[24:25], 0')
    a('v_mov_b64 v[26:27], 0')
    a('v_mov_b32 v21, 0')
    sched = {0: [2], 1: [3], 2: [4], 3: [5], 4: [6, 7], 5: [8, 9, 10], 6: [11], 7: [12], 8: [13]}
    for g in range(LAST_P1_BAR + 1):
        n = vm.wait_for(g) if g < LAST_P1_BAR else vm.wait_for(*range(14), 'go')
        a(f's_waitcnt vmcnt({n})')
        if g in (0, 6): stamp(a, {0: 2, 6: 3}[g])
        a('s_barrier')
        if g < 7:
            for ks in range(4):
                a(f'ds_read_b128 {vr(128+16*g+4*ks,4)}, v{16+ks} offset:{XRING + (g % 4)*16384}')
        for c in sched.get(g, []):
            issue(c)
        if g == 6:
            a(f's_mov_b32 m0, {GATE}')
            a('s_nop 0')
            a(f'buffer_load_dwordx4 v15, {sr(R3,4)}, 0 offen lds')
            vm.add('gate')
            mksrd(a, R3, P_DBG, 256)
        if g == 8:
            a(f'buffer_load_dword v22, v21, {sr(R3,4)}, 0 offen {SC}')
            vm.add('go')
        if g < 7:
            a('s_waitcnt lgkmcnt(0)')
    for c in range(7):
        for ks in range(4):
            a(f'ds_read_b128 {vr(32+16*(c%2)+4*ks,4)}, v20 offset:{c*128 + ks*32}')
        if c > 0:
            a('s_waitcnt lgkmcnt(4)')
            for r in range(16):
                a(f'v_dot2_f32_bf16 v{24 + r%4}, v{128+16*(c-1)+r}, v{32+16*((c-1)%2)+r}, v{24 + r%4}')
    a('s_waitcnt lgkmcnt(0)')
    for r in range(16):
        a(f'v_dot2_f32_bf16 v{24 + r%4}, v{128+16*6+r}, v{32+r}, v{24 + r%4}')
    spin_check(a, 22, 1, 21, R3, '0', 'go_b')
    a('v_add_f32 v24, v24, v25')
    a('v_add_f32 v26, v26, v27')
    a('v_add_f32 v24, v24, v26')
    a('v_mov_b32 v25, v24')
    p2_scalars(a)
    p3_setup(a)
    a('v_permlane32_swap_b32 v24, v25')
    a('v_and_b32 v3, 31, v1')
    a('s_lshl_b32 s46, s35, 7')
    a(f's_add_u32 s46, s46, {ZBUF}')
    a('v_lshl_add_u32 v4, v3, 2, s46')
    a(f'v_add_f32 v{VZ}, v24, v25')
    a(f'ds_write_b32 v4, v{VZ}')
    a('s_add_u32 s46, s33, 16')
    a('s_mul_i32 s46, s46, 43')
    a('s_lshr_b32 s46, s46, 7')
    a('s_add_u32 s47, s33, 32')
    a('s_mul_i32 s47, s47, 43')
    a('s_lshr_b32 s47, s47, 7')
    a('s_mul_i32 s48, s33, 43')
    a('s_lshr_b32 s48, s48, 7')
    a('s_lshl_b32 s46, s46, 8')
    a('s_lshl_b32 s47, s47, 8')
    a('s_lshl_b32 s48, s48, 8')
    a('s_lshl_b32 s50, s32, 4')
    a('s_add_u32 s48, s48, s50')
    a('v_and_b32 v2, 15, v1')
    a('v_lshlrev_b32 v2, 4, v2')
    a('v_add_u32 v3, s46, v2')
    a('v_add_u32 v4, s47, v2')
    a('v_mov_b32 v5, s48')
    a('v_cmp_gt_u32 vcc, 16, v1')
    a('v_cmp_gt_u32 s[52:53], 32, v1')
    a('s_nop 0')
    a('v_cndmask_b32 v3, v4, v3, vcc')
    a('v_cndmask_b32 v6, v5, v3, s[52:53]')
    a(f's_mov_b32 s51, {WS_F1 + 4096}')
    a(f'buffer_load_dwordx4 {vr(VPOLL,4)}, v6, {sr(RWS,4)}, s51 offen {SC}')
    a('v_and_b32 v2, 3, v1')
    a('v_min_u32 v2, 2, v2')
    a('s_sub_u32 s50, s32, 2')
    a('v_add_u32 v2, s50, v2')
    a('v_max_i32 v2, 0, v2')
    a('v_lshlrev_b32 v2, 4, v2')
    a('v_add_u32 v3, s46, v2')
    a('v_add_u32 v4, s47, v2')
    a('v_cmp_gt_u32 vcc, 4, v1')
    a('v_cmp_gt_u32 s[52:53], 8, v1')
    a('s_nop 0')
    a('v_cndmask_b32 v3, v4, v3, vcc')
    a(f'v_cndmask_b32 v{VPA}, v5, v3, s[52:53]')
    a(f'v_add_u32 v{VPA}, {WS_F1}, v{VPA}')
    a('s_add_u32 s47, s39, 65536')
    a('s_lshl_b32 s46, s32, 2')
    a('s_add_u32 s46, s46, 3')
    a('s_sub_u32 s46, s46, s35')
    a('s_lshl_b32 s46, s46, 12')
    a(f'v_add_u32 v{VA0}, s46, v{RA}')
    a(f'v_subrev_u32 v{VA0+1}, 16384, v{VA0}')
    a(f'v_subrev_u32 v{VA0+2}, 32768, v{VA0}')
    a('s_sub_u32 s46, 65536 + 3*4096, s39')
    a(f'v_add_u32 v{RBA}, s46, v{RA}')
    a(f'v_add_u32 v{RB0}, 65536, v{RA}')
    a(f'v_add_u32 v{RB1}, 131072, v{RA}')
    a('v_and_b32 v3, 31, v1')
    a('v_lshrrev_b32 v2, 5, v1')
    a('v_lshlrev_b32 v2, 3, v2')
    a('v_sub_u32 v3, v3, v2')
    a(f'v_mov_b32 v2, {NEGBIG}')
    for r in range(0, 16, 2):
        for u in range(2):
            cr = ((r+u) % 8) + 16*((r+u)//8)
            a(f'v_cmp_le_i32 s[{52+2*u}:{53+2*u}], {cr}, v3')
        a('s_nop 0')
        for u in range(2):
            a(f'v_cndmask_b32 v{CD+r+u}, v2, 0, s[{52+2*u}:{53+2*u}]')
            a(f'v_cndmask_b32 v{CE+r+u}, 0, v2, s[{52+2*u}:{53+2*u}]')
    a('s_mov_b32 s63, 0')
    a('s_waitcnt vmcnt(0)')
    spin_check(a, VPOLL, 4, 6, RWS, 's51', 'f1b')
    stamp(a, 4)

    a.label('L_b_restart')
    a('s_mov_b32 s58, 0')
    vm = VM()
    a('s_lshr_b32 s46, s39, 1')
    a(f's_add_u32 m0, s46, {QBUF}')
    a('s_nop 0')
    a(f'buffer_load_dwordx4 v{RA}, {sr(RWS,4)}, s42 offen {SC} lds')
    a(f'buffer_load_dwordx4 v{RA}, {sr(RWS,4)}, s42 offen offset:1024 {SC} lds')
    vm.add('s0', 2)
    bsl = {0: 0, 1: 1, 2: 2, 3: 3, 4: 4, 7: 3, 8: 4}
    bkt = {0: 36, 1: 40, 2: 44, 3: 48, 4: 52, 7: 56, 8: 60}
    dma_a = lambda s: dma_tile(R2, 39, (s % 4)*16384, 4*s*4096)
    dma_b = lambda s: dma_tile(R2, 47, bsl[s]*16384, bkt[s]*4096)
    for s in (0, 1):
        for d in (dma_a(s), dma_b(s)):
            for g in d:
                for x in g: a(x)
        vm.add(f's{s}', 8)
    zero16(a, OB)
    zero16(a, OA)
    a(f's_waitcnt vmcnt({vm.wait_for("s0")}) lgkmcnt(0)')
    a('s_barrier')
    stamp(a, 5)
    def rd_b(t):
        if 20 <= t < 29:
            return (RBA, (t-20)*4096)
        s, r = (t//4, t % 4) if t < 20 else (7 + (t-29)//4, (t-29) % 4)
        off = bsl[s]*16384 + r*4096
        return (RB1, off - 65536) if bsl[s] == 4 else (RB0, off)
    def initial_reads(rd):
        for t in range(3):
            for f in range(4):
                base, off = rd(t)
                dst = (Kb(t) + 4*f) if f < 2 else (Vb(t) + 4*(f-2))
                a(f'ds_read_b128 {vr(dst,4)}, v{base} offset:{off + f*1024}')
    a('s_lshr_b32 s46, s39, 1')
    a(f'v_add_u32 v2, s46, v{RA}')
    a(f'ds_read_b128 {vr(QB,4)}, v2 offset:{QBUF}')
    a(f'ds_read_b128 {vr(QB+4,4)}, v2 offset:{QBUF+1024}')
    a(f'ds_read_b128 {vr(Kb(3),4)}, v{RA}')
    a(f'ds_read_b128 {vr(Kb(3)+4,4)}, v{RA} offset:1024')
    for g in dma_b(2):
        for x in g: a(x)
    vm.add('s2', 4)
    a('s_waitcnt lgkmcnt(0)')
    initial_reads(rd_b)
    set_shift(a, Sb(0), QB, VSAV, '0', Kb(3))
    a('s_waitcnt lgkmcnt(10)')
    pend = []
    bar_b = {1: 1, 5: 2, 9: 3, 13: 4, 17: 5, 22: 6, 26: 7, 30: 8}
    def b_start(t):
        if t in bar_b:
            s = bar_b[t]
            tags = [f's{s}'] + (['pa'] if s == 3 else [])
            a(f's_waitcnt vmcnt({vm.wait_for(*tags)})')
            if s == 3:
                spin_check(a, VPOLL, 4, VPA, RWS, '0', 'f1a')
            a('s_barrier')
            assert not pend
            if s + 2 in bsl:
                pend.extend((f's{s+2}', g) for g in dma_b(s + 2))
            elif s == 3:
                a(f'buffer_load_dwordx4 {vr(QA,4)}, v{RA}, {sr(RWS,4)}, s41 offen {SC}')
                a(f'buffer_load_dwordx4 {vr(QA+4,4)}, v{RA}, {sr(RWS,4)}, s41 offen offset:1024 {SC}')
                vm.add('s5', 2)
                d = dma_tile(R1, 47, 0, 0, voff=VA0, soff_s='0') + dma_tile(R1, 47, 16384, 0, voff=VA0+1, soff_s='0')
                pend.extend(('s5', d[2*i] + d[2*i+1]) for i in range(4))
            elif s == 4:
                pend.extend(('s6', g) for g in dma_tile(R1, 47, 32768, 0, voff=VA0+2, soff_s='0'))
            elif s == 7:
                pend.extend(('wo', g) for g in dma_wo(R0, WA_SLOT[1], 1))
            elif s == 8:
                pend.extend(('wo', g) for g in dma_wo(R0, WA_SLOT[3], 3))
        if t == opt.get('oa_flag_t', 32):
            a(f's_waitcnt vmcnt({vm.wait_for("oa")})')
            flag_store(a, VONE, VZERO, 's51')
            vm.add('fl')
    def b_slot(t):
        if t == 7:
            a(f'buffer_load_dwordx4 {vr(VPOLL,4)}, v{VPA}, {sr(RWS,4)}, 0 offen {SC}')
            vm.add('pa')
        if pend:
            tag, g = pend.pop(0)
            for x in g: a(x)
            vm.add(tag, sum('buffer_load' in x for x in g))
        if t == 35:
            a(f'buffer_load_dwordx4 {vr(VPOLL,4)}, v{VZERO}, {sr(RWS,4)}, s7 offen {SC}')
            vm.add('p2')
    def b_end(t):
        if t == 18:
            set_shift(a, Sb(20), QA, VSAV+2, vr(CD, 16), Kb(20))
        if t == 29:
            a('s_nop 2')
            a('s_mov_b32 s59, 0')
            check(a, OA, True, 59)
            a('s_cmp_lg_u32 s60, 0')
            a('s_cselect_b32 s59, 0, s59')
            a('s_or_b32 s58, s58, s59')
            a('s_or_b32 s59, s59, s63')
            a('s_cselect_b32 s50, 0x40000000, s43')
            a('s_cselect_b32 s51, 0x40000000, s45')
            a('s_cselect_b32 s63, s63, 1')
            finalize_calc(a, OA, -1)
            finalize_store(a, 50)
            vm.add('oa', 2)
    def cin_b(t):
        if t == 20: return vr(CD, 16)
        if t == 28: return vr(CE, 16)
        return '0'
    isA = lambda t: 20 <= t < 29
    pipeline(a, 37, rd_b, lambda t: QA if isA(t) else QB, lambda t: OA if isA(t) else OB, cin_b, b_start, b_slot, b_end, 'b')
    a(f'v_add_u32 v7, {COMB}, v{VD}')
    p3_bases(a)
    check(a, OB, False)
    for i in range(4):
        a(f'ds_write_b128 v7, {vr(OB+4*i,4)} offset:{i*1024}')
    fbflag_publish(a)
    a('s_waitcnt vmcnt(0) lgkmcnt(0)')
    a('s_barrier')
    a(f'v_mov_b32 v2, {FBFLAG}')
    a('ds_read_b32 v3, v2')
    mksrd(a, R0, P_BWO, 448*896)
    a('s_waitcnt lgkmcnt(0)')
    a('v_readfirstlane_b32 s59, v3')
    a('s_nop 3')
    a('s_andn2_b32 s59, s59, s60')
    a('s_cbranch_scc1 L_b_fallback')
    a('s_cmp_ge_u32 s38, 28')
    a('s_cbranch_scc1 L_exit')
    spin_check(a, VPOLL, 4, VZERO, RWS, 's7', 'f2a_b')
    vm = VM()
    p3_oloads(a, 6)
    vm.add('oa', 8)
    for kq in range(4):
        for g in dma_wo(R0, WB_SLOT[kq], kq):
            for x in g: a(x)
    vm.add('wb', 16)
    p3_main(a, vm)

    a.label('L_b_fallback')
    a('s_mov_b32 s60, 1')
    mksrd(a, R0, P_AWO, 448*896)
    true_max_B(a)
    a('s_mov_b32 exec_lo, 0')
    a(f'v_mov_b64 {vr(QA+6,2)}, 0')
    a('s_mov_b32 exec_lo, -1')
    for i in range(16):
        a(f'v_mov_b32 v{Sb(1)+i}, {NEGBIG}')
    for i in range(9):
        skip = a.new('fbA')
        a(f's_cmp_lt_u32 s40, {i}')
        a(f's_cbranch_scc1 {skip}')
        a(f's_sub_u32 s48, s40, {i}')
        a('s_lshl_b32 s48, s48, 12')
        a(f'buffer_load_dwordx4 {vr(K0,4)}, v{RA}, {sr(R1,4)}, s48 offen {SC}')
        a(f'buffer_load_dwordx4 {vr(K0+4,4)}, v{RA}, {sr(R1,4)}, s48 offen offset:1024 {SC}')
        a('s_waitcnt vmcnt(0)')
        qk(a, Sb(0), K0, QA, cin_b(20 + i), 0)
        qk(a, Sb(0), K0, QA, None, 1)
        a('s_nop 15')
        for r in range(16):
            a(f'v_max_f32 v{Sb(1)+r}, v{Sb(1)+r}, v{Sb(0)+r}')
        a.label(skip)
    split3(a, Sb(1), VSAV+2)
    a('s_sub_u32 s46, 65536 + 3*4096, s39')
    a(f'v_add_u32 v{RBA}, s46, v{RA}')
    a(f'v_add_u32 v{RB0}, 65536, v{RA}')
    a(f'v_add_u32 v{RB1}, 131072, v{RA}')
    a(f'v_add_u32 v{VD}, s39, v{RA}')
    a('s_barrier')
    a('s_branch L_b_restart')

    a.label('L_consumer')
    a('v_and_b32 v3, 31, v1')
    a('v_lshrrev_b32 v4, 5, v1')
    a('v_bfe_u32 v5, v3, 1, 3')
    a('v_xor_b32 v5, v5, v4')
    a('s_lshl_b32 s40, s34, 12')
    a('v_lshlrev_b32 v6, 7, v3')
    a('v_add_u32 v6, s40, v6')
    for ks in range(4):
        a(f'v_xor_b32 v7, {2*ks}, v5')
        a(f'v_lshl_add_u32 v{XR[ks]}, v7, 4, v6')
    a('v_bfe_u32 v5, v1, 2, 2')
    a('v_lshl_add_u32 v5, v4, 3, v5')
    a('v_mul_u32_u24 v5, 192, v5')
    a('v_bfe_u32 v6, v1, 4, 1')
    a('v_lshl_add_u32 v5, v6, 5, v5')
    a('v_and_b32 v6, 3, v1')
    a('v_lshl_add_u32 v5, v6, 3, v5')
    a(f's_add_u32 s40, s37, {WRING}')
    a(f'v_add_u32 v{WRB}, s40, v5')
    a(f's_add_u32 s40, s39, {WRING}')
    a(f'v_add_u32 v{WRA}, s40, v5')
    a(f'v_lshlrev_b32 v{VL16}, 4, v1')
    a('v_and_b32 v5, 0x33, v1')
    a('v_bfe_u32 v6, v1, 2, 1')
    a('v_lshl_add_u32 v5, v6, 3, v5')
    a('v_bfe_u32 v6, v1, 3, 1')
    a('v_lshl_add_u32 v5, v6, 2, v5')
    a(f'v_lshlrev_b32 v{VT16}, 4, v5')
    a('v_cmp_eq_u32 vcc, 28, v3')
    a('v_mov_b32 v5, 0x3f803f80')
    a(f'v_subrev_u32 v{WRE}, {WRING - WE}, v{WRA}')
    a(f'v_cndmask_b32 v{VPAD}, 0, v5, vcc')
    a(f's_mov_b32 s50, {f32bits(CSCALE)}')
    a(f's_mov_b32 s51, {f32bits(CSCALE)}')
    a(f'v_mov_b64 {vr(VGO,2)}, 0')
    a(f'v_mov_b64 {vr(VGO+2,2)}, 0')
    a('s_lshl_b32 s40, s32, 2')
    a('s_add_u32 s40, s40, s34')
    a('s_lshl_b32 s41, s62, 6')
    a('s_add_u32 s41, s41, s40')
    a('s_lshl_b32 s41, s41, 2')
    a(f's_add_u32 s3, s41, {WS_F1}')
    a('s_lshl_b32 s41, s33, 6')
    a('s_add_u32 s41, s41, s40')
    a('s_lshl_b32 s41, s41, 2')
    a(f's_add_u32 s52, s41, {WS_F1 + 4096}')
    a('s_or_b32 s53, s2, s34')
    a('s_waitcnt lgkmcnt(0)')
    stamp(a, 1)
    mksrd(a, RWS, P_WS, WS_END)
    mksrd(a, R3, P_DBG, 256)
    a('s_cmp_lg_u32 s53, 0')
    a('s_cbranch_scc1 L_nozero')
    a(f's_mov_b32 s40, {WS_F1}')
    for i in range(16):
        if i and i % 4 == 0:
            a('s_add_u32 s40, s40, 4096')
        a(f'buffer_store_dwordx4 {vr(VGO,4)}, v{VL16}, {sr(RWS,4)}, s40 offen offset:{(i%4)*1024} {SC}')
    a.label('L_nozero')
    a('s_nop 1')
    a(f'v_mov_b32 v{VGO+2}, 1')
    dispatch(a, 33, 'P1B')
    def hookB(n, i):
        if (n, i) == (6, 2):
            sk = a.new('nogo')
            a('s_cmp_lg_u32 s53, 0')
            a(f's_cbranch_scc1 {sk}')
            a('s_waitcnt vmcnt(0)')
            a('s_mov_b64 exec, 1')
            a(f'buffer_store_dword v{VGO+2}, v{VGO+1}, {sr(R3,4)}, 0 offen {SC}')
            a('s_mov_b64 exec, -1')
            a.label(sk)
        if (n, i) == (22, 2):
            a(f'buffer_load_dword v{VGO}, v{VGO+1}, {sr(R3,4)}, 0 offen {SC}')
    def hookA(n, i):
        if (n, i) == (opt.get('nf', 8), 2):
            a('s_waitcnt vmcnt(0)')
            spin_check(a, VGO, 1, VGO+1, R3, '0', 'go_a')
            flag_store(a, VGO+2, VGO+1, 's52')
            stamp(a, 3)
    for var in VARIANTS:
        a.label(f'P1B_{var}')
        store_offsets(a, var, 33, 1)
        prefill(a, var)
        a('s_barrier')
        first_reads(a, False)
        gemm_pass(a, var, False, hookB)
        stamp(a, 2)
        p1_epilogue(a, var)
        a('s_barrier')
        first_reads(a, True)
        dispatch(a, 62, 'P1A')
    for var in VARIANTS:
        a.label(f'P1A_{var}')
        store_offsets(a, var, 62, 0)
        prefill(a, var)
        gemm_pass(a, var, True, hookA)
        p1_epilogue(a, var)
        if var != VARIANTS[-1]:
            a('s_branch L_a_attn')
    a.label('L_a_attn')
    stamp(a, 4)
    p2_scalars(a)
    p3_setup(a)
    a.label('L_a_restart')
    vm = VM()
    vm.add('st', 6)
    a('s_mov_b32 s58, 0')
    a(f'v_mov_b32 v2, {FBFLAG}')
    a(f'ds_write_b32 v2, v{VZERO}')
    zero16(a, OB)
    a('s_lshr_b32 s46, s39, 1')
    a(f'v_add_u32 v2, s46, v{RA}')
    a('v_and_b32 v3, 31, v1')
    a('s_lshl_b32 s46, s35, 7')
    a(f's_add_u32 s46, s46, {ZBUF}')
    a('v_lshl_add_u32 v3, v3, 2, s46')
    a('s_waitcnt lgkmcnt(0)')
    a('s_barrier')
    stamp(a, 5)
    rd_a = lambda t: (RA, ((t//4) % 4)*16384 + (t % 4)*4096)
    a(f'ds_read_b128 {vr(QB,4)}, v2 offset:{QBUF}')
    a(f'ds_read_b128 {vr(QB+4,4)}, v2 offset:{QBUF+1024}')
    a(f'ds_read_b32 v{VZ}, v3')
    initial_reads(rd_a)
    for g in dma_a(2):
        for x in g: a(x)
    vm.add('s2', 4)
    a('s_waitcnt lgkmcnt(10)')
    set_shift(a, Sb(0), QB, VSAV, '0', Kb(0))
    pend = []
    def a_start(t):
        if t % 4 == 1 and t <= 29:
            s = (t + 3)//4
            if s >= 2:
                a(f's_waitcnt vmcnt({vm.wait_for(f"s{s}")})')
            a('s_barrier')
            assert not pend
            if s + 2 <= 8:
                pend.extend((f's{s+2}', g) for g in dma_a(s + 2))
            else:
                kq = 0 if s == 7 else 2
                pend.extend(('wo', g) for g in dma_wo(R0, WA_SLOT[kq], kq))
        if t == opt.get('a_flag_t', 3):
            a(f's_waitcnt vmcnt({vm.wait_for("st")})')
            flag_store(a, VONE, VZERO, 's3')
            vm.add('fl')
    def a_slot(t):
        if pend:
            tag, g = pend.pop(0)
            for x in g: a(x)
            vm.add(tag, 1)
        if t == 35:
            a(f'buffer_load_dwordx4 {vr(VPOLL,4)}, v{VZERO}, {sr(RWS,4)}, s7 offen {SC}')
            vm.add('p2')
    pipeline(a, 36, rd_a, lambda t: QB, lambda t: OB, lambda t: '0', a_start, a_slot, lambda t: None, 'a')
    a(f'v_add_u32 v7, {COMB}, v{VD}')
    p3_bases(a)
    check(a, OB, True)
    fbflag_publish(a)
    a('s_waitcnt vmcnt(0) lgkmcnt(0)')
    a('s_barrier')
    a(f'v_mov_b32 v2, {FBFLAG}')
    a('ds_read_b32 v6, v2')
    for i in range(4):
        a(f'ds_read_b128 {vr(Sb(1)+4*i,4)}, v7 offset:{i*1024}')
    a('s_add_u32 s45, s45, 64')
    a('s_waitcnt lgkmcnt(0)')
    a('v_readfirstlane_b32 s59, v6')
    for r in range(0, 16, 2):
        a(f'v_pk_add_f32 {vr(OB+r,2)}, {vr(OB+r,2)}, {vr(Sb(1)+r,2)}')
    a('s_andn2_b32 s59, s59, s60')
    a('s_cbranch_scc1 L_a_fallback')
    finalize_calc(a, OB, +1)
    finalize_store(a, 44)
    a(f'v_min_u32 v2, v{VPOLL}, v{VPOLL+1}')
    a(f'v_min3_u32 v2, v2, v{VPOLL+2}, v{VPOLL+3}')
    a('v_cmp_eq_u32 vcc, 0, v2')
    a('s_cmp_ge_u32 s38, 28')
    a('s_cselect_b64 vcc, -1, vcc')
    a('s_cbranch_vccz L_a_fast')
    a('s_waitcnt vmcnt(0)')
    flag_store(a, VONE, VZERO, 's45')
    a('s_cmp_ge_u32 s38, 28')
    a('s_cbranch_scc1 L_exit')
    spin_check(a, VPOLL, 4, VZERO, RWS, 's7', 'f2a_a')
    a.label('L_a_fast')
    vm = VM()
    p3_oloads(a, 6)
    vm.add('oa', 8)
    a('s_waitcnt vmcnt(8)')
    flag_store(a, VONE, VZERO, 's45')
    vm.add('fl')
    p3_main(a, vm)

    a.label('L_a_fallback')
    a('s_mov_b32 s60, 1')
    a('s_sub_u32 s45, s45, 64')
    true_max_B(a)
    a(f'v_add_u32 v{VD}, s39, v{RA}')
    a('s_barrier')
    a('s_branch L_a_restart')

    a.label('L_exit')
    dump_stamps(a, 0)
    a.label('L_done')
    a('s_endpgm')
    return 248

def build(path, **opt):
    a = Asm()
    hdr = open('cdna_kernels/' + NAME + '.s.ref').read().split('\n')
    head = [l for l in hdr if l.startswith(';') and '@launch' not in l]
    out = '\n'.join(head) + '\n'
    out += f'; @launch grid=(256,1,1) block=(512,1,1) lds={LDS_SIZE}\n'
    out += '.amdgcn_target "amdgcn-amd-amdhsa--gfx950"\n.text\n'
    v = gen(a, NAME + '_kernel', opt)
    out += a.text()
    out += '.section .rodata,"a"\n.p2align 6\n'
    out += kernel_desc(NAME + '_kernel', v, 102)
    open(path, 'w').write(out)

if __name__ == '__main__':
    build('f1.s')
    common.DIAG = True
    build('f1d.s')
```

```python
import math

NAME = 'gated_mix__sliding_block__softmax_full_mha__prompt'

WS_KV = 0
WS_Q = 8 << 20
WS_O = 12 << 20
WS_Z = 16 << 20
WS_STAMP = 17 << 20
WS_END = 21 << 20
DIAG = False

CSCALE = math.log2(math.e) / math.sqrt(28.0)

def f32bits(x):
    import struct
    return struct.unpack('<I', struct.pack('<f', x))[0]

class Asm:
    def __init__(self):
        self.lines = []
        self.uid = 0
    def __call__(self, s):
        for l in s.split('\n'):
            l = l.strip()
            if not l:
                continue
            if l.endswith(':') or l.startswith('.'):
                self.lines.append(l)
            else:
                self.lines.append('    ' + l)
    def c(self, s):
        self.lines.append('    ; ' + s)
    def label(self, s):
        self.lines.append(s + ':')
    def new(self, base):
        self.uid += 1
        return f'{base}_{self.uid}'
    def text(self):
        return '\n'.join(self.lines) + '\n'

def vr(b, n=1):
    return f'v{b}' if n == 1 else f'v[{b}:{b+n-1}]'
def sr(b, n=1):
    return f's{b}' if n == 1 else f's[{b}:{b+n-1}]'

def kernel_header(a, label):
    a(f'.globl {label}')
    a('.p2align 8')
    a(f'.type {label},@function')
    a.label(label)

def kernel_desc(label, vgpr, sgpr=100):
    acc = (vgpr + 3) // 4 * 4
    return f'''.amdhsa_kernel {label}
  .amdhsa_next_free_vgpr {vgpr}
  .amdhsa_next_free_sgpr {sgpr}
  .amdhsa_accum_offset {acc}
  .amdhsa_group_segment_fixed_size 0
  .amdhsa_kernarg_size 80
  .amdhsa_user_sgpr_count 2
  .amdhsa_user_sgpr_kernarg_segment_ptr 1
  .amdhsa_system_sgpr_workgroup_id_x 1
.end_amdhsa_kernel
'''

def srd(a, d, base_lo, base_hi, nbytes):
    a(f's_mov_b32 s{d}, s{base_lo}')
    a(f's_and_b32 s{d+1}, s{base_hi}, 0xffff')
    a(f's_mov_b32 s{d+2}, {nbytes}')
    a(f's_mov_b32 s{d+3}, 0x20000')

import common as _c
STAMPS = None
def stamp(a, i):
    if _c.DIAG:
        if _c.STAMPS is not None:
            if i not in _c.STAMPS: return
            i = _c.STAMPS.index(i) + 1
        elif not isinstance(i, int): return
        a(f's_memrealtime s[{72+2*i}:{73+2*i}]')
def stamp_init(a):
    if _c.DIAG:
        a('s_memrealtime s[72:73]')
        for i in (range(74, 96, 4) if _c.STAMPS else ()):
            a(f's_mov_b64 s[{i}:{i+1}], 0')
            a(f's_mov_b64 s[{i+2}:{i+3}], 0') if i + 2 < 96 else None
def dump_stamps(a, kidx, wave_s=34, wave_add=0):
    if not _c.DIAG:
        return
    a('s_waitcnt vmcnt(0)')
    a('s_memrealtime s[90:91]')
    a('s_mov_b64 exec, -1')
    a('s_lshl_b32 s70, s2, 3')
    a(f's_add_u32 s70, s70, s{wave_s}')
    a(f's_add_u32 s70, s70, {wave_add}')
    a('s_lshl_b32 s70, s70, 6')
    a(f's_add_u32 s70, s70, {WS_STAMP + kidx*(256<<10)}')
    a('s_waitcnt lgkmcnt(0)')
    a('v_mov_b32 v0, 0')
    a('s_mov_b64 exec, 1')
    for i in (range(10) if _c.STAMPS else (0, 9)):
        a(f'v_mov_b32 v1, s{72+2*i}')
        a(f'buffer_store_dword v1, v0, s[28:31], s70 offen offset:{4*i} sc1')
        a('s_nop 1')
    if not _c.STAMPS: return
    a('s_getreg_b32 s71, hwreg(HW_REG_XCC_ID)')
    a('v_mov_b32 v1, s71')
    a('buffer_store_dword v1, v0, s[28:31], s70 offen offset:40')
    a('s_sub_u32 s71, s94, s92')
    a('s_nop 1')
    a('v_mov_b32 v1, s71')
    a('buffer_store_dword v1, v0, s[28:31], s70 offen offset:44')

def cstamp(a, i):
    if _c.DIAG:
        a(f's_memtime s[{92+2*i}:{93+2*i}]')
```

```python
import sys
from common import *
import common

WS_F1 = 20 << 20
WS_F2 = WS_F1 + 262144
NONCE = 100
XRING = 0
WE = 65536
WRING = 98304
GATE = 159744
ZBUF = 161792
FBFLAG = 162304
LDS_SIZE = 163840
QBUF = 32768
COMB = 65536
W1_SLOT = [147456, 16384, 32768, 81920]
W2_SLOT = [98304, 49152, 0, 65536]

VARIANTS = ['QQQ', 'QKK', 'KKK', 'KKV', 'VVV']
SC = 'sc1'
SPIN_LIMIT = 1 << 16
SLEEP2 = 2
FULLFLAG = 1

P_X, P_AW, P_AWO, P_BW, P_BWO, P_G, P_OUT, P_DBG, P_WS = 4, 6, 8, 12, 14, 16, 18, 20, 22
R0, RWS, R1, R2, R3 = 24, 28, 64, 68, 96

def mksrd(a, d, p, nbytes):
    srd(a, d, p, p+1, nbytes)

def dispatch(a, sreg, prefix):
    a(f's_cmp_lt_u32 s{sreg}, 5')
    a(f's_cbranch_scc1 {prefix}_QQQ')
    a(f's_cmp_eq_u32 s{sreg}, 5')
    a(f's_cbranch_scc1 {prefix}_QKK')
    a(f's_cmp_lt_u32 s{sreg}, 10')
    a(f's_cbranch_scc1 {prefix}_KKK')
    a(f's_cmp_eq_u32 s{sreg}, 10')
    a(f's_cbranch_scc1 {prefix}_KKV')
    a(f's_branch {prefix}_VVV')

def window(a, cb_s, ws0_s, co_s, t):
    a(f's_mul_i32 s{ws0_s}, s{cb_s}, 168')
    a(f's_and_b32 s{co_s}, s{ws0_s}, 15')
    a(f's_sub_u32 s{ws0_s}, s{ws0_s}, s{co_s}')

def wslot(g):
    if g < 7: return WRING + (g % 5)*12288
    return {7: WE, 8: WE + 12288, 9: WRING + 2*12288, 10: 0, 11: WRING + 3*12288, 12: 49152, 13: WRING + 4*12288}[g]

def spin_mask(a, vdata, vaddr, soff, name, sleep, loaded=False, need=None):
    ok, lp = a.new(name + '_ok'), a.new(name + '_lp')
    a(f's_mov_b32 s61, {SPIN_LIMIT}')
    if not loaded:
        a(f'buffer_load_dwordx2 {vr(vdata,2)}, v{vaddr}, {sr(RWS,4)}, {soff} offen {SC}')
        a('s_waitcnt vmcnt(0)')
        stamp(a, 'poll0')
    a.label(lp)
    a(f'v_cmp_ne_u64 vcc, {sr(NONCE,2)}, {vr(vdata,2)}')
    a('s_sub_u32 s61, s61, 1')
    a('s_cselect_b64 vcc, 0, vcc')
    if need is None:
        a(f's_cbranch_vccz {ok}')
    else:
        a(f's_and_b32 s46, vcc_lo, {need}')
        a('s_or_b32 s46, s46, vcc_hi')
        a(f's_cbranch_scc0 {ok}')
    a('s_mov_b64 exec, vcc')
    if sleep: a(f's_sleep {sleep}')
    a(f'buffer_load_dwordx2 {vr(vdata,2)}, v{vaddr}, {sr(RWS,4)}, {soff} offen {SC}')
    a('s_waitcnt vmcnt(0)')
    a(f's_branch {lp}')
    a.label(ok)
    a('s_mov_b64 exec, -1')

def get_nonce(a, vdata, name):
    ok, lp = a.new(name + '_ok'), a.new(name + '_lp')
    a(f's_mov_b32 s61, {SPIN_LIMIT}')
    a.label(lp)
    a(f'v_cmp_eq_u32 vcc, 0, v{vdata}')
    a('s_sub_u32 s61, s61, 1')
    a('s_cselect_b64 vcc, 0, vcc')
    a(f's_cbranch_vccz {ok}')
    a('s_sleep 8')
    a(f'buffer_load_dwordx2 {vr(vdata,2)}, off, {sr(R3,4)}, 0 {SC}')
    a('s_waitcnt vmcnt(0)')
    a(f's_branch {lp}')
    a.label(ok)
    a(f'v_readfirstlane_b32 s{NONCE}, v{vdata}')
    a(f'v_readfirstlane_b32 s{NONCE+1}, v{vdata+1}')
    a('s_nop 1')

XR = [8, 9]
WRB, WRA, WRE, WRL = 12, 13, 6, 5
VST, VPAD = 14, 7
WB = [16, 24, 32, 40]
PK = 52
ACC = 80
XF = 128
VGO = 76
VGA = 79
ZD = 240
ZG = [24+8, 24+12, 40, 44]
NZ1 = 10
WP = 176
NU = 42

XP = {}
REORD = [1]
def sub(u):
    if REORD[0] and u >= 36:
        return 12 + (u - 36) % 2, (u - 36)//2
    return u//3, u % 3

def group(isA, u):
    if u >= NU: return []
    N, i = sub(u)
    g = (7 if isA else 0) + N//2
    if g < 7: base, off = WRB, wslot(g) - WRING
    elif g < 9: base, off = WRE, wslot(g) - WE
    elif g in (10, 12): base, off = WRL, wslot(g)
    else: base, off = WRA, wslot(g) - WRING
    L = []
    if not isA and i == 0:
        for st in range(2):
            L.append(f'ds_read_b128 {vr(XF+8*N+4*st,4)}, v{XR[N%2]} offset:{XRING + ((N//2)%4)*16384 + st*2048}')
    for dt in range(2):
        for e in range(2):
            L.append(f'ds_read_b64_tr_b16 {vr(WB[u%4]+4*dt+2*e,2)}, v{base} offset:{off + (N%2)*32*WP + e*WP + i*56 + dt*32}')
    if not isA and i == 2 and N < NZ1:
        L.append(f'ds_read_b128 {vr(XF+8*(N+4),4)}, v{VGA} offset:{N*64}')
    return L

def first_reads(a, isA):
    for u in range(3):
        for x in group(isA, u): a(x)

def zmfma(a, N, greg):
    for st in range(2):
        a(f'v_mfma_f32_16x16x32_bf16 {vr(ZD+4*st,4)}, {vr(greg,4)}, {vr(XF+8*N+4*st,4)}, {"0" if N == 0 else vr(ZD+4*st,4)}')

P1_BARS = [0, 1, 2, 3, 4, 5, 6, 7, 10, 12]
def gemm_pass(a, var, isA, hook, epi):
    pend = []
    for u in range(NU):
        N, i = sub(u)
        nx = list(group(isA, u+3))
        young = len(group(isA, u+1)) + len(group(isA, u+2))
        a(f's_waitcnt lgkmcnt({young})')
        if young + len(nx) > 15:
            nx[-1] = 's_waitcnt lgkmcnt(14)\n' + nx[-1]
        if u + 3 < NU and (u+3) % 6 == 0:
            g = (7 if isA else 0) + (u+3)//6
            if g in P1_BARS:
                stamp(a, f'g{g}')
                a('s_barrier')
                stamp(a, f'h{g}')
        if REORD[0] and u in (39, 41):
            pend += epi[(u - 39)//2]
        cut = {0: [0, 0, 0, 0, 0], 4: [0, 1, 2, 3, 4], 5: [0, 2, 3, 4, 5], 6: [0, 2, 4, 5, 6]}[len(nx)]
        for q, (dt, st) in enumerate(((0, 0), (0, 1), (1, 0), (1, 1))):
            xf = vr(XF+8*N+4*st, 4); wf = vr(WB[u%4]+4*dt, 4)
            if var[i] == 'V':
                d = vr(ACC+16*i+8*dt+4*st, 4)
                a(f'v_mfma_f32_16x16x32_bf16 {d}, {xf}, {wf}, {"0" if N == 0 else d}')
            else:
                d = vr(ACC+16*i+8*st+4*dt, 4)
                a(f'v_mfma_f32_16x16x32_bf16 {d}, {wf}, {xf}, {"0" if N == 0 else d}')
            for x in nx[cut[q]:cut[q+1]]: a(x)
            k = 0
            while pend and k < EPIW[0]:
                g = pend.pop(0)
                for x in g: a(x)
                k += len(g)
            if u == 40 and q == 3: a('s_nop 1')
        if i == 2 and not isA and N < NZ1:
            zmfma(a, N, XF+8*(N+4))
        hook(u)
    stamp(a, 'endA0' if isA else 'endB')
    if REORD[0] and sum(len(g) for g in pend) < 8:
        a('s_nop 7')
    for g in pend + sum(epi[(2 if REORD[0] else 0):], []):
        for x in g: a(x)
EPIW = [2]

SOFF = [47, 59, 16]
SOFFB = [54, 55, 17]
def store_offsets(a, var, cb_s, br):
    SOFF = SOFFB if br else globals()['SOFF']
    a(f's_mul_i32 s58, s{cb_s}, 3')
    for i in range(3):
        a(f's_add_u32 s61, s58, {i}')
        a('s_and_b32 s61, s61, 15')
        a('s_lshl_b32 s61, s61, 6')
        a('s_add_u32 s61, s61, s40')
        ty = var[i]
        if ty == 'Q':
            a(f's_lshl_b32 s61, s61, 11')
            a(f's_add_u32 s{SOFF[i]}, s61, {WS_Q + br*1024*2048}')
        else:
            a(f's_lshl_b32 s61, s61, 12')
            a(f's_add_u32 s{SOFF[i]}, s61, {br*1024*4096 + (2048 if ty == "V" else 0)}')

PKA = 192
def prefill(a, var, PK=PK):
    for i in range(3):
        p = PK + 8*i
        ty = var[i]
        if ty == 'V':
            for r in range(4, 8):
                a(f'v_mov_b32 v{p+r}, v{VPAD}')
        else:
            for st in range(2):
                a(f'v_mov_b32 v{p+4*st+2}, {"0" if ty == "Q" else "0x3f803f80"}')
                a(f'v_mov_b32 v{p+4*st+3}, {"0" if ty == "Q" else "0x3f80"}')

def tile_stores(a, p, va, soff, fl):
    a(f'buffer_store_dwordx4 {vr(p,4)}, v{va}, {sr(RWS,4)}, s{soff} offen {fl}')
    a(f'buffer_store_dwordx4 {vr(p+4,4)}, v{va}, {sr(RWS,4)}, s{soff} offen offset:256 {fl}')

def p1_epi(var, PK, stores):
    E = []
    for i in range(3):
        ty = var[i]
        d = ACC + 16*i; p = PK + 8*i
        cvt = lambda r: f'v_cvt_pk_bf16_f32 v{p+r}, v{d+2*r}, v{d+2*r+1}'
        G = []
        if ty == 'Q':
            if i == 2: G += [[f'v_pk_mul_f32 {vr(d+r,2)}, {vr(d+r,2)}, s[50:51]'] for r in range(0, 16, 2)]
            else: G += [[f'v_mul_f32 v{d+r}, s50, v{d+r}'] for r in range(16)]
        if ty == 'V':
            G += [[cvt(r)] for r in range(4)]
            G.append(['s_mov_b32 exec_lo, 0x0fff0fff', 's_mov_b32 exec_hi, 0x0fff0fff'] + [cvt(r) for r in range(4, 8)] + ['s_mov_b64 exec, -1'])
        else:
            G += [[cvt(r)] for r in (0, 1, 4, 5)]
            G.append(['s_mov_b32 exec_hi, 0xffff'] + [cvt(r) for r in (2, 3, 6, 7)] + ['s_mov_b32 exec_hi, -1'])
        if stores:
            G.append([f'buffer_store_dwordx4 {vr(p,4)}, v{VST}, {sr(RWS,4)}, s{SOFFB[i]} offen {SC}'])
            G.append([f'buffer_store_dwordx4 {vr(p+4,4)}, v{VST}, {sr(RWS,4)}, s{SOFFB[i]} offen offset:256 {SC}'])
        E.append(G)
    return E

def flag_prep(a, tmp, va=2):
    a(f'v_lshlrev_b32 v{va}, 3, v1')
    a(f'v_mov_b32 v{tmp}, s{NONCE}')
    a(f'v_mov_b32 v{tmp+1}, s{NONCE+1}')

def flag_fire(a, tmp, soff, va=2, one=False):
    a('s_mov_b64 exec, 1' if one else 's_mov_b64 exec, 0xffff')
    a(f'buffer_store_dwordx2 {vr(tmp,2)}, v{va}, {sr(RWS,4)}, {soff} offen {SC}')
    a('s_mov_b64 exec, -1')

def flag_store(a, tmp, soff):
    flag_prep(a, tmp)
    flag_fire(a, tmp, soff)

RA, RBA, RB0, RB1, VD, IDX, VZ, VWO = 8, 9, 10, 11, 12, 13, 14, 15
QB, QA, OB, OA, S0, K0, V0, CD, CE = 16, 24, 32, 48, 64, 128, 160, 192, 208
VA0 = 224
VSAV = 228
VPOLL = 232
VPA = 236
VZERO, VONE = 237, 227
VTAG = 238
VP2 = 234
VTMP = 240
KOF = {8: 248, 9: 249, 10: 250, 11: 251}
NEGBIG = 0xff000000
LOG2E = f32bits(math.log2(math.e))

PV = {}
def Sb(t): return S0 + 16*(t % 4)
def Kb(t): return K0 + 8*(t % 4)
def Vb(t): return V0 + 8*(t % 4)

def qk(a, d, k, q, cin, half):
    if PV.get('qk16') and PV.get('inpipe'):
        for u in range(2):
            a(f'v_mfma_f32_16x16x32_bf16 {vr(d+8*half+4*u,4)}, {vr(k+4*half,4)}, {vr(q+4*u,4)}, 0')
        return
    if half == 0:
        a(f'v_mfma_f32_32x32x16_bf16 {vr(d,16)}, {vr(k,4)}, {vr(q,4)}, {cin}')
    else:
        a(f'v_mfma_f32_32x32x16_bf16 {vr(d,16)}, {vr(k+4,4)}, {vr(q+4,4)}, {vr(d,16)}')

def rowmax(a, s, out, t1, t2):
    a(f'v_max3_f32 v{out}, v{s}, v{s+1}, v{s+2}')
    a(f'v_max3_f32 v{t1}, v{s+3}, v{s+4}, v{s+5}')
    a(f'v_max3_f32 v{out}, v{out}, v{s+6}, v{s+7}')
    a(f'v_max3_f32 v{t1}, v{t1}, v{s+8}, v{s+9}')
    a(f'v_max3_f32 v{out}, v{out}, v{s+10}, v{s+11}')
    a(f'v_max3_f32 v{t1}, v{t1}, v{s+12}, v{s+13}')
    a(f'v_max3_f32 v{out}, v{out}, v{s+14}, v{s+15}')
    a(f'v_max_f32 v{t1}, v{out}, v{t1}')
    a(f'v_mov_b32 v{t2}, v{t1}')
    a('s_nop 1')
    a(f'v_permlane32_swap_b32 v{t1}, v{t2}')
    a('s_nop 1')
    a(f'v_max_f32 v{out}, v{t1}, v{t2}')

def zero16(a, r):
    for i in range(0, 16, 2):
        a(f'v_mov_b64 {vr(r+i,2)}, 0')

KVF = ['sc1']
def dma_tile(srdn, m0base_s, m0imm, soff_imm, voff=VD, soff_s=None):
    L = []
    for f in range(4):
        g = []
        if f == 0:
            g.append(f's_add_u32 m0, s{m0base_s}, {m0imm}')
            g.append(f's_mov_b32 s48, {soff_imm}' if soff_s is None else 's_nop 0')
        so = 's48' if soff_s is None else soff_s
        g.append(f'buffer_load_dwordx4 v{voff}, {sr(srdn,4)}, {so} offen offset:{f*1024} {KVF[0]} lds')
        L.append(g)
    return L

XNOWO = []
def dma_wo(srdn, slot, kq):
    if XNOWO: return [['s_nop 0'] for i in range(4)]
    L = []
    for i in range(4):
        if i < 2:
            g = [f's_add_u32 m0, s39, {slot + i*1024}', f's_mov_b32 s48, {(kq*112 + 8*i)*896}']
        else:
            g = [f's_add_u32 m0, s62, {slot + i*1024}', f's_add_u32 s48, s49, {(kq*112 + 8*i)*896}']
        g.append(f'buffer_load_dwordx4 v{VWO}, {sr(srdn,4)}, s48 offen lds')
        L.append(g)
    return L

def set_shift(a, s, q, sav, cin, kreg, quick=0):
    l1, l2 = a.new('fbq'), a.new('fbq_e')
    a.c('row shift: maximum over one key tile, or the true row maximum on a rerun')
    a('s_cmp_lg_u32 s60, 0')
    a(f's_cbranch_scc1 {l1}')
    qk(a, s, kreg, q, cin, 0)
    qk(a, s, kreg, q, None, 1)
    a('s_nop 11')
    if quick:
        for k in range(5):
            a(f'v_max3_f32 v{s+3*k}, v{s+3*k}, v{s+3*k+1}, v{s+3*k+2}')
        a(f'v_max3_f32 v2, v{s}, v{s+3}, v{s+15}')
        a(f'v_max3_f32 v3, v{s+6}, v{s+9}, v{s+12}')
        a('v_max_f32 v2, v2, v3')
    else:
        rowmax(a, s, 2, 3, 4)
    a('s_mov_b32 exec_lo, 0')
    a(f'v_cvt_pk_bf16_f32 v{q+6}, -v2, 0')
    a('s_mov_b32 exec_lo, -1')
    a(f's_branch {l2}')
    a.label(l1)
    a('s_mov_b32 exec_lo, 0')
    a(f'v_mov_b64 {vr(q+6,2)}, {vr(sav,2)}')
    a('s_mov_b32 exec_lo, -1')
    a.label(l2)
    a('s_nop 1')

def check(a, o, lower, dst=58):
    a(f'v_cmp_nle_f32 s[52:53], v{o+12}, s56')
    if lower:
        a(f'v_cmp_nge_f32 s[54:55], v{o+12}, s57')
        a('s_or_b32 s53, s53, s55')
    a(f's_or_b32 s{dst}, s{dst}, s53')

VGF = 234
def gate_factor(a, sign):
    a(f'v_mul_f32 v{VGF}, {LOG2E if sign > 0 else (LOG2E ^ 0x80000000)}, v{VZ}')
    a(f'v_exp_f32 v{VGF}, v{VGF}')
    a(f'v_mov_b32 v{VTMP+6}, 0')
    a(f'v_mov_b32 v{VTMP+7}, 0')
    a(f'v_add_f32 v{VGF}, 1.0, v{VGF}')

def finalize(a, o, data_s, flag_s):
    a.c('row sums outside 2^-40..2^40 (or NaN) request a rerun with the true maxima; nothing is published then')
    a(f'v_mul_f32 v2, v{o+12}, v{VGF}')
    a(f'v_cmp_nle_f32 s[52:53], v{o+12}, s56')
    a('v_rcp_f32 v2, v2')
    a(f'v_cmp_nge_f32 s[54:55], v{o+12}, s57')
    a('v_mov_b32 v4, v2')
    a('s_or_b32 s58, s53, s55')
    a('s_cmp_lg_u32 s60, 0')
    a('v_permlane32_swap_b32 v2, v4')
    a('s_cselect_b32 s58, 0, s58')
    if PV.get('nofb'): a('s_mov_b32 s58, 0')
    a('s_or_b32 s46, s58, s63')
    p = VTMP
    for h in range(2):
        for r in range(8*h, 8*h + 8):
            a(f'v_mul_f32 v{o+r}, v{o+r}, v4')
        if h == 0:
            a(f's_cselect_b32 s50, 0x40000000, s{data_s}')
            a(f's_cselect_b32 s51, 0x40000000, s{flag_s}')
            a('s_cselect_b32 s63, s63, 1')
        for r in range(4*h, 4*h + 4):
            if r == 6: a('s_mov_b32 exec_hi, 0')
            a(f'v_cvt_pk_bf16_f32 v{p+r}, v{o+2*r}, v{o+2*r+1}')
        if h == 1: a('s_mov_b32 exec_hi, -1')
        a(f'buffer_store_dwordx4 {vr(p+4*h,4)}, v{RA}, {sr(RWS,4)}, s50 offen offset:{1024*h} {SC}')

def finalize_store(a, soff):
    p = VTMP
    a(f'buffer_store_dwordx4 {vr(p,4)}, v{RA}, {sr(RWS,4)}, s{soff} offen {SC}')
    a(f'buffer_store_dwordx4 {vr(p+4,4)}, v{RA}, {sr(RWS,4)}, s{soff} offen offset:1024 {SC}')

def fbflag_publish(a):
    skip = a.new('noflag')
    a('s_cmp_eq_u32 s58, 0')
    a(f's_cbranch_scc1 {skip}')
    a(f'v_mov_b32 v2, {FBFLAG}')
    a(f'ds_write_b32 v2, v{VONE}')
    a.label(skip)

def split3(a, s, sav):
    rowmax(a, s, 2, 3, 4)
    a('v_cvt_pk_bf16_f32 v3, -v2, 0')
    a('v_lshlrev_b32 v4, 16, v3')
    a('v_sub_f32 v2, -v2, v4')
    a('v_cvt_pk_bf16_f32 v5, v2, 0')
    a('v_lshlrev_b32 v4, 16, v5')
    a('v_sub_f32 v2, v2, v4')
    a(f'v_or_b32 v{sav}, v3, v4')
    a(f'v_cvt_pk_bf16_f32 v{sav+1}, v2, 0')

def true_max_B(a):
    a('s_mov_b32 exec_lo, 0')
    a(f'v_mov_b64 {vr(QB+6,2)}, 0')
    a('s_mov_b32 exec_lo, -1')
    for i in range(16):
        a(f'v_mov_b32 v{Sb(1)+i}, {NEGBIG}')
    a('s_mov_b32 s48, 0')
    lp = a.new('fbB')
    a.label(lp)
    a(f'buffer_load_dwordx4 {vr(K0,4)}, v{RA}, {sr(R2,4)}, s48 offen {SC}')
    a(f'buffer_load_dwordx4 {vr(K0+4,4)}, v{RA}, {sr(R2,4)}, s48 offen offset:1024 {SC}')
    a('s_waitcnt vmcnt(0)')
    qk(a, Sb(0), K0, QB, '0', 0)
    qk(a, Sb(0), K0, QB, None, 1)
    a('s_nop 15')
    for i in range(16):
        a(f'v_max_f32 v{Sb(1)+i}, v{Sb(1)+i}, v{Sb(0)+i}')
    a('s_add_u32 s48, s48, 4096')
    a(f's_cmp_lt_u32 s48, {64*4096}')
    a(f's_cbranch_scc1 {lp}')
    split3(a, Sb(1), VSAV)

class VM:
    def __init__(self): self.q = []
    def add(self, tag, n=1): self.q += [tag]*n
    def wait_for(self, *tags):
        last = max((i for i, t in enumerate(self.q) if t in tags), default=-1)
        n = len(self.q) - 1 - last
        self.q = self.q[last+1:]
        return n

def pipeline(a, N, rd_addr, qreg, oreg, cin, at_start, at_slot, at_end, name, fill):
    def rd(t, f):
        if t >= N: return
        if PV.get('halfrd') and f % 2 and 4 < t and not (name == 'b' and t >= 28): return
        base, off = rd_addr(t)
        dst = (Kb(t) + 4*f) if f < 2 else (Vb(t) + 4*(f-2))
        a(f'ds_read_b128 {vr(dst,4)}, v{KOF[base] if f < 2 else base} offset:{off + f*1024}')
    qk(a, Sb(0), Kb(0), qreg(0), cin(0), 0)
    qk(a, Sb(0), Kb(0), qreg(0), None, 1)
    fill()
    a('s_waitcnt lgkmcnt(8)')
    a('s_nop 1')
    mode = PV.get('slot', 0)
    PV['inpipe'] = 1
    def pv(o, v, sreg):
        if PV.get('dense'):
            for u in range(4):
                a(f'v_cvt_pk_bf16_f32 v{sreg+u}, v{sreg+2*u}, v{sreg+2*u+1}')
            a('s_nop 1')
            a(f'v_mfma_f32_32x32x16_bf16 {vr(o,16)}, {vr(v,4)}, {vr(sreg,4)}, {vr(o,16)}')
        else:
            a(f'v_smfmac_f32_32x32x32_bf16 {vr(o,16)}, {vr(v,4)}, {vr(sreg,8)}, v{IDX}')
    for t in range(N):
        a.c(f'--- {name} period {t}')
        stamp(a, f'p{t}')
        if t in (9, 17) and not XP and common.STAMPS: cstamp(a, 0 if t == 9 else 1)
        at_start(t)
        stamp(a, f'q{t}')
        n0 = len(a.lines)
        at_slot(t)
        slot = a.lines[n0:]
        del a.lines[n0:]
        pre = []
        if mode >= 1:
            while slot and slot[0].strip().startswith(('s_add', 's_mov', 's_nop')) and 'exec' not in slot[0]:
                pre.append(slot.pop(0))
        e = lambda i: a(f'v_exp_f32 v{Sb(t)+i}, v{Sb(t)+i}')
        if PV.get('exp16'): e = lambda i: a(f'v_exp_f16 v{Sb(t)+i}, v{Sb(t)+i}')
        if PV.get('expleg'): e = lambda i: a(f'v_exp_legacy_f32 v{Sb(t)+i}, v{Sb(t)+i}')
        if t + 1 < N:
            qk(a, Sb(t+1), Kb(t+1), qreg(t+1), cin(t+1), 0)
        if PV.get('prio') == 'alt':
            ae = PV.get('altend', 25)
            if t < ae: a(f's_setprio {(t + (name == "b")) % 2}')
            elif t == ae: a(f's_setprio {int(name == "b" and ae < 29)}')
            elif t == 29 and name == 'b': a('s_setprio 0')
        dec = PV.get('prio') == 'dec'
        ae = PV.get('altend', 25)
        lag = PV.get('lag', 0) if name == 'b' else PV.get('laga', 0)
        def setp(pos):
            if not dec: return
            if t < ae:
                k = (t - 1) % 4
                if pos == (0 if k == 0 else lag): a(f's_setprio {3 - k}')
            elif pos == 0:
                if t == ae: a(f's_setprio {int(name == "b" and ae < 29)}')
                elif t == 29 and name == 'b': a('s_setprio 0')
        setp(0)
        if PV.get('prio') == 'b' and t == 0 and name == 'b': a('s_setprio 1')
        if PV.get('prio') == 'alt2': a(f's_setprio {(t//2 + (name == "b")) % 2}')
        if mode == 3:
            a.lines.extend(pre[:1])
        rd(t+3, 0)
        if mode in (1, 2): a.lines.extend(pre[:1])
        if t == 0:
            a('s_nop 3')
        for i in range(0, 4): e(i)
        if t + 1 < N:
            qk(a, Sb(t+1), Kb(t+1), qreg(t+1), None, 1)
        setp(1)
        if mode == 3:
            a.lines.extend(pre[1:])
        rd(t+3, 1)
        if mode in (1, 2): a.lines.extend(pre[1:])
        for i in range(4, 8): e(i)
        if t >= 1:
            pv(oreg(t-1), Vb(t-1)+4, Sb(t-1)+8)
        setp(2)
        if t + 2 < N:
            a(f's_waitcnt lgkmcnt({2 + (2 if t + 3 < N else 0)})')
        elif t + 2 == N:
            a('s_waitcnt lgkmcnt(0)')
        rd(t+3, 2)
        early3 = mode == 4 or t in PV.get('early', (24, 28))
        if early3: rd(t+3, 3)
        for i in range(8, 12): e(i)
        pv(oreg(t), Vb(t), Sb(t))
        setp(3)
        if mode in (2, 3):
            a.lines.extend(slot)
            rd(t+3, 3)
        elif mode == 4:
            a.lines.extend(pre + slot)
        else:
            if not early3: rd(t+3, 3)
            a.lines.extend(slot)
        for i in range(12, 16): e(i)
        at_end(t)
    PV['inpipe'] = 0
    a('s_nop 1')
    t = N - 1
    a(f'v_smfmac_f32_32x32x32_bf16 {vr(oreg(t),16)}, {vr(Vb(t)+4,4)}, {vr(Sb(t)+8,8)}, v{IDX}')

PACK = [0]
def p2_scalars(a):
    a('s_lshl_b32 s39, s35, 12')
    a('s_lshl_b32 s40, s32, 2')
    a('s_add_u32 s40, s40, s35')
    a('s_mov_b32 s60, 0')
    a('s_lshl_b32 s41, s33, 6')
    a('s_add_u32 s41, s41, s40')
    a('s_lshl_b32 s41, s41, 11')
    a(f's_add_u32 s41, s41, {WS_Q}')
    a(f's_add_u32 s42, s41, {16*64*2048}')
    a('s_lshl_b32 s45, s40, 5')
    a('s_add_u32 s45, s45, s33')
    a('s_lshl_b32 s43, s45, 11')
    a(f's_add_u32 s43, s43, {WS_O}')
    a(f's_add_u32 s44, s43, {16*2048}')
    if PACK[0]:
        g = PACK[0]
        a(f's_and_b32 s46, s45, {g-1}')
        a(f's_andn2_b32 s45, s45, {g-1}')
        a('s_lshl_b32 s45, s45, 7')
        a('s_lshl3_add_u32 s45, s46, s45')
    else:
        a('s_lshl_b32 s45, s45, 7')
    a(f's_add_u32 s45, s45, {WS_F2}')
    a(f's_mov_b32 s56, {f32bits(2.0**40)}')
    a(f's_mov_b32 s57, {f32bits(2.0**-40)}')
    a('s_lshr_b32 s38, s2, 3')
    a('s_mul_i32 s36, s38, 37')
    a('s_lshr_b32 s36, s36, 8')
    a('s_mul_i32 s37, s36, 7')
    a('s_sub_u32 s37, s38, s37')
    a('s_and_b32 s46, s2, 1')
    a('s_lshl_b32 s46, s46, 4')
    a('s_add_u32 s36, s36, s46')
    a('s_and_b32 s46, s2, 6')
    a('s_lshl_b32 s46, s46, 1')
    a('s_add_u32 s36, s36, s46')
    a('s_cmp_eq_u32 s35, 3')
    a(f's_cselect_b32 s49, {-16*896 & 0xffffffff}, 0')

def p2_srds(a):
    a('s_lshl_b32 s46, s33, 18')
    a(f's_add_u32 s10, s{P_WS}, s46')
    a(f's_addc_u32 s11, s{P_WS+1}, 0')
    srd(a, R1, 10, 11, 262144)
    a(f's_add_u32 s10, s10, {16*262144}')
    a('s_addc_u32 s11, s11, 0')
    srd(a, R2, 10, 11, 262144)
    mksrd(a, R0, P_BWO, 448*896)

def p2_vec1(a):
    a('s_min_u32 s62, s39, 10240')
    a(f'v_lshlrev_b32 v{RA}, 4, v1')
    a(f'v_mov_b32 v{IDX}, 0xdddddddd')
    a(f'v_add_u32 v{VD}, s39, v{RA}')
    a(f'v_mov_b32 v{VZERO}, 0')
    a(f'v_mov_b32 v{VONE}, 1')
    a('v_and_b32 v2, 0x23, v1')
    a('v_bfe_u32 v3, v1, 2, 1')
    a('v_lshl_add_u32 v2, v3, 4, v2')
    a('v_bfe_u32 v3, v1, 3, 2')
    a('v_lshl_add_u32 v2, v3, 2, v2')
    a(f'v_lshlrev_b32 v{KOF[RA]}, 4, v2')

def p2_vec2(a):
    a('v_lshrrev_b32 v3, 3, v1')
    a('s_lshl_b32 s46, s35, 5')
    a('v_add_u32 v3, s46, v3')
    a('v_mul_u32_u24 v3, 896, v3')
    a('v_and_b32 v4, 7, v1')
    a('v_bfe_u32 v5, v1, 4, 1')
    a('v_lshlrev_b32 v5, 2, v5')
    a('v_xor_b32 v4, v4, v5')
    a('v_lshl_add_u32 v3, v4, 4, v3')
    a('s_lshl_b32 s46, s37, 7')
    a(f'v_add_u32 v{VWO}, s46, v3')

P3_D = [32, 48]
P3_OF = [64, 96]
P3_W = [128, 192]
XCH = 114688 - 128
XS = 8192 + 32
FULL = [1]
def p3_setup(a):
    a('s_and_b32 s4, s34, 1')
    a('s_lshr_b32 s5, s34, 1')
    a('s_lshl_b32 s46, s36, 1')
    a('s_add_u32 s46, s46, s4')
    a('s_lshl_b32 s47, s46, 5')
    a('s_xor_b32 s48, s5, 2')
    a('s_lshl_b32 s48, s48, 3')
    a('s_add_u32 s47, s47, s48')
    a('s_lshl_b32 s6, s47, 11')
    a(f's_add_u32 s6, s6, {WS_O}')
    a('s_lshl_b32 s7, s47, 7')
    a(f's_add_u32 s7, s7, {WS_F2}')

SWAPH = [0]
def p3_bases(a, tab):
    a('v_lshrrev_b32 v3, 5, v1')
    a('v_bfe_u32 v4, v1, 2, 2')
    a('v_bfe_u32 v5, v1, 4, 1')
    a('v_and_b32 v6, 3, v1')
    a('v_lshlrev_b32 v6, 3, v6')
    a('v_lshl_add_u32 v6, v5, 5, v6')
    a('v_lshl_add_u32 v6, v4, 7, v6')
    a('v_lshrrev_b32 v4, 1, v4')
    a('v_lshl_add_u32 v6, v4, 6, v6')
    a('s_bitcmp1_b32 s5, 0')
    f, g = (3, 2) if SWAPH[0] else (2, 3)
    a(f's_mov_b32 s12, {tab[0]}')
    a(f's_cselect_b32 s12, {tab[f]}, s12')
    a(f's_mov_b32 s13, {(tab[1] - tab[0]) & 0xffffffff}')
    a(f's_cselect_b32 s13, {(tab[g] - tab[f]) & 0xffffffff}, s13')
    a('v_add_u32 v11, s12, v6')
    a('v_xor_b32 v12, 64, v11')
    a('v_lshl_add_u32 v9, v3, 9, v11')
    a('v_xor_b32 v10, 64, v9')

def p3_trs(a, half):
    if half == 1:
        for r in range(4):
            a(f'v_add_u32 v{9+r}, s13, v{9+r}')
    for n in range(8):
        hb, f = n//2, n % 2
        a('s_waitcnt lgkmcnt(11)')
        for nt in range(2):
            for e in range(2):
                base = 9 + nt + (2 if (f == 1 and e == 1) else 0)
                a(f'ds_read_b64_tr_b16 {vr(P3_W[half]+8*n+4*nt+2*e,2)}, v{base} offset:{(hb*28 + 16*f + 8*e)*128}')

def p3_oloads(a, half):
    for i in range(8):
        a(f'buffer_load_dwordx4 {vr(P3_OF[half]+4*i,4)}, v{RA}, {sr(RWS,4)}, s{52 + 2*half + i//4} offen offset:{(i%4)*1024} {SC}')

def p3_mfmas(a, half, extra):
    for n in range(8):
        a(f's_waitcnt vmcnt({7 - n + extra})')
        for nt in range(2):
            cin = '0' if (n == 0 and half == 0) else vr(P3_D[nt], 16)
            a(f'v_mfma_f32_32x32x16_bf16 {vr(P3_D[nt],16)}, {vr(P3_W[half]+8*n+4*nt,4)}, {vr(P3_OF[half]+4*n,4)}, {cin}')

def p3_addr(a):
    if SWAPH[0]:
        a('s_bitcmp1_b32 s5, 0')
        a('s_cselect_b32 s46, 8192, 0')
        a('s_cselect_b32 s0, 512, 0')
        a('s_cselect_b32 s1, 0, 512')
        a('s_add_u32 s52, s6, s46')
        a('s_add_u32 s53, s52, 4096')
        a('s_xor_b32 s54, s52, 8192')
        a('s_add_u32 s55, s54, 4096')
    else:
        for k in range(4):
            a(f's_add_u32 s{52+k}, s6, {k*4096}')
    a(f's_add_u32 s10, s{P_WS}, s7')
    a(f's_addc_u32 s11, s{P_WS+1}, 0')
    a('s_lshl_b32 s46, s4, 12')
    a('s_lshl_b32 s47, s5, 10')
    a('s_add_u32 s47, s47, s46')
    a(f's_add_u32 s47, s47, {XCH}')
    a(f'v_add_u32 v3, s47, v{RA}')
    if FULL[0]:
        a('v_lshrrev_b32 v5, 3, v1')
        a('s_lshl_b32 s47, s5, 3')
        a('v_add_u32 v5, s47, v5')
        a('v_bfe_u32 v6, v1, 1, 2')
        a(f'v_mul_u32_u24 v4, {XS}, v6')
        a('v_lshl_add_u32 v4, v5, 4, v4')
        a('v_and_b32 v6, 1, v1')
        a('v_lshl_add_u32 v4, v6, 3, v4')
        a(f's_add_u32 s47, s46, {XCH}')
        a('v_add_u32 v4, s47, v4')
        a('s_lshl1_add_u32 s46, s36, s4')
        a('s_lshl_b32 s46, s46, 5')
        a('v_add_u32 v5, s46, v5')
        a('v_mul_u32_u24 v5, 896, v5')
        a('v_and_b32 v6, 7, v1')
        a('v_lshl_add_u32 v5, v6, 4, v5')
        a('s_lshl_b32 s50, s37, 7')
    else:
        a(f's_mul_i32 s47, s5, {XS}')
        a('s_add_u32 s47, s47, s46')
        a(f's_add_u32 s47, s47, {XCH}')
        a(f'v_add_u32 v4, s47, v{RA}')
        a('v_and_b32 v5, 31, v1')
        a('s_lshl_b32 s46, s36, 1')
        a('s_add_u32 s46, s46, s4')
        a('s_lshl_b32 s46, s46, 5')
        a('v_add_u32 v5, s46, v5')
        a('v_mul_u32_u24 v5, 896, v5')
        a('v_lshrrev_b32 v6, 5, v1')
        a('v_lshl_add_u32 v5, v6, 4, v5')
        a('s_lshl_b32 s46, s37, 7')
        a('s_lshl_b32 s47, s5, 5')
        a('s_add_u32 s50, s46, s47')
    a(f'v_mov_b32 v13, {FBFLAG}')

def lds_post(a, off):
    a('s_lshl_b32 s46, s35, 2')
    a(f's_add_u32 s46, s46, {FBFLAG + off}')
    a('v_mov_b32 v2, s46')
    a('v_mov_b32 v7, 1')
    a('ds_write_b32 v2, v7')

def lds_wait(a, off, tmp, name):
    lp = a.new(name)
    a(f'v_mov_b32 v2, {FBFLAG + off}')
    a.label(lp)
    a(f'ds_read_b128 {vr(tmp,4)}, v2')
    a('s_waitcnt lgkmcnt(0)')
    a(f'v_and_b32 v{tmp}, v{tmp}, v{tmp+1}')
    a(f'v_and_b32 v{tmp+2}, v{tmp+2}, v{tmp+3}')
    a(f'v_and_b32 v{tmp}, v{tmp}, v{tmp+2}')
    a(f'v_cmp_eq_u32 vcc, 0, v{tmp}')
    a(f's_cbranch_vccnz {lp}')

SP = [64, 66, 68, 70, 24, 26, 96, 98]
LO, HI = [0, 1, 2, 3], [4, 5, 6, 7]
def units(ks):
    if PACK[0] == 0: return [[k] for k in ks]
    out = []
    for k in ks:
        lim = min(PACK[0], 4 if k < 4 else 2)
        if out and len(out[-1]) < lim and out[-1][-1] + 1 == k and (k % lim): out[-1].append(k)
        else: out.append([k])
    return out
def spoll_issue(a, ks):
    for u in units(ks):
        g = PACK[0] or 1
        off = (u[0]//g)*g*128 + (u[0] % g)*8
        a(f's_load_dwordx{2*len(u)} {sr(SP[u[0]],2*len(u))}, s[10:11], {off} glc')

def spoll_spin(a, ks, name, also=()):
    ok, lp = a.new(name + '_ok'), a.new(name + '_lp')
    a(f's_mov_b32 s61, {SPIN_LIMIT}')
    a('s_waitcnt lgkmcnt(0)')
    a.label(lp)
    a('s_mov_b32 s58, 0')
    for u in units(ks) + units(also):
        sk, do = a.new(name + '_k'), a.new(name + '_d')
        for k in u:
            a(f's_cmp_eq_u64 {sr(SP[k],2)}, {sr(NONCE,2)}')
            a(f's_cbranch_scc1 {sk}' if k == u[-1] else f's_cbranch_scc0 {do}')
        a.label(do)
        spoll_issue(a, u)
        if u[0] in ks: a('s_mov_b32 s58, 1')
        a.label(sk)
    a('s_cmp_eq_u32 s58, 0')
    a(f's_cbranch_scc1 {ok}')
    a('ds_read_b32 v6, v13')
    if SLEEP2: a(f's_sleep {SLEEP2}')
    a('s_waitcnt lgkmcnt(0)')
    a('v_cmp_ne_u32 vcc, 0, v6')
    a('s_cbranch_vccnz L_p3_x')
    a('s_sub_u32 s61, s61, 1')
    a(f's_cbranch_scc0 {lp}')
    a.label(ok)

def p3_shared(a, opt):
    a.c('===== phase 3: wait for the head outputs, project, exchange, store =====')
    a.label('L_p3')
    a('s_cmp_ge_u32 s38, 28')
    a('s_cbranch_scc1 L_p3_x')
    if opt.get('also', 1):
        if not opt.get('adapt', 0):
            for k in HI:
                a(f's_mov_b32 s{SP[k]}, 0')
        if opt.get('adapt', 0):
            a('s_waitcnt lgkmcnt(0)')
            spoll_issue(a, HI)
            for k in LO:
                a(f's_cmp_eq_u64 {sr(SP[k],2)}, {sr(NONCE,2)}')
                a('s_cbranch_scc0 L_p3_notyet')
            stamp(a, 'f2b')
            p3_oloads(a, 0)
            p3_trs(a, 1)
            a('s_branch L_p3_hi')
            a.label('L_p3_notyet')
        if opt.get('trs1first', 1): p3_trs(a, 1)
        spoll_spin(a, LO, 'f2b', HI)
        stamp(a, 'f2b')
        p3_oloads(a, 0)
        if not opt.get('trs1first', 1): p3_trs(a, 1)
        a.label('L_p3_hi')
    else:
        spoll_spin(a, LO, 'f2b')
        stamp(a, 'f2b')
        spoll_issue(a, HI)
        p3_oloads(a, 0)
        p3_trs(a, 1)
    spoll_spin(a, HI, 'f2a')
    a.label('L_p3_l1')
    stamp(a, 'f2a')
    p3_oloads(a, 1)
    a('s_cmp_lt_u32 s34, 4')
    a('s_cbranch_scc1 L_p3_m')
    lds_wait(a, 32, 32, 'rdok')
    a.label('L_p3_m')
    a('s_setprio 0')
    p3_mfmas(a, 0, 8)
    stamp(a, 'mfB')
    if opt.get('x_half'):
        a('s_waitcnt vmcnt(0)')
    else:
        p3_mfmas(a, 1, 0)
    stamp(a, 'mfA')
    a('s_cmp_ge_u32 s34, 4')
    a('s_cbranch_scc1 L_p3_w')
    lds_wait(a, 32, 64, 'rdok')
    a.label('L_p3_w')
    a('s_nop 8')
    for d in range(4):
        for r in range(4):
            a(f'v_cvt_pk_bf16_f32 v{96+4*d+r}, v{32+8*d+2*r}, v{32+8*d+2*r+1}')
        a(f'ds_write_b128 v3, {vr(96+4*d,4)} offset:{d*XS}')
    a.label('L_p3_x')
    a('s_waitcnt lgkmcnt(0)')
    mksrd(a, R1, P_OUT, 2048*896)
    a('s_barrier')
    stamp(a, 'X')
    a('ds_read_b32 v6, v13')
    for s in range(4):
        if FULL[0]:
            a(f'ds_read2st64_b64 {vr(128 + 4*s, 4)}, v4 offset0:{2*s} offset1:{2*s+1}')
        else:
            a(f'ds_read_b128 {vr(128 + 4*s, 4)}, v4 offset:{s*1024}')
    a('s_mov_b32 s47, 0xffff0000')
    a('s_waitcnt lgkmcnt(3)')
    a('v_cmp_ne_u32 vcc, 0, v6')
    a('s_cmp_ge_u32 s38, 28')
    a('s_cbranch_vccnz L_p3_fb')
    a('s_cbranch_scc1 L_exit')
    for s in range(2 if opt.get('x_two') else 4):
        if s: a(f's_waitcnt lgkmcnt({3 - s})')
        for r in range(4):
            a(f'v_lshlrev_b32 v{96+8*s+2*r}, 16, v{128+4*s+r}')
            a(f'v_and_b32 v{96+8*s+2*r+1}, s47, v{128+4*s+r}')
        if s % 2 == 1:
            for r in range(0, 8, 2):
                a(f'v_pk_add_f32 {vr(96+8*(s-1)+r,2)}, {vr(96+8*(s-1)+r,2)}, {vr(96+8*s+r,2)}')
    for r in range(0, 8, 2):
        a(f'v_pk_add_f32 {vr(96+r,2)}, {vr(96+r,2)}, {vr(112+r,2)}')
    for r in range(4):
        a(f'v_cvt_pk_bf16_f32 v{28+r}, v{96+2*r}, v{96+2*r+1}')
    if not FULL[0]:
        a('s_nop 1')
        a('v_permlane32_swap_b32 v28, v30')
        a('v_permlane32_swap_b32 v29, v31')
    a(f'buffer_store_dwordx4 v[28:31], v5, {sr(R1,4)}, s50 offen {opt.get("outfl", "sc1")}')
    stamp(a, 'st')
    dump_stamps(a, 0)
    a('s_endpgm')

    a.label('L_p3_fb')
    a('s_setprio 0')
    a('s_waitcnt vmcnt(0) lgkmcnt(0)')
    a('s_mov_b32 s60, 1')
    p2_srds(a)
    p2_vec1(a)
    a('s_cmp_lt_u32 s34, 4')
    a('s_cbranch_scc1 L_a_fallback')
    a('s_branch L_b_fallback')

def publish_decision(a, o, data_s, flag_s):
    a('s_mov_b32 s58, 0')
    check(a, o, True)
    a('s_cmp_lg_u32 s60, 0')
    a('s_cselect_b32 s58, 0, s58')
    if PV.get('nofb'): a('s_mov_b32 s58, 0')
    a('s_or_b32 s46, s58, s63')
    a(f's_cselect_b32 s50, 0x40000000, s{data_s}')
    a(f's_cselect_b32 s51, 0x40000000, s{flag_s}')
    a('s_cselect_b32 s63, s63, 1')

VPB = 235
def b_setup(a, part=3):
    if part & 1: b_setup1(a)
    if part & 2: b_setup2(a)

def b_setup1(a):
    a('s_add_u32 s46, s33, 16')
    a('s_mul_i32 s46, s46, 43')
    a('s_lshr_b32 s46, s46, 7')
    a('s_add_u32 s47, s33, 32')
    a('s_mul_i32 s47, s47, 43')
    a('s_lshr_b32 s47, s47, 7')
    a('s_mul_i32 s48, s33, 43')
    a('s_lshr_b32 s48, s48, 7')
    a('s_lshl_b32 s46, s46, 6')
    a('s_lshl_b32 s47, s47, 6')
    a('s_lshl_b32 s48, s48, 6')
    a('s_add_u32 s48, s48, s40')
    a('v_and_b32 v2, 15, v1')
    a('v_lshl_add_u32 v2, v2, 2, s35')
    a('v_add_u32 v3, s46, v2')
    a('v_add_u32 v4, s47, v2')
    a('v_mov_b32 v5, s48')
    a('v_cmp_gt_u32 vcc, 16, v1')
    a('v_cmp_gt_u32 s[12:13], 32, v1')
    a('s_nop 0')
    a('v_cndmask_b32 v3, v4, v3, vcc')
    a(f'v_cndmask_b32 v{VPB}, v5, v3, s[12:13]')
    a(f'v_lshlrev_b32 v{VPB}, 7, v{VPB}')
    a(f'v_add_u32 v{VPB}, {WS_F1 + 131072}, v{VPB}')
    a('v_and_b32 v2, 3, v1')
    a('v_min_u32 v2, 2, v2')
    a('v_sub_u32 v2, s32, v2')
    a('v_max_i32 v2, 0, v2')
    a('s_sub_u32 s50, 3, s35')
    a('v_lshl_add_u32 v2, v2, 2, s50')
    a('v_add_u32 v3, s46, v2')
    a('v_add_u32 v4, s47, v2')
    a('v_cmp_gt_u32 vcc, 4, v1')
    a('v_cmp_gt_u32 s[12:13], 8, v1')
    a('s_nop 0')
    a('v_cndmask_b32 v3, v4, v3, vcc')
    a(f'v_cndmask_b32 v{VPA}, v5, v3, s[12:13]')
    a(f'v_lshlrev_b32 v{VPA}, 7, v{VPA}')
    a(f'v_add_u32 v{VPA}, {WS_F1}, v{VPA}')
    a('s_add_u32 s47, s39, 65536')
    a('s_lshl_b32 s46, s32, 2')
    a('s_add_u32 s46, s46, 3')
    a('s_sub_u32 s46, s46, s35')
    a('s_lshl_b32 s46, s46, 12')
    a(f'v_add_u32 v{VA0}, s46, v{RA}')
    a(f'v_subrev_u32 v{VA0+1}, 16384, v{VA0}')
    a(f'v_subrev_u32 v{VA0+2}, 32768, v{VA0}')
    a('s_sub_u32 s46, 65536 + 32768 + 3*4096, s39')
    a(f'v_add_u32 v{RBA}, s46, v{RA}')
    a(f'v_add_u32 v{RB0}, 65536, v{RA}')
    a(f'v_add_u32 v{RB1}, 131072, v{RA}')
    a(f'v_add_u32 v{KOF[RBA]}, s46, v{KOF[RA]}')
    a(f'v_add_u32 v{KOF[RB0]}, 65536, v{KOF[RA]}')
    a(f'v_add_u32 v{KOF[RB1]}, 131072, v{KOF[RA]}')

def b_setup2(a):
    a('v_and_b32 v3, 31, v1')
    a('v_lshrrev_b32 v2, 5, v1')
    a('v_lshlrev_b32 v2, 4, v2')
    a('v_sub_u32 v3, v3, v2')
    a(f'v_mov_b32 v2, {NEGBIG}')
    for r in range(0, 16, 2):
        for u in range(2):
            cr = r + u
            a(f'v_cmp_le_i32 s[{10+2*u}:{11+2*u}], {cr}, v3')
        a('s_nop 0')
        for u in range(2):
            a(f'v_cndmask_b32 v{CD+r+u}, v2, 0, s[{10+2*u}:{11+2*u}]')
            a(f'v_cndmask_b32 v{CE+r+u}, 0, v2, s[{10+2*u}:{11+2*u}]')

def gen(a, label, opt):
    LSTEP = opt.get('lstep', 9)
    LATE = sum(1 << t for t in list(range(LSTEP, 9)) + list(range(9 + LSTEP, 16))) if LSTEP < 9 else 0
    kernel_header(a, label)
    a('s_cmp_ge_u32 s2, 256')
    a('s_cbranch_scc1 L_done')
    stamp_init(a)
    a('s_load_dwordx16 s[4:19], s[0:1], 0')
    a('s_load_dwordx4 s[20:23], s[0:1], 64')
    a('v_lshrrev_b32 v2, 6, v0')
    a('v_and_b32 v1, 63, v0')
    a('v_readfirstlane_b32 s34, v2')
    m48 = opt.get('m48', 0)
    if m48:
        a('s_bfe_u32 s38, s2, 0x20003')
        a('s_and_b32 s32, s2, 3')
        a('s_lshl2_add_u32 s32, s32, s38')
        a('s_lshr_b32 s40, s2, 5')
        a('s_bfe_u32 s33, s2, 0x10002')
        a('s_lshl3_add_u32 s33, s33, s40')
    else:
        a('s_bfe_u32 s40, s2, 0x30003')
        a('s_and_b32 s32, s2, 1')
        a('s_lshl3_add_u32 s32, s32, s40')
        a('s_lshr_b32 s38, s2, 6')
    if opt.get('rot', 2) == 2:
        a('s_lshl1_add_u32 s63, s38, s40')
        a('s_sub_u32 s40, s63, 7')
        a('s_cselect_b32 s63, s63, s40')
    elif opt.get('rot') in (3, 4):
        a('s_lshl1_add_u32 s63, s38, s40')
        a(f's_bfe_u32 s40, s2, {0x10001 if opt["rot"] == 3 else 0x20001}')
        a('s_add_u32 s63, s63, s40')
        for k in range(2):
            a('s_sub_u32 s40, s63, 7')
            a('s_cselect_b32 s63, s63, s40')
    elif opt.get('rot') == 5:
        a('s_add_u32 s63, s38, s40')
        a('s_and_b32 s63, s63, 3')
        a('s_bfe_u32 s40, s2, 0x10001')
        a('s_xor_b32 s40, s40, s2')
        a('s_and_b32 s40, s40, 1')
        a('s_lshl1_add_u32 s63, s63, s40')
        a('s_sub_u32 s40, s63, 7')
        a('s_cselect_b32 s63, s63, s40')
    else:
        a('s_add_u32 s63, s38, s40')
        a('s_and_b32 s63, s63, 3')
        a('s_lshl_b32 s63, s63, 1')
    a('s_and_b32 s35, s34, 3')
    if not m48:
        a('s_bfe_u32 s33, s2, 0x20001')
        a('s_lshl2_add_u32 s33, s33, s38')
    def columns():
        a('s_xor_b32 s62, s33, 1')
        a('s_lshr_b32 s40, s33, 1')
        a('s_cmp_eq_u32 s40, 2')
        a('s_cselect_b32 s62, s33, s62')
        a('s_cmp_eq_u32 s40, 5')
        a('s_cselect_b32 s62, s33, s62')
    a('s_cmp_lt_u32 s34, 4')
    a('s_cbranch_scc0 L_loader')
    if opt.get('codewarm', 1):
        a('s_getpc_b64 s[46:47]')
        a.label('L_pc')
        a('s_lshr_b32 s48, s2, 3')
        a('s_lshl2_add_u32 s48, s48, s34')
        a('v_and_b32 v2, 3, v1')
        a('v_lshl_add_u32 v2, s48, 2, v2')
        a('v_lshlrev_b32 v2, 7, v2')
        a('v_min_u32 v2, L_done - L_pc, v2')
        a('global_load_dword v78, v2, s[46:47]')
    dispatch(a, 33, 'P1B')
    a.label('L_loader')

    XA = [240, 241, 242, 243]
    WA = [244, 245, 246]
    a.c('===== waves 4-7: phase-1 loader =====')
    a('s_setprio 3')
    a('v_lshrrev_b32 v3, 3, v1')
    a('v_lshrrev_b32 v4, 4, v1')
    a('v_and_b32 v5, 7, v1')
    a('v_xor_b32 v5, v5, v4')
    a('s_lshl2_add_u32 s40, s32, s35')
    a('v_lshl_add_u32 v3, s40, 5, v3')
    a('v_mul_u32_u24 v3, 896, v3')
    a(f'v_lshl_add_u32 v{XA[0]}, v5, 4, v3')
    a(f'v_xor_b32 v{XA[1]}, 64, v{XA[0]}')
    a(f'v_add_u32 v{XA[1]}, {8*896 - 1024}, v{XA[1]}')
    a(f'v_add_u32 v{XA[2]}, {16*896 - 2048}, v{XA[0]}')
    a(f'v_add_u32 v{XA[3]}, {16*896 - 2048}, v{XA[1]}')
    window(a, 33, 54, 37, 40)
    a('s_mul_i32 s40, s35, 192')
    a('s_movk_i32 s41, 2688')
    a('s_movk_i32 s42, -176')
    a('v_add_u32 v3, s40, v1')
    a('v_lshlrev_b32 v5, 4, v3')
    a('v_mul_u32_u24 v3, 745, v3')
    for i in range(3):
        if i:
            a(f'v_add_u32 v3, {745*64}, v3')
        a('v_lshrrev_b32 v4, 13, v3')
        a('v_and_b32 v6, 7, v4')
        a('v_mul_u32_u24 v6, 9, v6')
        a('v_lshrrev_b32 v6, 1, v6')
        a('v_bfi_b32 v6, 7, v6, v4')
        a('v_mad_i32_i24 v4, v4, s42, v5')
        a(f'v_mad_u32_u24 v{WA[i]}, v6, s41, v4')
    a('s_cmp_eq_u32 s35, 3')
    a('s_cselect_b32 s40, 0x40000000, 0')
    a(f'v_add_u32 v{WA[2]}, s40, v{WA[2]}')
    a('s_lshl_b32 s58, s35, 12')
    a('s_mul_i32 s59, s35, 3072')
    a('s_lshl_b32 s52, s63, 7')
    a(f's_mul_i32 s53, s63, {64*2688}')
    a('s_add_u32 s53, s54, s53')
    a(f's_mov_b32 s{R0+2}, {2048*896}')
    a(f's_mov_b32 s{R0+3}, 0x20000')
    a(f's_mov_b32 s{R1+2}, {448*2688}')
    a(f's_mov_b32 s{R1+3}, 0x20000')
    a('v_lshl_add_u32 v2, v1, 4, s52')
    a('v_subrev_u32 v4, 896, v2')
    a('v_min_u32 v2, v2, v4')
    a(f's_movk_i32 s{R3+2}, 896')
    a(f's_mov_b32 s{R3+3}, 0x20000')
    a(f's_mov_b32 m0, {GATE}')
    a('s_cmp_lg_u32 s35, 3')
    stamp(a, 'pre')
    a('s_waitcnt lgkmcnt(0)')
    stamp(a, 'karg')
    a('s_cbranch_scc1 L_nogate')
    a(f's_mov_b32 s{R3}, s{P_G}')
    a(f's_and_b32 s{R3+1}, s{P_G+1}, 0xffff')
    a(f'buffer_load_dwordx4 v2, {sr(R3,4)}, 0 offen lds')
    a.label('L_nogate')
    a('s_mov_b32 m0, s58')
    a(f's_mov_b32 s{R0}, s{P_X}')
    a(f's_and_b32 s{R0+1}, s{P_X+1}, 0xffff')
    vm = VM()
    def loads_x(g):
        for i in range(4):
            a(f'buffer_load_dwordx4 v{XA[i]}, {sr(R0,4)}, s52 offen offset:{i*1024} {opt.get("xfl", "")} lds')
        vm.add(g, 4)
    def loads_w(g):
        for i in range(3):
            a(f'buffer_load_dwordx4 v{WA[i]}, {sr(R1 if g < 7 else R2,4)}, s53 offen offset:{i*1024} {opt.get("wfl", "")} lds')
        vm.add(g, 3)
    def issue(g):
        a(f's_add_u32 m0, s59, {wslot(g)}')
        a(f's_add_u32 s3, s16, {g % 7}')
        a('s_sub_u32 s53, s3, 7')
        a('s_cselect_b32 s3, s3, s53')
        a(f's_mul_i32 s53, s3, {64*2688}')
        a(f's_add_u32 s53, s{54 if g < 7 else 55}, s53')
        loads_w(g)
        if g < 7:
            a(f's_add_u32 m0, s58, {XRING + (g % 4)*16384}')
            a('s_lshl_b32 s52, s3, 7')
            loads_x(g)
    loads_x(0)
    a(f's_add_u32 m0, s59, {wslot(0)}')
    a(f's_mov_b32 s{R1}, s{P_BW}')
    a(f's_and_b32 s{R1+1}, s{P_BW+1}, 0xffff')
    loads_w(0)
    a('s_mov_b32 s16, s63')
    stamp(a, 'i0')
    issue(1)
    a('s_setprio 0')
    stamp(a, 'i1')
    def slice0():
        columns()
        window(a, 62, 55, 39, 40)
        mksrd(a, R2, P_AW, 448*2688)
        mksrd(a, RWS, P_WS, WS_END)
        mksrd(a, R3, P_DBG, 256)
        p2_scalars(a)
    def slice1():
        p3_setup(a)
        p2_vec1(a)
        p2_vec2(a)
        a('s_mov_b32 s63, 0')
    sl = opt.get('lsl', [0.5, 6.5, 6.5, 10.5])
    slices = {}
    for g, f in zip(sl, [slice0, slice1, lambda: b_setup(a, 1), lambda: b_setup(a, 2)]):
        slices.setdefault(g, []).append(f)
    sched = opt.get('sched', {0: [2], 1: [3], 2: [4], 3: [5], 4: [6], 5: [7, 8], 6: [9], 7: [10, 11, 12, 13]})
    need = opt.get('need', {7: [7, 8, 9], 10: [10, 11], 12: [12, 13, 'go', 'p0']})
    for g in P1_BARS:
        n = vm.wait_for(*need.get(g, [g]))
        a(f's_waitcnt vmcnt({n})')
        if g == P1_BARS[-1]:
            break
        stamp(a, f'g{g}')
        if XP and g in (2, 6): cstamp(a, 0 if g == 2 else 1)
        a('s_barrier')
        for f in slices.get(g, []): f()
        if g == opt.get('spf_g', -1):
            st = opt.get('spf_st', 128)
            a('s_mul_i32 s0, s2, 37')
            a('s_mul_i32 s1, s35, 9')
            a('s_add_u32 s0, s0, s1')
            a('s_min_u32 s0, s0, 9398')
            a('s_lshl_b32 s0, s0, 7')
            for k in range(10*128//st):
                a(f's_load_dword s1, {sr(P_AW,2)}, s0 offset:{k*st}')
        for c in sched.get(g, []):
            issue(c)
        for f in slices.get(g + 0.5, []): f()
        if g == 10 and opt.get('early0', 0):
            a(f'v_mov_b64 {vr(VPOLL,2)}, 0')
            if opt['early0'] > 1:
                a(f's_waitcnt vmcnt({vm.wait_for(12)})')
            a('s_mov_b32 exec_lo, 0x02010201')
            a('s_mov_b32 exec_hi, 1')
            a(f'buffer_load_dwordx2 {vr(VPOLL,2)}, v{VPB}, {sr(RWS,4)}, 0 offen {SC}')
            a('s_mov_b64 exec, -1')
            vm.add('e0')
        if g == 3:
            a(f'buffer_load_dwordx2 {vr(VTAG,2)}, off, {sr(R3,4)}, 0 {SC}')
            vm.add('go')
    get_nonce(a, VTAG, 'go_b')
    a('s_waitcnt lgkmcnt(0)')
    p2_srds(a)
    stamp(a, 'g12')
    a('s_barrier')
    stamp(a, 'pb')
    staged = opt.get('staged', 1)
    m0 = 0x02010201 if opt.get('late_s1', 2) else 0x06030603
    if opt.get('narrow', 1):
        if opt.get('early0', 0):
            a('s_waitcnt vmcnt(0)')
        else:
            a(f'v_mov_b64 {vr(VPOLL,2)}, 0')
        a(f's_mov_b32 exec_lo, {m0}')
        a('s_mov_b32 exec_hi, 1')
        spin_mask(a, VPOLL, VPB, '0', 'f1b', opt.get('sleep1', 1), bool(opt.get('early0', 0)))
    else:
        spin_mask(a, VPOLL, VPB, '0', 'f1b', opt.get('sleep1', 1), False, m0 if staged else None)
    stamp(a, 'f1b')

    a.c('===== waves 4-7: attention stream b (28 full-branch tiles, then the sliding window) =====')
    a.label('L_b_restart')
    vm = VM()
    a(f'buffer_load_dwordx4 {vr(QB,4)}, v{RA}, {sr(RWS,4)}, s42 offen {SC}')
    a(f'buffer_load_dwordx4 {vr(QB+4,4)}, v{RA}, {sr(RWS,4)}, s42 offen offset:1024 {SC}')
    bsl = {s: s % 5 for s in range(7)}
    bkt = {s: 36 + 4*s for s in range(7)}
    dma_a = lambda s: dma_tile(R2, 39, (s % 4)*16384, 4*s*4096)
    dma_b = lambda s: dma_tile(R2, 47, bsl[s]*16384, bkt[s]*4096)
    late = opt.get('late_s1', 2)
    if opt.get('kdirect'):
        a(f'buffer_load_dwordx4 {vr(Kb(3),4)}, v{VD}, {sr(R2,4)}, 0 offen {SC}')
        a(f'buffer_load_dwordx4 {vr(Kb(3)+4,4)}, v{VD}, {sr(R2,4)}, 0 offen offset:1024 {SC}')
        vm.add('k0', 2)
    for k, g in enumerate(dma_a(0) + dma_b(0)):
        for x in g: a(x)
        vm.add('k0' if (k < 2 and not opt.get('kdirect')) else 's0')
    if late == 0:
        for g in dma_a(1) + dma_b(1):
            for x in g: a(x)
        vm.add('s1', 8)
    em = (~(LATE | LATE << 16)) & 0xffffffff
    if opt.get('narrow', 1):
        a(f's_mov_b32 exec_lo, {em}')
        a(f'buffer_load_dwordx2 {vr(VPOLL,2)}, v{VPB}, {sr(RWS,4)}, 0 offen {SC}')
        a('s_mov_b32 exec_lo, -1')
        vm.add('s0')
    zero16(a, OB)
    zero16(a, OA)
    a(f's_waitcnt vmcnt({vm.wait_for("k0")})')
    if not opt.get('x_nob'):
        if not opt.get('kdirect'):
            a(f'ds_read_b128 {vr(Kb(3),4)}, v{VD}')
            a(f'ds_read_b128 {vr(Kb(3)+4,4)}, v{VD} offset:1024')
            a('s_waitcnt lgkmcnt(0)')
        set_shift(a, Sb(0), QB, VSAV, '0', Kb(3), opt.get('quick', 0))
    a(f'ds_write_b128 v{VD}, {vr(QB,4)} offset:{QBUF}')
    a(f'ds_write_b128 v{VD}, {vr(QB+4,4)} offset:{QBUF+1024}')
    stamp(a, 'shift')
    a(f's_waitcnt vmcnt({vm.wait_for("s0")}) lgkmcnt(0)')
    if staged:
        a(f's_mov_b32 exec_lo, {em}')
        spin_mask(a, VPOLL, VPB, '0', 'f1c', 1, True)
    if late == 2:
        for g in dma_a(1) + dma_b(1):
            for x in g: a(x)
        vm.add('s1', 8)
    def late_poll():
        a(f's_mov_b32 exec_lo, {~em & 0xffffffff}')
        a('s_mov_b32 exec_hi, 0')
        a(f'buffer_load_dwordx2 {vr(VPOLL,2)}, v{VPB}, {sr(RWS,4)}, 0 offen {SC}')
        a('s_mov_b64 exec, -1')
        vm.add('pl')
    if LATE and LSTEP == 3:
        late_poll()
    stamp(a, 'preB0')
    a('s_barrier')
    stamp(a, 'B0')
    def rd_b(t):
        if t >= 28:
            return (RBA, (t-28)*4096)
        s, r = t//4, t % 4
        off = bsl[s]*16384 + r*4096
        return (RB1, off - 65536) if bsl[s] == 4 else (RB0, off)
    def initial_reads(rd):
        for t, f in [(0,0),(0,1),(1,0),(1,1),(0,2),(0,3),(2,0),(2,1),(1,2),(1,3),(2,2),(2,3)]:
            base, off = rd(t)
            dst = (Kb(t) + 4*f) if f < 2 else (Vb(t) + 4*(f-2))
            a(f'ds_read_b128 {vr(dst,4)}, v{KOF[base] if f < 2 else base} offset:{off + f*1024}')
    initial_reads(rd_b)
    a('v_and_b32 v3, 31, v1')
    a('s_lshl_b32 s46, s35, 7')
    a(f's_add_u32 s46, s46, {ZBUF}')
    a('v_lshl_add_u32 v3, v3, 2, s46')
    a(f'ds_read_b32 v{VZ}, v3')
    def fill_b():
        if late == 1:
            for g in dma_b(1):
                for x in g: a(x)
            vm.add('s1', 4)
        if opt.get('s2fill', 0):
            for g in dma_b(2):
                for x in g: a(x)
            vm.add('s2', 4)
        else:
            a('s_nop 5')
            pend.extend(('s2', g) for g in dma_b(2))
    a('s_waitcnt lgkmcnt(11)')
    pend = []
    TB9 = opt.get('tb9', 29.5)
    TB8 = opt.get('tb8', 29)
    bar_b = {1: 1, 5: 2, 9: 3, 13: 4, 17: 5, 21: 6, 25: 7, TB8: 8, TB9: 9}
    def pairs(tag, d):
        return [(tag, d[2*i] + d[2*i+1]) for i in range(len(d)//2)]
    def comb_write():
        a(f'v_add_u32 v7, {COMB}, v{VD}')
        a('s_nop 1')
        for i in range(4):
            a(f'ds_write_b128 v7, {vr(OB+4*i,4)} offset:{i*1024}')
        if opt.get('cflag', 1):
            lds_post(a, 48)
    def b_start(t):
        if t in bar_b:
            s = bar_b[t]
            tags = [f's{s}'] + (['pa'] if s == 5 else []) + (['pl'] if s == LSTEP - 2 else [])
            a(f's_waitcnt vmcnt({vm.wait_for(*tags)})' + {7: ' lgkmcnt(0)', 8: f' lgkmcnt({4 if TB8 == 30 else 0})'}.get(s, ''))
            if LATE and s == LSTEP - 2:
                spin_mask(a, VPOLL, VPB, '0', 'f1l', 2, True)
            if s == 5:
                spin_mask(a, VPOLL, VPA, '0', 'f1a', 2, True)
            a('s_barrier')
            assert not pend or s == 1
            if s + 2 in bsl:
                pend.extend((f's{s+2}', g) for g in dma_b(s + 2))
            elif s == 5:
                a(f'buffer_load_dwordx4 {vr(QA,4)}, v{RA}, {sr(RWS,4)}, s41 offen {SC}')
                a(f'buffer_load_dwordx4 {vr(QA+4,4)}, v{RA}, {sr(RWS,4)}, s41 offen offset:1024 {SC}')
                vm.add('s7', 2)
                pend.extend(pairs('s7', dma_tile(R1, 47, 32768, 0, voff=VA0, soff_s='0') + dma_tile(R1, 47, 49152, 0, voff=VA0+1, soff_s='0')))
            elif s == 6:
                pend.extend(pairs('s8', dma_tile(R1, 47, 65536, 0, voff=VA0+2, soff_s='0')) + pairs('s9', dma_wo(R0, W1_SLOT[0], 0)))
            elif s == 7:
                pend.extend(('s9', g) for g in dma_wo(R0, W1_SLOT[3], 3))
        if TB9 == 29.5 and t == 29:
            a('s_setprio 0')
            comb_write()
            gate_factor(a, -1)
            a(f's_waitcnt vmcnt({vm.wait_for("s9")})')
            a('s_barrier')
        if t == opt.get('prio_t', 32):
            a('s_setprio 2')
    def b_slot(t):
        if LATE and t == 4*(LSTEP - 2) - 3 - opt.get('pl_lead', 2):
            late_poll()
        if t == opt.get('pa_t', 14):
            a(f'buffer_load_dwordx2 {vr(VPOLL,2)}, v{VPA}, {sr(RWS,4)}, 0 offen {SC}')
            vm.add('pa')
        for rep in range(2 if (t < 3 and not opt.get('s2fill', 0)) else 1):
            if pend:
                tag, g = pend.pop(0)
                for x in g: a(x)
                vm.add(tag, sum('buffer_load' in x for x in g))
    def b_end(t):
        if t == 26 and not opt.get('x_noshift'):
            set_shift(a, Sb(28), QA, VSAV+2, vr(CD, 16), Kb(28))
        if t == (29 if opt.get('cflag', 1) else 28) and TB9 != 29.5:
            comb_write()
        if t == 29 and TB9 != 29.5:
            gate_factor(a, -1)
        if t == 34:
            p3_bases(a, W2_SLOT)
        if t == 35:
            lds_post(a, 32)
    def cin_b(t):
        if t == 28: return vr(CD, 16)
        if t == 36: return vr(CE, 16)
        return '0'
    isA = lambda t: t >= 28
    pipeline(a, 37, rd_b, lambda t: QA if isA(t) else QB, lambda t: OA if isA(t) else OB, cin_b, b_start, b_slot, b_end, 'b', fill_b)
    a('s_nop 11')
    stamp(a, 'endP')
    if opt.get('x_hint'): flag_prep(a, 6, 0)
    finalize(a, OA, 43, 45)
    if opt.get('x_hint'):
        flag_fire(a, 6, 's51', 0, PACK[0])
        a('s_mov_b32 s51, 0x40000000')
    stamp(a, 'st2')
    fbflag_publish(a)
    lds_wait(a, 16, 32, 'w2ok')
    p3_trs(a, 0)
    p3_addr(a)
    flag_prep(a, 6)
    a('s_waitcnt lgkmcnt(7)')
    bv = opt.get('bvec', 0)
    if opt.get('bearly', 1) and not bv: spoll_issue(a, LO)
    a('s_waitcnt vmcnt(0)')
    flag_fire(a, 6, 's51', 2, PACK[0])
    stamp(a, 'fs')
    a('s_setprio 0')
    if bv:
        a('s_cmp_ge_u32 s38, 28')
        a('s_cbranch_scc1 L_p3_x')
        a('v_lshlrev_b32 v36, 7, v1')
        if bv == 2:
            a('s_mov_b64 exec, 0xff')
            a(f'buffer_load_dwordx2 v[38:39], v36, {sr(RWS,4)}, s7 offen {SC}')
            a('s_mov_b64 exec, -1')
        p3_trs(a, 1)
        a('s_mov_b64 exec, 0xff')
        a(f's_mov_b32 s61, {SPIN_LIMIT}')
        if bv == 2:
            a('s_branch L_bv_chk')
        a.label('L_bv_lp')
        a(f'buffer_load_dwordx2 v[38:39], v36, {sr(RWS,4)}, s7 offen {SC}')
        a.label('L_bv_chk')
        a('ds_read_b32 v37, v13')
        a('s_waitcnt vmcnt(0) lgkmcnt(0)')
        a('v_cmp_ne_u32 vcc, 0, v37')
        a('s_cbranch_vccnz L_bv_out')
        a(f'v_cmp_ne_u64 vcc, {sr(NONCE,2)}, v[38:39]')
        a('s_sub_u32 s61, s61, 1')
        a('s_cselect_b64 vcc, 0, vcc')
        a('s_cbranch_vccz L_bv_ok')
        a('s_mov_b64 exec, vcc')
        a('s_branch L_bv_lp')
        a.label('L_bv_out')
        a('s_mov_b64 exec, -1')
        a('s_branch L_p3_x')
        a.label('L_bv_ok')
        a('s_mov_b64 exec, -1')
        p3_oloads(a, 0)
        a('s_branch L_p3_l1')
    if not opt.get('bearly', 1): spoll_issue(a, LO)
    p3_shared(a, opt)

    a.c('===== rerun requested: true row maxima of both branches, split into three bf16 terms =====')
    a.label('L_b_fallback')
    b_setup(a)
    true_max_B(a)
    a('s_mov_b32 exec_lo, 0')
    a(f'v_mov_b64 {vr(QA+6,2)}, 0')
    a('s_mov_b32 exec_lo, -1')
    for i in range(16):
        a(f'v_mov_b32 v{Sb(1)+i}, {NEGBIG}')
    for i in range(9):
        skip = a.new('fbA')
        a(f's_cmp_lt_u32 s40, {i}')
        a(f's_cbranch_scc1 {skip}')
        a(f's_sub_u32 s48, s40, {i}')
        a('s_lshl_b32 s48, s48, 12')
        a(f'buffer_load_dwordx4 {vr(K0,4)}, v{KOF[RA]}, {sr(R1,4)}, s48 offen {SC}')
        a(f'buffer_load_dwordx4 {vr(K0+4,4)}, v{KOF[RA]}, {sr(R1,4)}, s48 offen offset:1024 {SC}')
        a('s_waitcnt vmcnt(0)')
        qk(a, Sb(0), K0, QA, cin_b(28 + i), 0)
        qk(a, Sb(0), K0, QA, None, 1)
        a('s_nop 15')
        for r in range(16):
            a(f'v_max_f32 v{Sb(1)+r}, v{Sb(1)+r}, v{Sb(0)+r}')
        a.label(skip)
    split3(a, Sb(1), VSAV+2)
    a(f'v_mov_b32 v{VPOLL}, s{NONCE}')
    a(f'v_mov_b32 v{VPOLL+1}, s{NONCE+1}')
    a('s_barrier')
    a('s_branch L_b_restart')

    def first_setup():
        window(a, 33, 36, 37, 40)
        a('v_and_b32 v3, 15, v1')
        a('v_lshrrev_b32 v4, 4, v1')
        a('v_lshrrev_b32 v5, 1, v3')
        a('v_xor_b32 v5, v5, v4')
        a('s_lshl_b32 s40, s34, 12')
        a('v_lshl_add_u32 v6, v3, 7, s40')
        a(f'v_lshl_add_u32 v{XR[0]}, v5, 4, v6')
        a(f'v_xor_b32 v{XR[1]}, 64, v{XR[0]}')
        a('v_bfe_u32 v5, v1, 2, 2')
        a('v_lshl_add_u32 v5, v4, 2, v5')
        a(f'v_mul_u32_u24 v5, {2*WP}, v5')
        a('v_and_b32 v6, 3, v1')
        a('v_lshl_add_u32 v5, v6, 3, v5')
        a(f's_add_u32 s40, s37, {WRING}')
        a(f'v_add_u32 v{WRB}, s40, v5')
        a(f'v_lshlrev_b32 v{VGA}, 4, v4')
        a(f'v_add_u32 v{VGA}, {GATE}, v{VGA}')
        a(f'v_mov_b32 v2, {LDS_SIZE}')
        a('s_mov_b32 vcc_lo, 0x00010001')
        a('s_mov_b32 vcc_hi, 0x00010001')
        a(f'v_cndmask_b32 v{VGA}, v2, v{VGA}, vcc')
        a('s_waitcnt lgkmcnt(0)')
        stamp(a, 'karg')
    def later_setup(var):
        G = []
        def grp(f, atomic=False):
            n0 = len(a.lines)
            f()
            L = a.lines[n0:]
            del a.lines[n0:]
            if atomic: G.append(L)
            else: G.extend([x] for x in L)
        def tag():
            sk = a.new('notag')
            a('s_or_b32 s53, s2, s34')
            a(f's_cbranch_scc1 {sk}')
            a(f's_memrealtime {sr(NONCE,2)}')
            a('s_waitcnt lgkmcnt(0)')
            a(f's_lshl_b64 {sr(NONCE,2)}, {sr(NONCE,2)}, 1')
            a(f's_or_b32 s{NONCE}, s{NONCE}, 1')
            a(f'v_mov_b32 v{VGO}, s{NONCE}')
            a(f'v_mov_b32 v{VGO+1}, s{NONCE+1}')
            a('s_mov_b64 exec, 1')
            a(f'buffer_store_dwordx2 {vr(VGO,2)}, off, {sr(R3,4)}, 0 {SC}')
            a('s_mov_b64 exec, -1')
            a.label(sk)
        def rest1():
            columns()
            window(a, 62, 38, 39, 40)
            a(f'v_add_u32 v{WRL}, s39, v{WRL}')
            a(f'v_add_u32 v{WRA}, {WRING}, v{WRL}')
            a(f'v_add_u32 v{WRE}, {WE}, v{WRL}')
            a('v_lshlrev_b32 v2, 4, v3')
            a(f'v_lshl_add_u32 v{VST}, v4, 9, v2')
            a('v_cmp_eq_u32 vcc, 12, v3')
            a('v_mov_b32 v2, 0x3f803f80')
            a(f's_mov_b32 s50, {f32bits(CSCALE)}')
            a(f's_mov_b32 s51, {f32bits(CSCALE)}')
            a(f'v_cndmask_b32 v{VPAD}, 0, v2, vcc')
            p2_scalars(a)
            a('s_lshl_b32 s46, s62, 6')
            a('s_add_u32 s46, s46, s40')
            a('s_lshl_b32 s46, s46, 7')
            a(f's_add_u32 s3, s46, {WS_F1}')
            a('s_lshl_b32 s46, s33, 6')
            a('s_add_u32 s46, s46, s40')
            a('s_lshl_b32 s46, s46, 7')
            a(f's_add_u32 s52, s46, {WS_F1 + 131072}')
            mksrd(a, RWS, P_WS, WS_END)
        def fwarm():
            a('v_lshlrev_b32 v2, 3, v1')
            a(f'v_mov_b32 v{VGO}, 0')
            a(f'v_mov_b32 v{VGO+1}, 0')
            a('s_add_u32 s46, s45, 2048')
            flag_fire(a, VGO, 's45')
            flag_fire(a, VGO, 's46')
            if opt.get('fw1', 0):
                flag_fire(a, VGO, 's52')
        def rest2():
            p2_srds(a)
            p3_setup(a)
            store_offsets(a, var, 33, 1)
            store_offsets(a, var, 62, 0)
            prefill(a, var)
        grp(lambda: mksrd(a, R3, P_DBG, 256))
        grp(tag, True)
        grp(rest1)
        grp(rest2)
        if opt.get('fwarm', 1): grp(fwarm, True)
        return G
    later = []
    curvar = [None]
    def hookB(u):
        if u == 14:
            while later: a.lines.extend(later.pop(0))
        if u == 22:
            a(f'buffer_load_dwordx2 {vr(VGO,2)}, off, {sr(R3,4)}, 0 {SC}')
        if u == NU - 1 and not opt.get('zlate', 0):
            for N in range(NZ1, 14):
                a(f'ds_read_b128 {vr(ZG[N-NZ1],4)}, v{VGA} offset:{N*64}')
    def hookA(u):
        if opt.get('zlate', 0) and u == opt.get('nf', 8) - 3:
            for N in range(NZ1, 14):
                a(f'ds_read_b128 {vr(XF+4*(N-NZ1),4)}, v{VGA} offset:{N*64}')
        if opt.get('zlate', 0) and u == opt.get('nf', 8):
            for N in range(NZ1, 14):
                zmfma(a, N, XF+4*(N-NZ1))
        if u == opt.get('nf', 8):
            stamp(a, 'preF')
            a('s_waitcnt vmcnt(0)')
            get_nonce(a, VGO, 'go_a')
            flag_store(a, VGO, 's52')
            stamp(a, 'flagB')
        if u == 37:
            prefill(a, curvar[0], PKA)
    for var in VARIANTS:
        a.c(f'===== waves 0-3: phase-1 products, section kinds {var} =====')
        a.label(f'P1B_{var}')
        first_setup()
        later.extend(later_setup(var))
        if not opt.get('sliced', 0):
            while len(later) > opt.get('fwarm', 1): a.lines.extend(later.pop(0))
        stamp(a, 'g0')
        a('s_barrier')
        first_reads(a, False)
        gemm_pass(a, var, False, hookB, p1_epi(var, PK, True))
        stamp(a, 'stB')
        if not opt.get('zlate', 0):
            a('s_waitcnt lgkmcnt(0)')
            for N in range(NZ1, 14):
                zmfma(a, N, ZG[N-NZ1])
        stamp(a, 'g7')
        a('s_barrier')
        first_reads(a, True)
        curvar[0] = var
        gemm_pass(a, var, True, hookA, p1_epi(var, PKA, False))
        a(f'v_mov_b32 v{PKA+24}, v{VST}')
        a('s_branch L_a_attn')
    a.c('===== waves 0-3: attention stream a (36 full-branch tiles) =====')
    a.label('L_a_attn')
    stamp(a, 'endA')
    a('v_and_b32 v3, 31, v1')
    a('s_lshl_b32 s46, s35, 7')
    a(f's_add_u32 s46, s46, {ZBUF}')
    a('v_lshl_add_u32 v3, v3, 2, s46')
    a('s_mov_b64 exec, 0xffff')
    a(f'ds_write2_b32 v3, v{ZD}, v{ZD+4} offset1:16')
    a('s_mov_b64 exec, -1')
    a(f'ds_read_b32 v{VZ}, v3')
    p2_vec1(a)
    a('s_mov_b32 s63, 0')
    a('s_add_u32 s45, s45, 2048')
    a.label('L_a_restart')
    vm = VM()
    a('v_and_b32 v2, 15, v1')
    a(f'v_mov_b32 v3, {FBFLAG}')
    a('v_lshl_add_u32 v2, v2, 2, v3')
    a(f'ds_write_b32 v2, v{VZERO}')
    if opt.get('st_t0', 3) < 0:
        for t in range(3):
            tile_stores(a, PKA+8*t, PKA+24, SOFF[t], SC)
        vm.add('st', 6)
    zero16(a, OB)
    a('s_waitcnt lgkmcnt(0)')
    stamp(a, 'preB0')
    a('s_barrier')
    stamp(a, 'B0')
    rd_a = lambda t: (RA, ((t//4) % 4)*16384 + (t % 4)*4096)
    a(f'ds_read_b128 {vr(QB,4)}, v{VD} offset:{QBUF}')
    a(f'ds_read_b128 {vr(QB+4,4)}, v{VD} offset:{QBUF+1024}')
    initial_reads(rd_a)
    def fill_a():
        if late == 1:
            for g in dma_a(1):
                for x in g: a(x)
            vm.add('s1', 4)
        if opt.get('s2fill', 0):
            for g in dma_a(2):
                for x in g: a(x)
            vm.add('s2', 4)
        else:
            a('s_nop 5')
            pend.extend(('s2', g) for g in dma_a(2))
    a('s_waitcnt lgkmcnt(10)')
    pend = []
    def a_start(t):
        if t % 4 == 1 and t <= 29:
            s = (t + 3)//4
            if s >= 2 or late == 1:
                a(f's_waitcnt vmcnt({vm.wait_for(f"s{s}")})' + (' lgkmcnt(0)' if s >= 7 else ''))
            a('s_barrier')
            assert not pend or s == 1
            if s + 2 <= 8:
                pend.extend((f's{s+2}', g) for g in dma_a(s + 2))
            elif s == 7:
                mksrd(a, R3, P_AWO, 448*896)
                if opt.get('w2touch', 1):
                    a('s_and_b32 s46, s36, 3')
                    a('s_lshl_b32 s46, s46, 2')
                    a('s_add_u32 s46, s46, s35')
                    a('s_mul_i32 s46, s46, 14')
                    a('s_add_u32 s46, s46, 224')
                    a('v_min_u32 v3, 13, v1')
                    a('v_add_u32 v3, s46, v3')
                    a('v_mul_u32_u24 v3, 896, v3')
                    a('s_lshl_b32 s46, s37, 7')
                    a(f'buffer_load_dword v{VPOLL}, v3, {sr(R3,4)}, s46 offen')
                    vm.add('touch')
                pend.extend(pairs('wo', dma_wo(R0, W1_SLOT[1], 1) + dma_wo(R0, W1_SLOT[2], 2)))
            else:
                pend.extend(pairs('wo', dma_wo(R3, W2_SLOT[1], 1) + dma_wo(R3, W2_SLOT[0], 0)))
        if t == opt.get('ta9', 36):
            a(f's_waitcnt vmcnt({vm.wait_for("wo")}) lgkmcnt(0)')
            a('s_barrier')
            stamp(a, 'B9')
        if t == opt.get('st_t0', 3) + opt.get('st_lag', 7):
            a(f's_waitcnt vmcnt({vm.wait_for("st")})')
            flag_store(a, 4, 's3')
            vm.add('fl')
    def a_slot(t):
        st0 = opt.get('st_t0', 3)
        if st0 <= t < st0 + 3:
            t -= st0
            tile_stores(a, PKA+8*t, PKA+24, SOFF[t], SC)
            vm.add('st', 2)
            t += st0
        for rep in range(2 if (t < 3 and not opt.get('s2fill', 0)) else 1):
            if pend:
                tag, g = pend.pop(0)
                for x in g: a(x)
                vm.add(tag, sum('buffer_load' in x for x in g))
    def a_end(t):
        def comb_reads():
            if opt.get('cflag', 1): a('ds_read_b32 v26, v27')
            for i in range(4):
                a(f'ds_read_b128 {vr(OA+4*i,4)}, v7 offset:{i*1024}')
        if t == opt.get('crd_t', 32):
            a(f'v_add_u32 v7, {COMB}, v{VD}')
            a(f's_lshl2_add_u32 s46, s35, {FBFLAG + 48}')
            a('v_mov_b32 v27, s46')
            comb_reads()
        if t == 34 and opt.get('cflag', 1):
            a.label('L_comb_chk')
            a('v_cmp_ne_u32 vcc, 0, v26')
            a('s_cbranch_vccnz L_comb_ok')
            comb_reads()
            a('s_waitcnt lgkmcnt(0)')
            a('s_branch L_comb_chk')
            a.label('L_comb_ok')
        if t == 28:
            gate_factor(a, +1)
        if t == 33:
            p3_bases(a, W1_SLOT)
        if t == opt.get('touch_t', 20):
            p2_vec2(a)
    pipeline(a, 36, rd_a, lambda t: QB, lambda t: OB, lambda t: '0', a_start, a_slot, a_end, 'a', fill_a)
    if opt.get('ta9', 36) == 36:
        a(f's_waitcnt vmcnt({vm.wait_for("wo")}) lgkmcnt(0)')
        a('s_barrier')
    a('s_setprio 3')
    flag_prep(a, 24, 0)
    a('s_nop 7')
    stamp(a, 'endP')
    for r in range(16):
        a(f'v_add_f32 v{OB+r}, v{OB+r}, v{OA+r}')
    finalize(a, OB, 44, 45)
    stamp(a, 'st2')
    fbflag_publish(a)
    if opt.get('ta9', 36) > 36:
        a('s_waitcnt vmcnt(2) lgkmcnt(0)')
        a('s_barrier')
    for g in dma_wo(R3, W2_SLOT[2], 2) + dma_wo(R3, W2_SLOT[3], 3):
        for x in g: a(x)
    p3_addr(a)
    if not opt.get('aprio', 1): a('s_setprio 0')
    a('s_waitcnt vmcnt(8)')
    flag_fire(a, 24, 's51', 0, PACK[0])
    stamp(a, 'fs')
    if opt.get('aearly', 1): spoll_issue(a, LO)
    p3_trs(a, 0)
    a('s_waitcnt vmcnt(1) lgkmcnt(6)')
    if not opt.get('aearly', 1): spoll_issue(a, LO)
    lds_post(a, 16)
    stamp(a, 'w2')
    a('s_branch L_p3')

    a.label('L_a_fallback')
    for r in SOFF + [3]:
        a(f's_mov_b32 s{r}, 0x40000000')
    for r in range(3):
        a(f'v_mov_b32 v{PKA+24+r}, 0')
    a('s_barrier')
    a('s_branch L_a_restart')

    a.label('L_exit')
    dump_stamps(a, 0)
    a.label('L_done')
    a('s_endpgm')
    return 256

DOC = """;
"""
def build(path, **opt):
    global SLEEP2, FULLFLAG, BST
    BST = opt.get('bst', 'sc1')
    KVF[0] = opt.get('kvf', 'sc1')
    REORD[0] = opt.get('reord', 1); EPIW[0] = opt.get('epiw', 3)
    FULL[0] = opt.get('full', 1)
    PACK[0] = opt.get('pack', 0)
    SWAPH[0] = opt.get('swaph', 0)
    XP.clear(); XP.update(opt.get('xp', {}))
    XNOWO[:] = [1] if opt.get('x_nowo') else []
    P1_BARS[:] = opt.get('bars', [0, 1, 2, 3, 4, 5, 6, 7, 10, 12])
    PV.clear(); PV.update(opt.get('pv', dict(slot=1, prio='dec', lag=3, altend=29)))
    SLEEP2 = opt.get('sleep2', 3); FULLFLAG = opt.get('fullflag', 1)
    a = Asm()
    hdr = open('cdna_kernels/' + NAME + '.s.ref').read().split('\n')
    head = [l for l in hdr if l.startswith(';') and '@launch' not in l]
    out = '\n'.join(head) + '\n'
    out += f'; @launch grid=(256,1,1) block=(512,1,1) lds={LDS_SIZE}\n'
    out += DOC
    out += '.amdgcn_target "amdgcn-amd-amdhsa--gfx950"\n.text\n'
    v = gen(a, NAME + '_kernel', opt)
    out += a.text()
    out += '.section .rodata,"a"\n.p2align 6\n'
    out += kernel_desc(NAME + '_kernel', v, 102)
    open(path, 'w').write(out)

SETS = {
 'A': ['g0', 'g1', 'g5', 'g6', 'endB', 'g7', 'g10', 'g12'],
 'B': ['preF', 'flagB', 'pb', 'poll0', 'f1b', 'endA', 'preB0', 'B0'],
 'C': ['B0', 'p0', 'q1', 'q5', 'q9', 'q17', 'q25', 'endP'],
 'D': ['endP', 'st2', 'B9', 'flag2', 'f2b', 'mfB', 'preC', 'C'],
 'E': ['endP', 'flag2', 'C', 'f2a', 'mfA', 'st'],
 'H': ['st2', 'p2w', 'fs', 'f2b0', 'f2bx', 'f2b1', 'f2b2', 'f2b'],
 'I': ['endB', 'g7', 'flagB', 'g12', 'f1b', 'preB0', 'B0', 'endP'],
 'J': ['st2', 'flag2', 'fack', 'fs', 'f2b', 'mfB', 'C', 'f2a'],
 'K': ['endP', 'st2', 'fs', 'w2', 'f2b', 'f2a', 'mfA', 'X'],
 'L': ['B9', 'C', 'f2a', 'mfB', 'mfA', 'X', 'st'],
 'M': ['g1', 'g6', 'endB', 'g7', 'flagB', 'g12', 'preB0', 'B0'],
 'N': ['g1', 'endB', 'g7', 'preF', 'flagB', 'g12', 'f1b', 'endA'],
 'O': ['B0', 'q1', 'q5', 'q9', 'q17', 'q25', 'q33', 'endP'],
 'P': ['f1b', 'shift', 'preB0', 'B0', 'p0', 'q1', 'q5', 'endP'],
 'Q': ['q1', 'q5', 'q9', 'q13', 'q17', 'q21', 'q25', 'q29'],
 'R': ['q25', 'q29', 'endP', 'st2', 'fs', 'f2a', 'mfA', 'X'],
 'S': ['g1', 'g2', 'g6', 'g7', 'g10', 'g12', 'f1b', 'endA'],
 'T': ['pre', 'karg', 'i0', 'i1', 'g0', 'g1', 'g2', 'g6'],
 'U': ['g1', 'h1', 'g2', 'h2', 'g3', 'h6', 'endB', 'endA'],
 'Z': [],
 'F': ['g6', 'endB', 'g7', 'preF', 'flagB', 'g10', 'g12', 'B0'],
 'G': ['q17', 'q21', 'q25', 'p29', 'q30', 'p33', 'q33', 'endP'],
}
def build_all(tag, sets='ABCDE', **opt):
    common.DIAG = False
    build(f'work/{tag}.s', **opt)
    common.DIAG = True
    for k in sets:
        common.STAMPS = SETS[k]
        build(f'work/{tag}_{k}.s', **opt)
        s = open(f'work/{tag}_{k}.s').read()
        open(f'work/{tag}_{k}.s', 'w').write('; STAMPS start ' + ' '.join(SETS[k]) + '\n' + s)
    common.DIAG = False

if __name__ == '__main__':
    build_all('v22', 'Z')
```

```python
import sys, fused
B = {0: [2], 1: [3], 2: [4], 3: [5], 4: [6]}
pv = lambda **k: dict(dict(slot=1, prio='dec', lag=3, altend=29), **k)
V = eval(open(sys.argv[1]).read())
for k, o in V.items():
    fused.build_all(k, 'Z', **o)
print(' '.join(f'{k}_Z.s' for k in V))
print(', '.join(f'"work/{k}_Z.s"' for k in V))
```

```python
import sys
from common import *
import common

WS_F1 = 20 << 20
WS_F2 = WS_F1 + 262144
NONCE = 100
XRING = 0
WE = 65536
WRING = 98304
GATE = 159744
ZBUF = 161792
FBFLAG = 162304
LDS_SIZE = 163840
QBUF = 32768
COMB = 65536
W1_SLOT = [147456, 16384, 32768, 81920]
W2_SLOT = [98304, 49152, 0, 65536]

VARIANTS = ['QQQ', 'QKK', 'KKK', 'KKV', 'VVV']
SC = 'sc1'
SPIN_LIMIT = 1 << 16
SLEEP2 = 2
FULLFLAG = 1

P_X, P_AW, P_AWO, P_BW, P_BWO, P_G, P_OUT, P_DBG, P_WS = 4, 6, 8, 12, 14, 16, 18, 20, 22
R0, RWS, R1, R2, R3 = 24, 28, 64, 68, 96

def mksrd(a, d, p, nbytes):
    srd(a, d, p, p+1, nbytes)

def dispatch(a, sreg, prefix):
    a(f's_cmp_lt_u32 s{sreg}, 5')
    a(f's_cbranch_scc1 {prefix}_QQQ')
    a(f's_cmp_eq_u32 s{sreg}, 5')
    a(f's_cbranch_scc1 {prefix}_QKK')
    a(f's_cmp_lt_u32 s{sreg}, 10')
    a(f's_cbranch_scc1 {prefix}_KKK')
    a(f's_cmp_eq_u32 s{sreg}, 10')
    a(f's_cbranch_scc1 {prefix}_KKV')
    a(f's_branch {prefix}_VVV')

def window(a, cb_s, ws0_s, co_s, t):
    a(f's_mul_i32 s{ws0_s}, s{cb_s}, 168')
    a(f's_and_b32 s{co_s}, s{ws0_s}, 15')
    a(f's_sub_u32 s{ws0_s}, s{ws0_s}, s{co_s}')

def wslot(g):
    if g < 7: return WRING + (g % 5)*12288
    return {7: WE, 8: WE + 12288, 9: WRING + 2*12288, 10: 0, 11: WRING + 3*12288, 12: 49152, 13: WRING + 4*12288}[g]

def spin_mask(a, vdata, vaddr, soff, name, sleep, loaded=False, need=None):
    ok, lp = a.new(name + '_ok'), a.new(name + '_lp')
    a(f's_mov_b32 s61, {SPIN_LIMIT}')
    if not loaded:
        a(f'buffer_load_dwordx2 {vr(vdata,2)}, v{vaddr}, {sr(RWS,4)}, {soff} offen {SC}')
        a('s_waitcnt vmcnt(0)')
        stamp(a, 'poll0')
    a.label(lp)
    a(f'v_cmp_ne_u64 vcc, {sr(NONCE,2)}, {vr(vdata,2)}')
    a('s_sub_u32 s61, s61, 1')
    a('s_cselect_b64 vcc, 0, vcc')
    if need is None:
        a(f's_cbranch_vccz {ok}')
    else:
        a(f's_and_b32 s46, vcc_lo, {need}')
        a('s_or_b32 s46, s46, vcc_hi')
        a(f's_cbranch_scc0 {ok}')
    a('s_mov_b64 exec, vcc')
    if sleep: a(f's_sleep {sleep}')
    a(f'buffer_load_dwordx2 {vr(vdata,2)}, v{vaddr}, {sr(RWS,4)}, {soff} offen {SC}')
    a('s_waitcnt vmcnt(0)')
    a(f's_branch {lp}')
    a.label(ok)
    a('s_mov_b64 exec, -1')

def get_nonce(a, vdata, name):
    ok, lp = a.new(name + '_ok'), a.new(name + '_lp')
    a(f's_mov_b32 s61, {SPIN_LIMIT}')
    a.label(lp)
    a(f'v_cmp_eq_u32 vcc, 0, v{vdata}')
    a('s_sub_u32 s61, s61, 1')
    a('s_cselect_b64 vcc, 0, vcc')
    a(f's_cbranch_vccz {ok}')
    a('s_sleep 8')
    a(f'buffer_load_dwordx2 {vr(vdata,2)}, off, {sr(R3,4)}, 0 {SC}')
    a('s_waitcnt vmcnt(0)')
    a(f's_branch {lp}')
    a.label(ok)
    a(f'v_readfirstlane_b32 s{NONCE}, v{vdata}')
    a(f'v_readfirstlane_b32 s{NONCE+1}, v{vdata+1}')
    a('s_nop 1')

XR = [8, 9]
WRB, WRA, WRE, WRL = 12, 13, 6, 5
VST, VPAD = 14, 7
WB = [16, 24, 32, 40]
PK = 52
ACC = 80
XF = 128
VGO = 76
VGA = 79
ZD = 240
ZG = [24+8, 24+12, 40, 44]
NZ1 = 10
WP = 176
NU = 42

XP = {}
REORD = [1]
def sub(u):
    if REORD[0] and u >= 36:
        return 12 + (u - 36) % 2, (u - 36)//2
    return u//3, u % 3

def group(isA, u):
    if u >= NU: return []
    N, i = sub(u)
    g = (7 if isA else 0) + N//2
    if g < 7: base, off = WRB, wslot(g) - WRING
    elif g < 9: base, off = WRE, wslot(g) - WE
    elif g in (10, 12): base, off = WRL, wslot(g)
    else: base, off = WRA, wslot(g) - WRING
    L = []
    if not isA and i == 0:
        for st in range(2):
            L.append(f'ds_read_b128 {vr(XF+8*N+4*st,4)}, v{XR[N%2]} offset:{XRING + ((N//2)%4)*16384 + st*2048}')
    for dt in range(2):
        for e in range(2):
            L.append(f'ds_read_b64_tr_b16 {vr(WB[u%4]+4*dt+2*e,2)}, v{base} offset:{off + (N%2)*32*WP + e*WP + i*56 + dt*32}')
    if not isA and i == 2 and N < NZ1:
        L.append(f'ds_read_b128 {vr(XF+8*(N+4),4)}, v{VGA} offset:{N*64}')
    return L

def first_reads(a, isA):
    for u in range(3):
        for x in group(isA, u): a(x)

def zmfma(a, N, greg):
    for st in range(2):
        a(f'v_mfma_f32_16x16x32_bf16 {vr(ZD+4*st,4)}, {vr(greg,4)}, {vr(XF+8*N+4*st,4)}, {"0" if N == 0 else vr(ZD+4*st,4)}')

P1_BARS = [0, 1, 2, 3, 4, 5, 6, 7, 10, 12]
def gemm_pass(a, var, isA, hook, epi):
    pend = []
    for u in range(NU):
        N, i = sub(u)
        nx = list(group(isA, u+3))
        young = len(group(isA, u+1)) + len(group(isA, u+2))
        a(f's_waitcnt lgkmcnt({young})')
        if young + len(nx) > 15:
            nx[-1] = 's_waitcnt lgkmcnt(14)\n' + nx[-1]
        if u + 3 < NU and (u+3) % 6 == 0:
            g = (7 if isA else 0) + (u+3)//6
            if g in P1_BARS:
                stamp(a, f'g{g}')
                a('s_barrier')
                stamp(a, f'h{g}')
        if REORD[0] and u in (39, 41):
            pend += epi[(u - 39)//2]
        cut = {0: [0, 0, 0, 0, 0], 4: [0, 1, 2, 3, 4], 5: [0, 2, 3, 4, 5], 6: [0, 2, 4, 5, 6]}[len(nx)]
        for q, (dt, st) in enumerate(((0, 0), (0, 1), (1, 0), (1, 1))):
            xf = vr(XF+8*N+4*st, 4); wf = vr(WB[u%4]+4*dt, 4)
            if var[i] == 'V':
                d = vr(ACC+16*i+8*dt+4*st, 4)
                a(f'v_mfma_f32_16x16x32_bf16 {d}, {xf}, {wf}, {"0" if N == 0 else d}')
            else:
                d = vr(ACC+16*i+8*st+4*dt, 4)
                a(f'v_mfma_f32_16x16x32_bf16 {d}, {wf}, {xf}, {"0" if N == 0 else d}')
            for x in nx[cut[q]:cut[q+1]]: a(x)
            k = 0
            while pend and k < EPIW[0]:
                g = pend.pop(0)
                for x in g: a(x)
                k += len(g)
            if u == 40 and q == 3: a('s_nop 1')
        if i == 2 and not isA and N < NZ1:
            zmfma(a, N, XF+8*(N+4))
        hook(u)
    stamp(a, 'endA0' if isA else 'endB')
    if REORD[0] and sum(len(g) for g in pend) < 8:
        a('s_nop 7')
    for g in pend + sum(epi[(2 if REORD[0] else 0):], []):
        for x in g: a(x)
EPIW = [2]

SOFF = [47, 59, 16]
SOFFB = [54, 55, 17]
def store_offsets(a, var, cb_s, br):
    SOFF = SOFFB if br else globals()['SOFF']
    a(f's_mul_i32 s58, s{cb_s}, 3')
    for i in range(3):
        a(f's_add_u32 s61, s58, {i}')
        a('s_and_b32 s61, s61, 15')
        a('s_lshl_b32 s61, s61, 6')
        a('s_add_u32 s61, s61, s40')
        ty = var[i]
        if ty == 'Q':
            a(f's_lshl_b32 s61, s61, 11')
            a(f's_add_u32 s{SOFF[i]}, s61, {WS_Q + br*1024*2048}')
        else:
            a(f's_lshl_b32 s61, s61, 12')
            a(f's_add_u32 s{SOFF[i]}, s61, {br*1024*4096 + (2048 if ty == "V" else 0)}')

PKA = 192
def prefill(a, var, PK=PK):
    for i in range(3):
        p = PK + 8*i
        ty = var[i]
        if ty == 'V':
            for r in range(4, 8):
                a(f'v_mov_b32 v{p+r}, v{VPAD}')
        else:
            for st in range(2):
                a(f'v_mov_b32 v{p+4*st+2}, {"0" if ty == "Q" else "0x3f803f80"}')
                a(f'v_mov_b32 v{p+4*st+3}, {"0" if ty == "Q" else "0x3f80"}')

def tile_stores(a, p, va, soff, fl):
    a(f'buffer_store_dwordx4 {vr(p,4)}, v{va}, {sr(RWS,4)}, s{soff} offen {fl}')
    a(f'buffer_store_dwordx4 {vr(p+4,4)}, v{va}, {sr(RWS,4)}, s{soff} offen offset:256 {fl}')

def p1_epi(var, PK, stores):
    E = []
    for i in range(3):
        ty = var[i]
        d = ACC + 16*i; p = PK + 8*i
        cvt = lambda r: f'v_cvt_pk_bf16_f32 v{p+r}, v{d+2*r}, v{d+2*r+1}'
        G = []
        if ty == 'Q':
            if i == 2: G += [[f'v_pk_mul_f32 {vr(d+r,2)}, {vr(d+r,2)}, s[50:51]'] for r in range(0, 16, 2)]
            else: G += [[f'v_mul_f32 v{d+r}, s50, v{d+r}'] for r in range(16)]
        if ty == 'V':
            G += [[cvt(r)] for r in range(4)]
            G.append(['s_mov_b32 exec_lo, 0x0fff0fff', 's_mov_b32 exec_hi, 0x0fff0fff'] + [cvt(r) for r in range(4, 8)] + ['s_mov_b64 exec, -1'])
        else:
            G += [[cvt(r)] for r in (0, 1, 4, 5)]
            G.append(['s_mov_b32 exec_hi, 0xffff'] + [cvt(r) for r in (2, 3, 6, 7)] + ['s_mov_b32 exec_hi, -1'])
        if stores:
            G.append([f'buffer_store_dwordx4 {vr(p,4)}, v{VST}, {sr(RWS,4)}, s{SOFFB[i]} offen {SC}'])
            G.append([f'buffer_store_dwordx4 {vr(p+4,4)}, v{VST}, {sr(RWS,4)}, s{SOFFB[i]} offen offset:256 {SC}'])
        E.append(G)
    return E

def flag_prep(a, tmp, va=2):
    a(f'v_lshlrev_b32 v{va}, 3, v1')
    a(f'v_mov_b32 v{tmp}, s{NONCE}')
    a(f'v_mov_b32 v{tmp+1}, s{NONCE+1}')

def flag_fire(a, tmp, soff, va=2, one=False):
    a('s_mov_b64 exec, 1' if one else 's_mov_b64 exec, 0xffff')
    a(f'buffer_store_dwordx2 {vr(tmp,2)}, v{va}, {sr(RWS,4)}, {soff} offen {SC}')
    a('s_mov_b64 exec, -1')

def flag_store(a, tmp, soff):
    flag_prep(a, tmp)
    flag_fire(a, tmp, soff)

RA, RBA, RB0, RB1, VD, IDX, VZ, VWO = 8, 9, 10, 11, 12, 13, 14, 15
QB, QA, OB, OA, S0, K0, V0, CD, CE = 16, 24, 32, 48, 64, 128, 160, 192, 208
VA0 = 224
VSAV = 228
VPOLL = 232
VPA = 236
VZERO, VONE = 237, 227
VTAG = 238
VP2 = 234
VTMP = 240
KOF = {8: 248, 9: 249, 10: 250, 11: 251}
NEGBIG = 0xff000000
LOG2E = f32bits(math.log2(math.e))

PV = {}
def Sb(t): return S0 + 16*(t % 4)
def Kb(t): return K0 + 8*(t % 4)
def Vb(t): return V0 + 8*(t % 4)

def qk(a, d, k, q, cin, half):
    if PV.get('qk16') and PV.get('inpipe'):
        for u in range(2):
            a(f'v_mfma_f32_16x16x32_bf16 {vr(d+8*half+4*u,4)}, {vr(k+4*half,4)}, {vr(q+4*u,4)}, 0')
        return
    if half == 0:
        a(f'v_mfma_f32_32x32x16_bf16 {vr(d,16)}, {vr(k,4)}, {vr(q,4)}, {cin}')
    else:
        a(f'v_mfma_f32_32x32x16_bf16 {vr(d,16)}, {vr(k+4,4)}, {vr(q+4,4)}, {vr(d,16)}')

def rowmax(a, s, out, t1, t2):
    a(f'v_max3_f32 v{out}, v{s}, v{s+1}, v{s+2}')
    a(f'v_max3_f32 v{t1}, v{s+3}, v{s+4}, v{s+5}')
    a(f'v_max3_f32 v{out}, v{out}, v{s+6}, v{s+7}')
    a(f'v_max3_f32 v{t1}, v{t1}, v{s+8}, v{s+9}')
    a(f'v_max3_f32 v{out}, v{out}, v{s+10}, v{s+11}')
    a(f'v_max3_f32 v{t1}, v{t1}, v{s+12}, v{s+13}')
    a(f'v_max3_f32 v{out}, v{out}, v{s+14}, v{s+15}')
    a(f'v_max_f32 v{t1}, v{out}, v{t1}')
    a(f'v_mov_b32 v{t2}, v{t1}')
    a('s_nop 1')
    a(f'v_permlane32_swap_b32 v{t1}, v{t2}')
    a('s_nop 1')
    a(f'v_max_f32 v{out}, v{t1}, v{t2}')

def zero16(a, r):
    for i in range(0, 16, 2):
        a(f'v_mov_b64 {vr(r+i,2)}, 0')

KVF = ['sc1']
def dma_tile(srdn, m0base_s, m0imm, soff_imm, voff=VD, soff_s=None):
    L = []
    for f in range(4):
        g = []
        if f == 0:
            g.append(f's_add_u32 m0, s{m0base_s}, {m0imm}')
            g.append(f's_mov_b32 s48, {soff_imm}' if soff_s is None else 's_nop 0')
        so = 's48' if soff_s is None else soff_s
        g.append(f'buffer_load_dwordx4 v{voff}, {sr(srdn,4)}, {so} offen offset:{f*1024} {KVF[0]} lds')
        L.append(g)
    return L

XNOWO = []
def dma_wo(srdn, slot, kq):
    if XNOWO: return [['s_nop 0'] for i in range(4)]
    L = []
    for i in range(4):
        if i < 2:
            g = [f's_add_u32 m0, s39, {slot + i*1024}', f's_mov_b32 s48, {(kq*112 + 8*i)*896}']
        else:
            g = [f's_add_u32 m0, s62, {slot + i*1024}', f's_add_u32 s48, s49, {(kq*112 + 8*i)*896}']
        g.append(f'buffer_load_dwordx4 v{VWO}, {sr(srdn,4)}, s48 offen lds')
        L.append(g)
    return L

def set_shift(a, s, q, sav, cin, kreg, quick=0):
    l1, l2 = a.new('fbq'), a.new('fbq_e')
    a.c('row shift: maximum over one key tile, or the true row maximum on a rerun')
    a('s_cmp_lg_u32 s60, 0')
    a(f's_cbranch_scc1 {l1}')
    qk(a, s, kreg, q, cin, 0)
    qk(a, s, kreg, q, None, 1)
    a('s_nop 11')
    if quick:
        for k in range(5):
            a(f'v_max3_f32 v{s+3*k}, v{s+3*k}, v{s+3*k+1}, v{s+3*k+2}')
        a(f'v_max3_f32 v2, v{s}, v{s+3}, v{s+15}')
        a(f'v_max3_f32 v3, v{s+6}, v{s+9}, v{s+12}')
        a('v_max_f32 v2, v2, v3')
    else:
        rowmax(a, s, 2, 3, 4)
    a('s_mov_b32 exec_lo, 0')
    a(f'v_cvt_pk_bf16_f32 v{q+6}, -v2, 0')
    a('s_mov_b32 exec_lo, -1')
    a(f's_branch {l2}')
    a.label(l1)
    a('s_mov_b32 exec_lo, 0')
    a(f'v_mov_b64 {vr(q+6,2)}, {vr(sav,2)}')
    a('s_mov_b32 exec_lo, -1')
    a.label(l2)
    a('s_nop 1')

def check(a, o, lower, dst=58):
    a(f'v_cmp_nle_f32 s[52:53], v{o+12}, s56')
    if lower:
        a(f'v_cmp_nge_f32 s[54:55], v{o+12}, s57')
        a('s_or_b32 s53, s53, s55')
    a(f's_or_b32 s{dst}, s{dst}, s53')

VGF = 234
def gate_factor(a, sign):
    a(f'v_mul_f32 v{VGF}, {LOG2E if sign > 0 else (LOG2E ^ 0x80000000)}, v{VZ}')
    a(f'v_exp_f32 v{VGF}, v{VGF}')
    a(f'v_mov_b32 v{VTMP+6}, 0')
    a(f'v_mov_b32 v{VTMP+7}, 0')
    a(f'v_add_f32 v{VGF}, 1.0, v{VGF}')

def finalize(a, o, data_s, flag_s):
    a.c('row sums outside 2^-40..2^40 (or NaN) request a rerun with the true maxima; nothing is published then')
    a(f'v_mul_f32 v2, v{o+12}, v{VGF}')
    a(f'v_cmp_nle_f32 s[52:53], v{o+12}, s56')
    a('v_rcp_f32 v2, v2')
    a(f'v_cmp_nge_f32 s[54:55], v{o+12}, s57')
    a('v_mov_b32 v4, v2')
    a('s_or_b32 s58, s53, s55')
    a('s_cmp_lg_u32 s60, 0')
    a('v_permlane32_swap_b32 v2, v4')
    a('s_cselect_b32 s58, 0, s58')
    if PV.get('nofb'): a('s_mov_b32 s58, 0')
    a('s_or_b32 s46, s58, s63')
    p = VTMP
    for h in range(2):
        for r in range(8*h, 8*h + 8):
            a(f'v_mul_f32 v{o+r}, v{o+r}, v4')
        if h == 0:
            a(f's_cselect_b32 s50, 0x40000000, s{data_s}')
            a(f's_cselect_b32 s51, 0x40000000, s{flag_s}')
            a('s_cselect_b32 s63, s63, 1')
        for r in range(4*h, 4*h + 4):
            if r == 6: a('s_mov_b32 exec_hi, 0')
            a(f'v_cvt_pk_bf16_f32 v{p+r}, v{o+2*r}, v{o+2*r+1}')
        if h == 1: a('s_mov_b32 exec_hi, -1')
        a(f'buffer_store_dwordx4 {vr(p+4*h,4)}, v{RA}, {sr(RWS,4)}, s50 offen offset:{1024*h} {SC}')

def finalize_store(a, soff):
    p = VTMP
    a(f'buffer_store_dwordx4 {vr(p,4)}, v{RA}, {sr(RWS,4)}, s{soff} offen {SC}')
    a(f'buffer_store_dwordx4 {vr(p+4,4)}, v{RA}, {sr(RWS,4)}, s{soff} offen offset:1024 {SC}')

def fbflag_publish(a):
    skip = a.new('noflag')
    a('s_cmp_eq_u32 s58, 0')
    a(f's_cbranch_scc1 {skip}')
    a(f'v_mov_b32 v2, {FBFLAG}')
    a(f'ds_write_b32 v2, v{VONE}')
    a.label(skip)

def split3(a, s, sav):
    rowmax(a, s, 2, 3, 4)
    a('v_cvt_pk_bf16_f32 v3, -v2, 0')
    a('v_lshlrev_b32 v4, 16, v3')
    a('v_sub_f32 v2, -v2, v4')
    a('v_cvt_pk_bf16_f32 v5, v2, 0')
    a('v_lshlrev_b32 v4, 16, v5')
    a('v_sub_f32 v2, v2, v4')
    a(f'v_or_b32 v{sav}, v3, v4')
    a(f'v_cvt_pk_bf16_f32 v{sav+1}, v2, 0')

def true_max_B(a):
    a('s_mov_b32 exec_lo, 0')
    a(f'v_mov_b64 {vr(QB+6,2)}, 0')
    a('s_mov_b32 exec_lo, -1')
    for i in range(16):
        a(f'v_mov_b32 v{Sb(1)+i}, {NEGBIG}')
    a('s_mov_b32 s48, 0')
    lp = a.new('fbB')
    a.label(lp)
    a(f'buffer_load_dwordx4 {vr(K0,4)}, v{RA}, {sr(R2,4)}, s48 offen {SC}')
    a(f'buffer_load_dwordx4 {vr(K0+4,4)}, v{RA}, {sr(R2,4)}, s48 offen offset:1024 {SC}')
    a('s_waitcnt vmcnt(0)')
    qk(a, Sb(0), K0, QB, '0', 0)
    qk(a, Sb(0), K0, QB, None, 1)
    a('s_nop 15')
    for i in range(16):
        a(f'v_max_f32 v{Sb(1)+i}, v{Sb(1)+i}, v{Sb(0)+i}')
    a('s_add_u32 s48, s48, 4096')
    a(f's_cmp_lt_u32 s48, {64*4096}')
    a(f's_cbranch_scc1 {lp}')
    split3(a, Sb(1), VSAV)

class VM:
    def __init__(self): self.q = []
    def add(self, tag, n=1): self.q += [tag]*n
    def wait_for(self, *tags):
        last = max((i for i, t in enumerate(self.q) if t in tags), default=-1)
        n = len(self.q) - 1 - last
        self.q = self.q[last+1:]
        return n

def pipeline(a, N, rd_addr, qreg, oreg, cin, at_start, at_slot, at_end, name, fill):
    def rd(t, f):
        if t >= N: return
        if PV.get('halfrd') and f % 2 and 4 < t and not (name == 'b' and t >= 28): return
        base, off = rd_addr(t)
        dst = (Kb(t) + 4*f) if f < 2 else (Vb(t) + 4*(f-2))
        a(f'ds_read_b128 {vr(dst,4)}, v{KOF[base] if f < 2 else base} offset:{off + f*1024}')
    qk(a, Sb(0), Kb(0), qreg(0), cin(0), 0)
    qk(a, Sb(0), Kb(0), qreg(0), None, 1)
    fill()
    a('s_waitcnt lgkmcnt(8)')
    a('s_nop 1')
    if 'al' + name in PV:
        a(f'.p2align {PV.get("alp", 3)}')
        if PV['al' + name]: a('s_nop 0')
    mode = PV.get('slot', 0)
    PV['inpipe'] = 1
    def pv(o, v, sreg):
        if PV.get('dense'):
            for u in range(4):
                a(f'v_cvt_pk_bf16_f32 v{sreg+u}, v{sreg+2*u}, v{sreg+2*u+1}')
            a('s_nop 1')
            a(f'v_mfma_f32_32x32x16_bf16 {vr(o,16)}, {vr(v,4)}, {vr(sreg,4)}, {vr(o,16)}')
        else:
            a(f'v_smfmac_f32_32x32x32_bf16 {vr(o,16)}, {vr(v,4)}, {vr(sreg,8)}, v{IDX}')
    for t in range(N):
        a.c(f'--- {name} period {t}')
        stamp(a, f'p{t}')
        if t in (9, 17) and not XP and common.STAMPS: cstamp(a, 0 if t == 9 else 1)
        at_start(t)
        stamp(a, f'q{t}')
        n0 = len(a.lines)
        at_slot(t)
        slot = a.lines[n0:]
        del a.lines[n0:]
        pre = []
        if mode >= 1:
            while slot and slot[0].strip().startswith(('s_add', 's_mov', 's_nop')) and 'exec' not in slot[0]:
                pre.append(slot.pop(0))
        e = lambda i: a(f'v_exp_f32 v{Sb(t)+i}, v{Sb(t)+i}')
        if PV.get('exp16'): e = lambda i: a(f'v_exp_f16 v{Sb(t)+i}, v{Sb(t)+i}')
        if PV.get('expleg'): e = lambda i: a(f'v_exp_legacy_f32 v{Sb(t)+i}, v{Sb(t)+i}')
        if t + 1 < N:
            qk(a, Sb(t+1), Kb(t+1), qreg(t+1), cin(t+1), 0)
        if PV.get('prio') == 'alt':
            ae = PV.get('altend', 25)
            if t < ae: a(f's_setprio {(t + (name == "b")) % 2}')
            elif t == ae: a(f's_setprio {int(name == "b" and ae < 29)}')
            elif t == 29 and name == 'b': a('s_setprio 0')
        dec = PV.get('prio') == 'dec'
        ae = PV.get('altend', 25)
        lag = PV.get('lag', 0) if name == 'b' else PV.get('laga', 0)
        def setp(pos):
            if not dec: return
            if t < ae:
                k = (t - 1) % 4
                if pos == (0 if k == 0 else lag): a(f's_setprio {3 - k}')
            elif pos == 0:
                if t == ae: a(f's_setprio {int(name == "b" and ae < 29)}')
                elif t == 29 and name == 'b': a('s_setprio 0')
        setp(0)
        if PV.get('prio') == 'b' and t == 0 and name == 'b': a('s_setprio 1')
        if PV.get('prio') == 'alt2': a(f's_setprio {(t//2 + (name == "b")) % 2}')
        if mode == 3:
            a.lines.extend(pre[:1])
        rd(t+3, 0)
        if mode in (1, 2): a.lines.extend(pre[:1])
        if t == 0:
            a('s_nop 3')
        for i in range(0, 4): e(i)
        if t + 1 < N:
            qk(a, Sb(t+1), Kb(t+1), qreg(t+1), None, 1)
        setp(1)
        if mode == 3:
            a.lines.extend(pre[1:])
        rd(t+3, 1)
        if mode in (1, 2): a.lines.extend(pre[1:])
        for i in range(4, 8): e(i)
        if t >= 1:
            pv(oreg(t-1), Vb(t-1)+4, Sb(t-1)+8)
        setp(2)
        if t + 2 < N:
            a(f's_waitcnt lgkmcnt({2 + (2 if t + 3 < N else 0)})')
        elif t + 2 == N:
            a('s_waitcnt lgkmcnt(0)')
        rd(t+3, 2)
        early3 = mode == 4 or t in PV.get('early', (24, 28))
        if early3: rd(t+3, 3)
        for i in range(8, 12): e(i)
        pv(oreg(t), Vb(t), Sb(t))
        setp(3)
        if mode in (2, 3):
            a.lines.extend(slot)
            rd(t+3, 3)
        elif mode == 4:
            a.lines.extend(pre + slot)
        else:
            if not early3: rd(t+3, 3)
            a.lines.extend(slot)
        for i in range(12, 16): e(i)
        at_end(t)
    PV['inpipe'] = 0
    a('s_nop 1')
    t = N - 1
    a(f'v_smfmac_f32_32x32x32_bf16 {vr(oreg(t),16)}, {vr(Vb(t)+4,4)}, {vr(Sb(t)+8,8)}, v{IDX}')

PACK = [0]
def p2_scalars(a):
    a('s_lshl_b32 s39, s35, 12')
    a('s_lshl_b32 s40, s32, 2')
    a('s_add_u32 s40, s40, s35')
    a('s_mov_b32 s60, 0')
    a('s_lshl_b32 s41, s33, 6')
    a('s_add_u32 s41, s41, s40')
    a('s_lshl_b32 s41, s41, 11')
    a(f's_add_u32 s41, s41, {WS_Q}')
    a(f's_add_u32 s42, s41, {16*64*2048}')
    a('s_lshl_b32 s45, s40, 5')
    a('s_add_u32 s45, s45, s33')
    a('s_lshl_b32 s43, s45, 11')
    a(f's_add_u32 s43, s43, {WS_O}')
    a(f's_add_u32 s44, s43, {16*2048}')
    if PACK[0]:
        g = PACK[0]
        a(f's_and_b32 s46, s45, {g-1}')
        a(f's_andn2_b32 s45, s45, {g-1}')
        a('s_lshl_b32 s45, s45, 7')
        a('s_lshl3_add_u32 s45, s46, s45')
    else:
        a('s_lshl_b32 s45, s45, 7')
    a(f's_add_u32 s45, s45, {WS_F2}')
    a(f's_mov_b32 s56, {f32bits(2.0**40)}')
    a(f's_mov_b32 s57, {f32bits(2.0**-40)}')
    a('s_lshr_b32 s38, s2, 3')
    a('s_mul_i32 s36, s38, 37')
    a('s_lshr_b32 s36, s36, 8')
    a('s_mul_i32 s37, s36, 7')
    a('s_sub_u32 s37, s38, s37')
    a('s_and_b32 s46, s2, 1')
    a('s_lshl_b32 s46, s46, 4')
    a('s_add_u32 s36, s36, s46')
    a('s_and_b32 s46, s2, 6')
    a('s_lshl_b32 s46, s46, 1')
    a('s_add_u32 s36, s36, s46')
    a('s_cmp_eq_u32 s35, 3')
    a(f's_cselect_b32 s49, {-16*896 & 0xffffffff}, 0')

def p2_srds(a):
    a('s_lshl_b32 s46, s33, 18')
    a(f's_add_u32 s10, s{P_WS}, s46')
    a(f's_addc_u32 s11, s{P_WS+1}, 0')
    srd(a, R1, 10, 11, 262144)
    a(f's_add_u32 s10, s10, {16*262144}')
    a('s_addc_u32 s11, s11, 0')
    srd(a, R2, 10, 11, 262144)
    mksrd(a, R0, P_BWO, 448*896)

def p2_vec1(a):
    a('s_min_u32 s62, s39, 10240')
    a(f'v_lshlrev_b32 v{RA}, 4, v1')
    a(f'v_mov_b32 v{IDX}, 0xdddddddd')
    a(f'v_add_u32 v{VD}, s39, v{RA}')
    a(f'v_mov_b32 v{VZERO}, 0')
    a(f'v_mov_b32 v{VONE}, 1')
    a('v_and_b32 v2, 0x23, v1')
    a('v_bfe_u32 v3, v1, 2, 1')
    a('v_lshl_add_u32 v2, v3, 4, v2')
    a('v_bfe_u32 v3, v1, 3, 2')
    a('v_lshl_add_u32 v2, v3, 2, v2')
    a(f'v_lshlrev_b32 v{KOF[RA]}, 4, v2')

def p2_vec2(a):
    a('v_lshrrev_b32 v3, 3, v1')
    a('s_lshl_b32 s46, s35, 5')
    a('v_add_u32 v3, s46, v3')
    a('v_mul_u32_u24 v3, 896, v3')
    a('v_and_b32 v4, 7, v1')
    a('v_bfe_u32 v5, v1, 4, 1')
    a('v_lshlrev_b32 v5, 2, v5')
    a('v_xor_b32 v4, v4, v5')
    a('v_lshl_add_u32 v3, v4, 4, v3')
    a('s_lshl_b32 s46, s37, 7')
    a(f'v_add_u32 v{VWO}, s46, v3')

P3_D = [32, 48]
P3_OF = [64, 96]
P3_W = [128, 192]
XCH = 114688 - 128
XS = 8192 + 32
FULL = [1]
def p3_setup(a):
    a('s_and_b32 s4, s34, 1')
    a('s_lshr_b32 s5, s34, 1')
    a('s_lshl_b32 s46, s36, 1')
    a('s_add_u32 s46, s46, s4')
    a('s_lshl_b32 s47, s46, 5')
    a('s_xor_b32 s48, s5, 2')
    a('s_lshl_b32 s48, s48, 3')
    a('s_add_u32 s47, s47, s48')
    a('s_lshl_b32 s6, s47, 11')
    a(f's_add_u32 s6, s6, {WS_O}')
    a('s_lshl_b32 s7, s47, 7')
    a(f's_add_u32 s7, s7, {WS_F2}')

SWAPH = [0]
def p3_bases(a, tab):
    a('v_lshrrev_b32 v3, 5, v1')
    a('v_bfe_u32 v4, v1, 2, 2')
    a('v_bfe_u32 v5, v1, 4, 1')
    a('v_and_b32 v6, 3, v1')
    a('v_lshlrev_b32 v6, 3, v6')
    a('v_lshl_add_u32 v6, v5, 5, v6')
    a('v_lshl_add_u32 v6, v4, 7, v6')
    a('v_lshrrev_b32 v4, 1, v4')
    a('v_lshl_add_u32 v6, v4, 6, v6')
    a('s_bitcmp1_b32 s5, 0')
    f, g = (3, 2) if SWAPH[0] else (2, 3)
    a(f's_mov_b32 s12, {tab[0]}')
    a(f's_cselect_b32 s12, {tab[f]}, s12')
    a(f's_mov_b32 s13, {(tab[1] - tab[0]) & 0xffffffff}')
    a(f's_cselect_b32 s13, {(tab[g] - tab[f]) & 0xffffffff}, s13')
    a('v_add_u32 v11, s12, v6')
    a('v_xor_b32 v12, 64, v11')
    a('v_lshl_add_u32 v9, v3, 9, v11')
    a('v_xor_b32 v10, 64, v9')

DENSE = [1]
DSTEP = [(0, 0), (1, 0), (2, 0), (3, 0), (0, 1), (1, 1), (2, 1)]
DLOAD = [(0, 0), (1, 0), (2, 0), (3, 0), (3, 1), (0, 1), (1, 1), (2, 1)]
DROW = [16, 24, 20]
def p3_trs(a, half):
    if half == 1:
        for r in range(4):
            a(f'v_add_u32 v{9+r}, s13, v{9+r}')
    if DENSE[0]:
        T = P3_W[half] + 56
        a(f'v_lshrrev_b32 v{T+6}, 5, v1')
        for hb in range(3):
            a(f'v_mul_u32_u24 v{T+2*hb}, {(84 + DROW[hb] - hb*28 - 24)*128}, v{T+6}')
            a(f'v_add_u32 v{T+2*hb}, v{T+2*hb}, v11')
            a(f'v_xor_b32 v{T+2*hb+1}, 64, v{T+2*hb}')
    for n, (hb, f) in enumerate(DSTEP if DENSE[0] else [(n//2, n % 2) for n in range(8)]):
        a('s_waitcnt lgkmcnt(11)')
        for nt in range(2):
            for e in range(2):
                base = 9 + nt
                if f == 1 and e == 1:
                    base = T + 2*hb + nt if DENSE[0] else 11 + nt
                a(f'ds_read_b64_tr_b16 {vr(P3_W[half]+8*n+4*nt+2*e,2)}, v{base} offset:{(hb*28 + 16*f + 8*e)*128}')

def p3_oloads(a, half):
    for hb, f in (DLOAD if DENSE[0] else [(n//2, n % 2) for n in range(8)]):
        i = 2*hb + f
        a(f'buffer_load_dwordx4 {vr(P3_OF[half]+4*i,4)}, v{RA}, {sr(RWS,4)}, s{52 + 2*half + i//4} offen offset:{(i%4)*1024} {SC}')

def p3_mfmas(a, half, extra, dst=None):
    P3_D = dst or globals()['P3_D']
    def mm(n, i):
        for nt in range(2):
            cin = '0' if (n == 0 and (half == 0 or dst)) else vr(P3_D[nt], 16)
            a(f'v_mfma_f32_32x32x16_bf16 {vr(P3_D[nt],16)}, {vr(P3_W[half]+8*n+4*nt,4)}, {vr(P3_OF[half]+4*i,4)}, {cin}')
    if not DENSE[0]:
        for n in range(8):
            a(f's_waitcnt vmcnt({7 - n + extra})')
            mm(n, n)
        return
    D = P3_OF[half] + 28
    def fix(hb):
        X = P3_OF[half] + 8*hb + 4
        a(f's_waitcnt vmcnt({2 - hb + extra})')
        if hb < 2:
            a(f'v_permlane32_swap_b32 v{X+2}, v{D+2*hb}')
            a(f'v_permlane32_swap_b32 v{X+3}, v{D+2*hb+1}')
        else:
            a('s_mov_b32 exec_lo, 0')
            a(f'v_mov_b32 v{X+2}, v{D}')
            a(f'v_mov_b32 v{X+3}, v{D+1}')
            a('s_mov_b32 exec_lo, -1')
    for n, (hb, f) in enumerate(DSTEP):
        if n < 3: a(f's_waitcnt vmcnt({7 - n + extra})')
        if 3 <= n < 6: fix(n - 3)
        mm(n, 2*hb + f)

def p3_addr(a):
    if SWAPH[0]:
        a('s_bitcmp1_b32 s5, 0')
        a('s_cselect_b32 s46, 8192, 0')
        a('s_cselect_b32 s0, 512, 0')
        a('s_cselect_b32 s1, 0, 512')
        a('s_add_u32 s52, s6, s46')
        a('s_add_u32 s53, s52, 4096')
        a('s_xor_b32 s54, s52, 8192')
        a('s_add_u32 s55, s54, 4096')
    else:
        for k in range(4):
            a(f's_add_u32 s{52+k}, s6, {k*4096}')
    a(f's_add_u32 s10, s{P_WS}, s7')
    a(f's_addc_u32 s11, s{P_WS+1}, 0')
    a('s_lshl_b32 s46, s4, 12')
    a('s_lshl_b32 s47, s5, 10')
    a('s_add_u32 s47, s47, s46')
    a(f's_add_u32 s47, s47, {XCH}')
    a(f'v_add_u32 v3, s47, v{RA}')
    if FULL[0]:
        a('v_lshrrev_b32 v5, 3, v1')
        a('s_lshl_b32 s47, s5, 3')
        a('v_add_u32 v5, s47, v5')
        a('v_bfe_u32 v6, v1, 1, 2')
        a(f'v_mul_u32_u24 v4, {XS}, v6')
        a('v_lshl_add_u32 v4, v5, 4, v4')
        a('v_and_b32 v6, 1, v1')
        a('v_lshl_add_u32 v4, v6, 3, v4')
        a(f's_add_u32 s47, s46, {XCH}')
        a('v_add_u32 v4, s47, v4')
        a('s_lshl1_add_u32 s46, s36, s4')
        a('s_lshl_b32 s46, s46, 5')
        a('v_add_u32 v5, s46, v5')
        a('v_mul_u32_u24 v5, 896, v5')
        a('v_and_b32 v6, 7, v1')
        a('v_lshl_add_u32 v5, v6, 4, v5')
        a('s_lshl_b32 s50, s37, 7')
    else:
        a(f's_mul_i32 s47, s5, {XS}')
        a('s_add_u32 s47, s47, s46')
        a(f's_add_u32 s47, s47, {XCH}')
        a(f'v_add_u32 v4, s47, v{RA}')
        a('v_and_b32 v5, 31, v1')
        a('s_lshl_b32 s46, s36, 1')
        a('s_add_u32 s46, s46, s4')
        a('s_lshl_b32 s46, s46, 5')
        a('v_add_u32 v5, s46, v5')
        a('v_mul_u32_u24 v5, 896, v5')
        a('v_lshrrev_b32 v6, 5, v1')
        a('v_lshl_add_u32 v5, v6, 4, v5')
        a('s_lshl_b32 s46, s37, 7')
        a('s_lshl_b32 s47, s5, 5')
        a('s_add_u32 s50, s46, s47')
    a(f'v_mov_b32 v13, {FBFLAG}')

def lds_post(a, off):
    a('s_lshl_b32 s46, s35, 2')
    a(f's_add_u32 s46, s46, {FBFLAG + off}')
    a('v_mov_b32 v2, s46')
    a('v_mov_b32 v7, 1')
    a('ds_write_b32 v2, v7')

def lds_wait(a, off, tmp, name):
    lp = a.new(name)
    a(f'v_mov_b32 v2, {FBFLAG + off}')
    a.label(lp)
    a(f'ds_read_b128 {vr(tmp,4)}, v2')
    a('s_waitcnt lgkmcnt(0)')
    a(f'v_and_b32 v{tmp}, v{tmp}, v{tmp+1}')
    a(f'v_and_b32 v{tmp+2}, v{tmp+2}, v{tmp+3}')
    a(f'v_and_b32 v{tmp}, v{tmp}, v{tmp+2}')
    a(f'v_cmp_eq_u32 vcc, 0, v{tmp}')
    a(f's_cbranch_vccnz {lp}')

SP = [64, 66, 68, 70, 24, 26, 96, 98]
LO, HI = [0, 1, 2, 3], [4, 5, 6, 7]
def units(ks):
    if PACK[0] == 0: return [[k] for k in ks]
    out = []
    for k in ks:
        lim = min(PACK[0], 4 if k < 4 else 2)
        if out and len(out[-1]) < lim and out[-1][-1] + 1 == k and (k % lim): out[-1].append(k)
        else: out.append([k])
    return out
def spoll_issue(a, ks):
    for u in units(ks):
        g = PACK[0] or 1
        off = (u[0]//g)*g*128 + (u[0] % g)*8
        a(f's_load_dwordx{2*len(u)} {sr(SP[u[0]],2*len(u))}, s[10:11], {off} glc')

def spoll_spin(a, ks, name, also=()):
    ok, lp = a.new(name + '_ok'), a.new(name + '_lp')
    a(f's_mov_b32 s61, {SPIN_LIMIT}')
    a('s_waitcnt lgkmcnt(0)')
    a.label(lp)
    a('s_mov_b32 s58, 0')
    for u in units(ks) + units(also):
        sk, do = a.new(name + '_k'), a.new(name + '_d')
        for k in u:
            a(f's_cmp_eq_u64 {sr(SP[k],2)}, {sr(NONCE,2)}')
            a(f's_cbranch_scc1 {sk}' if k == u[-1] else f's_cbranch_scc0 {do}')
        a.label(do)
        spoll_issue(a, u)
        if u[0] in ks: a('s_mov_b32 s58, 1')
        a.label(sk)
    a('s_cmp_eq_u32 s58, 0')
    a(f's_cbranch_scc1 {ok}')
    a('ds_read_b32 v6, v13')
    if SLEEP2: a(f's_sleep {SLEEP2}')
    a('s_waitcnt lgkmcnt(0)')
    a('v_cmp_ne_u32 vcc, 0, v6')
    a('s_cbranch_vccnz L_p3_x')
    a('s_sub_u32 s61, s61, 1')
    a(f's_cbranch_scc0 {lp}')
    a.label(ok)

def spoll_either(a, name, hi_label):
    ok, lp = a.new(name + '_ok'), a.new(name + '_lp')
    a(f's_mov_b32 s61, {SPIN_LIMIT}')
    a('s_waitcnt lgkmcnt(0)')
    a.label(lp)
    a('s_mov_b32 s58, 0')
    for k in LO + HI:
        sk = a.new(name + '_k')
        a(f's_cmp_eq_u64 {sr(SP[k],2)}, {sr(NONCE,2)}')
        a(f's_cbranch_scc1 {sk}')
        spoll_issue(a, [k])
        a(f's_bitset1_b32 s58, {k//4}')
        a.label(sk)
    a('s_bitcmp0_b32 s58, 0')
    a(f's_cbranch_scc1 {ok}')
    a('s_bitcmp0_b32 s58, 1')
    a(f's_cbranch_scc1 {hi_label}')
    a('ds_read_b32 v6, v13')
    if SLEEP2: a(f's_sleep {SLEEP2}')
    a('s_waitcnt lgkmcnt(0)')
    a('v_cmp_ne_u32 vcc, 0, v6')
    a('s_cbranch_vccnz L_p3_x')
    a('s_sub_u32 s61, s61, 1')
    a(f's_cbranch_scc0 {lp}')
    a.label(ok)

def p3_shared(a, opt):
    a.c('===== phase 3: wait for the head outputs, project, exchange, store =====')
    a.label('L_p3')
    a('s_cmp_ge_u32 s38, 28')
    a('s_cbranch_scc1 L_p3_x')
    if opt.get('also', 1):
        if not opt.get('adapt', 1):
            for k in HI:
                a(f's_mov_b32 s{SP[k]}, 0')
        if opt.get('adapt', 1):
            a('s_waitcnt lgkmcnt(0)')
            spoll_issue(a, HI)
            for k in LO:
                a(f's_cmp_eq_u64 {sr(SP[k],2)}, {sr(NONCE,2)}')
                a('s_cbranch_scc0 L_p3_notyet')
            stamp(a, 'f2b')
            p3_oloads(a, 0)
            p3_trs(a, 1)
            a('s_branch L_p3_hi')
            a.label('L_p3_notyet')
        if opt.get('trs1first', 1): p3_trs(a, 1)
        if opt.get('comm', 1):
            spoll_either(a, 'f2e', 'L_p3_hfirst')
        else:
            spoll_spin(a, LO, 'f2b', HI)
        stamp(a, 'f2b')
        p3_oloads(a, 0)
        if not opt.get('trs1first', 1): p3_trs(a, 1)
        a.label('L_p3_hi')
    else:
        spoll_spin(a, LO, 'f2b')
        stamp(a, 'f2b')
        spoll_issue(a, HI)
        p3_oloads(a, 0)
        p3_trs(a, 1)
    spoll_spin(a, HI, 'f2a')
    a.label('L_p3_l1')
    stamp(a, 'f2a')
    p3_oloads(a, 1)
    def products(first, tag):
        a('s_cmp_lt_u32 s34, 4')
        a(f's_cbranch_scc1 L_p3_m{tag}')
        lds_wait(a, 32, 32, 'rdok')
        a.label(f'L_p3_m{tag}')
        a('s_setprio 0')
        if opt.get('comm', 1):
            D2 = [P3_W[first], P3_W[first] + 16]
            p3_mfmas(a, first, 8, P3_D)
            p3_mfmas(a, 1 - first, 0, D2)
        else:
            p3_mfmas(a, 0, 8)
            stamp(a, 'mfB')
            p3_mfmas(a, 1, 0)
        stamp(a, 'mfA')
        a('s_cmp_ge_u32 s34, 4')
        a(f's_cbranch_scc1 L_p3_w{tag}')
        lds_wait(a, 32, 64, 'rdok')
        a.label(f'L_p3_w{tag}')
        a('s_nop 8')
        if opt.get('comm', 1):
            for r in range(0, 32, 2):
                a(f'v_pk_add_f32 {vr(P3_D[0]+r,2)}, {vr(P3_D[0]+r,2)}, {vr(D2[0]+r,2)}')
    products(0, '')
    a.label('L_p3_pack')
    for d in range(4):
        for r in range(4):
            a(f'v_cvt_pk_bf16_f32 v{96+4*d+r}, v{32+8*d+2*r}, v{32+8*d+2*r+1}')
        a(f'ds_write_b128 v3, {vr(96+4*d,4)} offset:{d*XS}')
    a.label('L_p3_x')
    a('s_waitcnt lgkmcnt(0)')
    mksrd(a, R1, P_OUT, 2048*896)
    a('s_barrier')
    stamp(a, 'X')
    a('ds_read_b32 v6, v13')
    for s in range(4):
        if FULL[0]:
            a(f'ds_read2st64_b64 {vr(128 + 4*s, 4)}, v4 offset0:{2*s} offset1:{2*s+1}')
        else:
            a(f'ds_read_b128 {vr(128 + 4*s, 4)}, v4 offset:{s*1024}')
    a('s_mov_b32 s47, 0xffff0000')
    a('s_waitcnt lgkmcnt(3)')
    a('v_cmp_ne_u32 vcc, 0, v6')
    a('s_cmp_ge_u32 s38, 28')
    a('s_cbranch_vccnz L_p3_fb')
    a('s_cbranch_scc1 L_exit')
    for s in range(2 if opt.get('x_two') else 4):
        if s: a(f's_waitcnt lgkmcnt({3 - s})')
        for r in range(4):
            a(f'v_lshlrev_b32 v{96+8*s+2*r}, 16, v{128+4*s+r}')
            a(f'v_and_b32 v{96+8*s+2*r+1}, s47, v{128+4*s+r}')
        if s % 2 == 1:
            for r in range(0, 8, 2):
                a(f'v_pk_add_f32 {vr(96+8*(s-1)+r,2)}, {vr(96+8*(s-1)+r,2)}, {vr(96+8*s+r,2)}')
    for r in range(0, 8, 2):
        a(f'v_pk_add_f32 {vr(96+r,2)}, {vr(96+r,2)}, {vr(112+r,2)}')
    for r in range(4):
        a(f'v_cvt_pk_bf16_f32 v{28+r}, v{96+2*r}, v{96+2*r+1}')
    if not FULL[0]:
        a('s_nop 1')
        a('v_permlane32_swap_b32 v28, v30')
        a('v_permlane32_swap_b32 v29, v31')
    a(f'buffer_store_dwordx4 v[28:31], v5, {sr(R1,4)}, s50 offen {opt.get("outfl", "sc1")}')
    stamp(a, 'st')
    dump_stamps(a, 0)
    a('s_endpgm')

    if opt.get('comm', 1):
        a.label('L_p3_hfirst')
        stamp(a, 'f2b')
        p3_oloads(a, 1)
        spoll_spin(a, LO, 'f2l')
        stamp(a, 'f2a')
        p3_oloads(a, 0)
        products(1, 'h')
        a('s_branch L_p3_pack')

    a.label('L_p3_fb')
    a('s_setprio 0')
    a('s_waitcnt vmcnt(0) lgkmcnt(0)')
    a('s_mov_b32 s60, 1')
    p2_srds(a)
    p2_vec1(a)
    a('s_cmp_lt_u32 s34, 4')
    a('s_cbranch_scc1 L_a_fallback')
    a('s_branch L_b_fallback')

def publish_decision(a, o, data_s, flag_s):
    a('s_mov_b32 s58, 0')
    check(a, o, True)
    a('s_cmp_lg_u32 s60, 0')
    a('s_cselect_b32 s58, 0, s58')
    if PV.get('nofb'): a('s_mov_b32 s58, 0')
    a('s_or_b32 s46, s58, s63')
    a(f's_cselect_b32 s50, 0x40000000, s{data_s}')
    a(f's_cselect_b32 s51, 0x40000000, s{flag_s}')
    a('s_cselect_b32 s63, s63, 1')

VPB = 235
def b_setup(a, part=3):
    if part & 1: b_setup1(a)
    if part & 2: b_setup2(a)

def b_setup1(a):
    a('s_add_u32 s46, s33, 16')
    a('s_mul_i32 s46, s46, 43')
    a('s_lshr_b32 s46, s46, 7')
    a('s_add_u32 s47, s33, 32')
    a('s_mul_i32 s47, s47, 43')
    a('s_lshr_b32 s47, s47, 7')
    a('s_mul_i32 s48, s33, 43')
    a('s_lshr_b32 s48, s48, 7')
    a('s_lshl_b32 s46, s46, 6')
    a('s_lshl_b32 s47, s47, 6')
    a('s_lshl_b32 s48, s48, 6')
    a('s_add_u32 s48, s48, s40')
    a('v_and_b32 v2, 15, v1')
    a('v_lshl_add_u32 v2, v2, 2, s35')
    a('v_add_u32 v3, s46, v2')
    a('v_add_u32 v4, s47, v2')
    a('v_mov_b32 v5, s48')
    a('v_cmp_gt_u32 vcc, 16, v1')
    a('v_cmp_gt_u32 s[12:13], 32, v1')
    a('s_nop 0')
    a('v_cndmask_b32 v3, v4, v3, vcc')
    a(f'v_cndmask_b32 v{VPB}, v5, v3, s[12:13]')
    a(f'v_lshlrev_b32 v{VPB}, 7, v{VPB}')
    a(f'v_add_u32 v{VPB}, {WS_F1 + 131072}, v{VPB}')
    a('v_and_b32 v2, 3, v1')
    a('v_min_u32 v2, 2, v2')
    a('v_sub_u32 v2, s32, v2')
    a('v_max_i32 v2, 0, v2')
    a('s_sub_u32 s50, 3, s35')
    a('v_lshl_add_u32 v2, v2, 2, s50')
    a('v_add_u32 v3, s46, v2')
    a('v_add_u32 v4, s47, v2')
    a('v_cmp_gt_u32 vcc, 4, v1')
    a('v_cmp_gt_u32 s[12:13], 8, v1')
    a('s_nop 0')
    a('v_cndmask_b32 v3, v4, v3, vcc')
    a(f'v_cndmask_b32 v{VPA}, v5, v3, s[12:13]')
    a(f'v_lshlrev_b32 v{VPA}, 7, v{VPA}')
    a(f'v_add_u32 v{VPA}, {WS_F1}, v{VPA}')
    a('s_add_u32 s47, s39, 65536')
    a('s_lshl_b32 s46, s32, 2')
    a('s_add_u32 s46, s46, 3')
    a('s_sub_u32 s46, s46, s35')
    a('s_lshl_b32 s46, s46, 12')
    a(f'v_add_u32 v{VA0}, s46, v{RA}')
    a(f'v_subrev_u32 v{VA0+1}, 16384, v{VA0}')
    a(f'v_subrev_u32 v{VA0+2}, 32768, v{VA0}')
    a('s_sub_u32 s46, 65536 + 32768 + 3*4096, s39')
    a(f'v_add_u32 v{RBA}, s46, v{RA}')
    a(f'v_add_u32 v{RB0}, 65536, v{RA}')
    a(f'v_add_u32 v{RB1}, 131072, v{RA}')
    a(f'v_add_u32 v{KOF[RBA]}, s46, v{KOF[RA]}')
    a(f'v_add_u32 v{KOF[RB0]}, 65536, v{KOF[RA]}')
    a(f'v_add_u32 v{KOF[RB1]}, 131072, v{KOF[RA]}')

def b_setup2(a):
    a('v_and_b32 v3, 31, v1')
    a('v_lshrrev_b32 v2, 5, v1')
    a('v_lshlrev_b32 v2, 4, v2')
    a('v_sub_u32 v3, v3, v2')
    a(f'v_mov_b32 v2, {NEGBIG}')
    for r in range(0, 16, 2):
        for u in range(2):
            cr = r + u
            a(f'v_cmp_le_i32 s[{10+2*u}:{11+2*u}], {cr}, v3')
        a('s_nop 0')
        for u in range(2):
            a(f'v_cndmask_b32 v{CD+r+u}, v2, 0, s[{10+2*u}:{11+2*u}]')
            a(f'v_cndmask_b32 v{CE+r+u}, 0, v2, s[{10+2*u}:{11+2*u}]')

def gen(a, label, opt):
    LSTEP = opt.get('lstep', 9)
    LATE = sum(1 << t for t in list(range(LSTEP, 9)) + list(range(9 + LSTEP, 16))) if LSTEP < 9 else 0
    kernel_header(a, label)
    a('s_cmp_ge_u32 s2, 256')
    a('s_cbranch_scc1 L_done')
    stamp_init(a)
    a('s_load_dwordx16 s[4:19], s[0:1], 0')
    a('s_load_dwordx4 s[20:23], s[0:1], 64')
    a('v_lshrrev_b32 v2, 6, v0')
    a('v_and_b32 v1, 63, v0')
    a('v_readfirstlane_b32 s34, v2')
    m48 = opt.get('m48', 0)
    if m48:
        a('s_bfe_u32 s38, s2, 0x20003')
        a('s_and_b32 s32, s2, 3')
        a('s_lshl2_add_u32 s32, s32, s38')
        a('s_lshr_b32 s40, s2, 5')
        a('s_bfe_u32 s33, s2, 0x10002')
        a('s_lshl3_add_u32 s33, s33, s40')
    else:
        a('s_bfe_u32 s40, s2, 0x30003')
        a('s_and_b32 s32, s2, 1')
        a('s_lshl3_add_u32 s32, s32, s40')
        a('s_lshr_b32 s38, s2, 6')
    if opt.get('rot', 2) == 2:
        a('s_lshl1_add_u32 s63, s38, s40')
        a('s_sub_u32 s40, s63, 7')
        a('s_cselect_b32 s63, s63, s40')
    elif opt.get('rot') in (3, 4):
        a('s_lshl1_add_u32 s63, s38, s40')
        a(f's_bfe_u32 s40, s2, {0x10001 if opt["rot"] == 3 else 0x20001}')
        a('s_add_u32 s63, s63, s40')
        for k in range(2):
            a('s_sub_u32 s40, s63, 7')
            a('s_cselect_b32 s63, s63, s40')
    elif opt.get('rot') == 5:
        a('s_add_u32 s63, s38, s40')
        a('s_and_b32 s63, s63, 3')
        a('s_bfe_u32 s40, s2, 0x10001')
        a('s_xor_b32 s40, s40, s2')
        a('s_and_b32 s40, s40, 1')
        a('s_lshl1_add_u32 s63, s63, s40')
        a('s_sub_u32 s40, s63, 7')
        a('s_cselect_b32 s63, s63, s40')
    else:
        a('s_add_u32 s63, s38, s40')
        a('s_and_b32 s63, s63, 3')
        a('s_lshl_b32 s63, s63, 1')
    a('s_and_b32 s35, s34, 3')
    if not m48:
        a('s_bfe_u32 s33, s2, 0x20001')
        a('s_lshl2_add_u32 s33, s33, s38')
    def columns():
        a('s_xor_b32 s62, s33, 1')
        a('s_lshr_b32 s40, s33, 1')
        a('s_cmp_eq_u32 s40, 2')
        a('s_cselect_b32 s62, s33, s62')
        a('s_cmp_eq_u32 s40, 5')
        a('s_cselect_b32 s62, s33, s62')
    a('s_cmp_lt_u32 s34, 4')
    a('s_cbranch_scc0 L_loader')
    if opt.get('codewarm', 1):
        a('s_getpc_b64 s[46:47]')
        a.label('L_pc')
        a('s_lshr_b32 s48, s2, 3')
        a('s_lshl2_add_u32 s48, s48, s34')
        a('v_and_b32 v2, 3, v1')
        a('v_lshl_add_u32 v2, s48, 2, v2')
        a('v_lshlrev_b32 v2, 7, v2')
        a('v_min_u32 v2, L_done - L_pc, v2')
        a('global_load_dword v78, v2, s[46:47]')
    dispatch(a, 33, 'P1B')
    a.label('L_loader')

    XA = [240, 241, 242, 243]
    WA = [244, 245, 246]
    a.c('===== waves 4-7: phase-1 loader =====')
    a('s_setprio 3')
    a('v_lshrrev_b32 v3, 3, v1')
    a('v_lshrrev_b32 v4, 4, v1')
    a('v_and_b32 v5, 7, v1')
    a('v_xor_b32 v5, v5, v4')
    a('s_lshl2_add_u32 s40, s32, s35')
    a('v_lshl_add_u32 v3, s40, 5, v3')
    a('v_mul_u32_u24 v3, 896, v3')
    a(f'v_lshl_add_u32 v{XA[0]}, v5, 4, v3')
    a(f'v_xor_b32 v{XA[1]}, 64, v{XA[0]}')
    a(f'v_add_u32 v{XA[1]}, {8*896 - 1024}, v{XA[1]}')
    a(f'v_add_u32 v{XA[2]}, {16*896 - 2048}, v{XA[0]}')
    a(f'v_add_u32 v{XA[3]}, {16*896 - 2048}, v{XA[1]}')
    window(a, 33, 54, 37, 40)
    a('s_mul_i32 s40, s35, 192')
    a('s_movk_i32 s41, 2688')
    a('s_movk_i32 s42, -176')
    a('v_add_u32 v3, s40, v1')
    a('v_lshlrev_b32 v5, 4, v3')
    a('v_mul_u32_u24 v3, 745, v3')
    for i in range(3):
        if i:
            a(f'v_add_u32 v3, {745*64}, v3')
        a('v_lshrrev_b32 v4, 13, v3')
        a('v_and_b32 v6, 7, v4')
        a('v_mul_u32_u24 v6, 9, v6')
        a('v_lshrrev_b32 v6, 1, v6')
        a('v_bfi_b32 v6, 7, v6, v4')
        a('v_mad_i32_i24 v4, v4, s42, v5')
        a(f'v_mad_u32_u24 v{WA[i]}, v6, s41, v4')
    a('s_cmp_eq_u32 s35, 3')
    a('s_cselect_b32 s40, 0x40000000, 0')
    a(f'v_add_u32 v{WA[2]}, s40, v{WA[2]}')
    a('s_lshl_b32 s58, s35, 12')
    a('s_mul_i32 s59, s35, 3072')
    a('s_lshl_b32 s52, s63, 7')
    a(f's_mul_i32 s53, s63, {64*2688}')
    a('s_add_u32 s53, s54, s53')
    a(f's_mov_b32 s{R0+2}, {2048*896}')
    a(f's_mov_b32 s{R0+3}, 0x20000')
    a(f's_mov_b32 s{R1+2}, {448*2688}')
    a(f's_mov_b32 s{R1+3}, 0x20000')
    a('v_lshl_add_u32 v2, v1, 4, s52')
    a('v_subrev_u32 v4, 896, v2')
    a('v_min_u32 v2, v2, v4')
    a(f's_movk_i32 s{R3+2}, 896')
    a(f's_mov_b32 s{R3+3}, 0x20000')
    a(f's_mov_b32 m0, {GATE}')
    a('s_cmp_lg_u32 s35, 3')
    stamp(a, 'pre')
    a('s_waitcnt lgkmcnt(0)')
    stamp(a, 'karg')
    a('s_cbranch_scc1 L_nogate')
    a(f's_mov_b32 s{R3}, s{P_G}')
    a(f's_and_b32 s{R3+1}, s{P_G+1}, 0xffff')
    a(f'buffer_load_dwordx4 v2, {sr(R3,4)}, 0 offen lds')
    a.label('L_nogate')
    a('s_mov_b32 m0, s58')
    a(f's_mov_b32 s{R0}, s{P_X}')
    a(f's_and_b32 s{R0+1}, s{P_X+1}, 0xffff')
    vm = VM()
    def loads_x(g):
        for i in range(4):
            a(f'buffer_load_dwordx4 v{XA[i]}, {sr(R0,4)}, s52 offen offset:{i*1024} {opt.get("xfl", "")} lds')
        vm.add(g, 4)
    def loads_w(g):
        for i in range(3):
            a(f'buffer_load_dwordx4 v{WA[i]}, {sr(R1 if g < 7 else R2,4)}, s53 offen offset:{i*1024} {opt.get("wfl", "")} lds')
        vm.add(g, 3)
    def issue(g):
        a(f's_add_u32 m0, s59, {wslot(g)}')
        a(f's_add_u32 s3, s16, {g % 7}')
        a('s_sub_u32 s53, s3, 7')
        a('s_cselect_b32 s3, s3, s53')
        a(f's_mul_i32 s53, s3, {64*2688}')
        a(f's_add_u32 s53, s{54 if g < 7 else 55}, s53')
        loads_w(g)
        if g < 7:
            a(f's_add_u32 m0, s58, {XRING + (g % 4)*16384}')
            a('s_lshl_b32 s52, s3, 7')
            loads_x(g)
    loads_x(0)
    a(f's_add_u32 m0, s59, {wslot(0)}')
    a(f's_mov_b32 s{R1}, s{P_BW}')
    a(f's_and_b32 s{R1+1}, s{P_BW+1}, 0xffff')
    loads_w(0)
    a('s_mov_b32 s16, s63')
    stamp(a, 'i0')
    issue(1)
    a('s_setprio 0')
    stamp(a, 'i1')
    def slice0():
        columns()
        window(a, 62, 55, 39, 40)
        mksrd(a, R2, P_AW, 448*2688)
        mksrd(a, RWS, P_WS, WS_END)
        mksrd(a, R3, P_DBG, 256)
        p2_scalars(a)
    def slice1():
        p3_setup(a)
        p2_vec1(a)
        p2_vec2(a)
        a('s_mov_b32 s63, 0')
    sl = opt.get('lsl', [0.5, 6.5, 6.5, 10.5])
    slices = {}
    for g, f in zip(sl, [slice0, slice1, lambda: b_setup(a, 1), lambda: b_setup(a, 2)]):
        slices.setdefault(g, []).append(f)
    sched = opt.get('sched', {0: [2], 1: [3], 2: [4], 3: [5], 4: [6], 5: [7, 8], 6: [9], 7: [10, 11, 12, 13]})
    need = opt.get('need', {7: [7, 8, 9], 10: [10, 11], 12: [12, 13, 'go', 'p0']})
    for g in P1_BARS:
        n = vm.wait_for(*need.get(g, [g]))
        a(f's_waitcnt vmcnt({n})')
        if g == P1_BARS[-1]:
            break
        stamp(a, f'g{g}')
        if XP and g in (2, 6): cstamp(a, 0 if g == 2 else 1)
        a('s_barrier')
        for f in slices.get(g, []): f()
        if g == opt.get('spf_g', -1):
            st = opt.get('spf_st', 128)
            a('s_mul_i32 s0, s2, 37')
            a('s_mul_i32 s1, s35, 9')
            a('s_add_u32 s0, s0, s1')
            a('s_min_u32 s0, s0, 9398')
            a('s_lshl_b32 s0, s0, 7')
            for k in range(10*128//st):
                a(f's_load_dword s1, {sr(P_AW,2)}, s0 offset:{k*st}')
        for c in sched.get(g, []):
            issue(c)
        for f in slices.get(g + 0.5, []): f()
        if g == 10 and opt.get('early0', 0):
            a(f'v_mov_b64 {vr(VPOLL,2)}, 0')
            if opt['early0'] > 1:
                a(f's_waitcnt vmcnt({vm.wait_for(12)})')
            a('s_mov_b32 exec_lo, 0x02010201')
            a('s_mov_b32 exec_hi, 1')
            a(f'buffer_load_dwordx2 {vr(VPOLL,2)}, v{VPB}, {sr(RWS,4)}, 0 offen {SC}')
            a('s_mov_b64 exec, -1')
            vm.add('e0')
        if g == 3:
            a(f'buffer_load_dwordx2 {vr(VTAG,2)}, off, {sr(R3,4)}, 0 {SC}')
            vm.add('go')
    get_nonce(a, VTAG, 'go_b')
    a('s_waitcnt lgkmcnt(0)')
    p2_srds(a)
    stamp(a, 'g12')
    a('s_barrier')
    stamp(a, 'pb')
    staged = opt.get('staged', 1)
    m0 = 0x02010201 if opt.get('late_s1', 2) else 0x06030603
    if opt.get('narrow', 1):
        if opt.get('early0', 0):
            a('s_waitcnt vmcnt(0)')
        else:
            a(f'v_mov_b64 {vr(VPOLL,2)}, 0')
        a(f's_mov_b32 exec_lo, {m0}')
        a('s_mov_b32 exec_hi, 1')
        spin_mask(a, VPOLL, VPB, '0', 'f1b', opt.get('sleep1', 1), bool(opt.get('early0', 0)))
    else:
        spin_mask(a, VPOLL, VPB, '0', 'f1b', opt.get('sleep1', 1), False, m0 if staged else None)
    stamp(a, 'f1b')

    a.c('===== waves 4-7: attention stream b (28 full-branch tiles, then the sliding window) =====')
    a.label('L_b_restart')
    vm = VM()
    a(f'buffer_load_dwordx4 {vr(QB,4)}, v{RA}, {sr(RWS,4)}, s42 offen {SC}')
    a(f'buffer_load_dwordx4 {vr(QB+4,4)}, v{RA}, {sr(RWS,4)}, s42 offen offset:1024 {SC}')
    bsl = {s: s % 5 for s in range(7)}
    bkt = {s: 36 + 4*s for s in range(7)}
    dma_a = lambda s: dma_tile(R2, 39, (s % 4)*16384, 4*s*4096)
    dma_b = lambda s: dma_tile(R2, 47, bsl[s]*16384, bkt[s]*4096)
    late = opt.get('late_s1', 2)
    if opt.get('kdirect'):
        a(f'buffer_load_dwordx4 {vr(Kb(3),4)}, v{VD}, {sr(R2,4)}, 0 offen {SC}')
        a(f'buffer_load_dwordx4 {vr(Kb(3)+4,4)}, v{VD}, {sr(R2,4)}, 0 offen offset:1024 {SC}')
        vm.add('k0', 2)
    for k, g in enumerate(dma_a(0) + dma_b(0)):
        for x in g: a(x)
        vm.add('k0' if (k < 2 and not opt.get('kdirect')) else 's0')
    if late == 0:
        for g in dma_a(1) + dma_b(1):
            for x in g: a(x)
        vm.add('s1', 8)
    em = (~(LATE | LATE << 16)) & 0xffffffff
    if opt.get('narrow', 1):
        a(f's_mov_b32 exec_lo, {em}')
        a(f'buffer_load_dwordx2 {vr(VPOLL,2)}, v{VPB}, {sr(RWS,4)}, 0 offen {SC}')
        a('s_mov_b32 exec_lo, -1')
        vm.add('s0')
    zero16(a, OB)
    zero16(a, OA)
    a(f's_waitcnt vmcnt({vm.wait_for("k0")})')
    if not opt.get('x_nob'):
        if not opt.get('kdirect'):
            a(f'ds_read_b128 {vr(Kb(3),4)}, v{VD}')
            a(f'ds_read_b128 {vr(Kb(3)+4,4)}, v{VD} offset:1024')
            a('s_waitcnt lgkmcnt(0)')
        set_shift(a, Sb(0), QB, VSAV, '0', Kb(3), opt.get('quick', 0))
    a(f'ds_write_b128 v{VD}, {vr(QB,4)} offset:{QBUF}')
    a(f'ds_write_b128 v{VD}, {vr(QB+4,4)} offset:{QBUF+1024}')
    stamp(a, 'shift')
    a(f's_waitcnt vmcnt({vm.wait_for("s0")}) lgkmcnt(0)')
    if staged:
        a(f's_mov_b32 exec_lo, {em}')
        spin_mask(a, VPOLL, VPB, '0', 'f1c', 1, True)
    if late == 2:
        for g in dma_a(1) + dma_b(1):
            for x in g: a(x)
        vm.add('s1', 8)
    def late_poll():
        a(f's_mov_b32 exec_lo, {~em & 0xffffffff}')
        a('s_mov_b32 exec_hi, 0')
        a(f'buffer_load_dwordx2 {vr(VPOLL,2)}, v{VPB}, {sr(RWS,4)}, 0 offen {SC}')
        a('s_mov_b64 exec, -1')
        vm.add('pl')
    if LATE and LSTEP == 3:
        late_poll()
    stamp(a, 'preB0')
    a('s_barrier')
    stamp(a, 'B0')
    def rd_b(t):
        if t >= 28:
            return (RBA, (t-28)*4096)
        s, r = t//4, t % 4
        off = bsl[s]*16384 + r*4096
        return (RB1, off - 65536) if bsl[s] == 4 else (RB0, off)
    def initial_reads(rd):
        for t, f in [(0,0),(0,1),(1,0),(1,1),(0,2),(0,3),(2,0),(2,1),(1,2),(1,3),(2,2),(2,3)]:
            base, off = rd(t)
            dst = (Kb(t) + 4*f) if f < 2 else (Vb(t) + 4*(f-2))
            a(f'ds_read_b128 {vr(dst,4)}, v{KOF[base] if f < 2 else base} offset:{off + f*1024}')
    initial_reads(rd_b)
    a('v_and_b32 v3, 31, v1')
    a('s_lshl_b32 s46, s35, 7')
    a(f's_add_u32 s46, s46, {ZBUF}')
    a('v_lshl_add_u32 v3, v3, 2, s46')
    a(f'ds_read_b32 v{VZ}, v3')
    def fill_b():
        if late == 1:
            for g in dma_b(1):
                for x in g: a(x)
            vm.add('s1', 4)
        if opt.get('s2fill', 0):
            for g in dma_b(2):
                for x in g: a(x)
            vm.add('s2', 4)
        else:
            a('s_nop 5')
            pend.extend(('s2', g) for g in dma_b(2))
    a('s_waitcnt lgkmcnt(11)')
    pend = []
    TB9 = opt.get('tb9', 29.5)
    TB8 = opt.get('tb8', 29)
    bar_b = {1: 1, 5: 2, 9: 3, 13: 4, 17: 5, 21: 6, 25: 7, TB8: 8, TB9: 9}
    def pairs(tag, d):
        return [(tag, d[2*i] + d[2*i+1]) for i in range(len(d)//2)]
    def comb_write():
        a(f'v_add_u32 v7, {COMB}, v{VD}')
        a('s_nop 1')
        for i in range(4):
            a(f'ds_write_b128 v7, {vr(OB+4*i,4)} offset:{i*1024}')
        if opt.get('cflag', 1):
            lds_post(a, 48)
    def b_start(t):
        if t in bar_b:
            s = bar_b[t]
            tags = [f's{s}'] + (['pa'] if s == 5 else []) + (['pl'] if s == LSTEP - 2 else [])
            a(f's_waitcnt vmcnt({vm.wait_for(*tags)})' + {7: ' lgkmcnt(0)', 8: f' lgkmcnt({4 if TB8 == 30 else 0})'}.get(s, ''))
            if LATE and s == LSTEP - 2:
                spin_mask(a, VPOLL, VPB, '0', 'f1l', 2, True)
            if s == 5:
                spin_mask(a, VPOLL, VPA, '0', 'f1a', 2, True)
            a('s_barrier')
            assert not pend or s == 1
            if s + 2 in bsl:
                pend.extend((f's{s+2}', g) for g in dma_b(s + 2))
            elif s == 5:
                a(f'buffer_load_dwordx4 {vr(QA,4)}, v{RA}, {sr(RWS,4)}, s41 offen {SC}')
                a(f'buffer_load_dwordx4 {vr(QA+4,4)}, v{RA}, {sr(RWS,4)}, s41 offen offset:1024 {SC}')
                vm.add('s7', 2)
                pend.extend(pairs('s7', dma_tile(R1, 47, 32768, 0, voff=VA0, soff_s='0') + dma_tile(R1, 47, 49152, 0, voff=VA0+1, soff_s='0')))
            elif s == 6:
                pend.extend(pairs('s8', dma_tile(R1, 47, 65536, 0, voff=VA0+2, soff_s='0')) + pairs('s9', dma_wo(R0, W1_SLOT[0], 0)))
            elif s == 7:
                pend.extend(('s9', g) for g in dma_wo(R0, W1_SLOT[3], 3))
        if TB9 == 29.5 and t == 29:
            a('s_setprio 0')
            comb_write()
            gate_factor(a, -1)
            a(f's_waitcnt vmcnt({vm.wait_for("s9")})')
            a('s_barrier')
        if t == opt.get('prio_t', 99):
            a('s_setprio 2')
    def b_slot(t):
        if LATE and t == 4*(LSTEP - 2) - 3 - opt.get('pl_lead', 2):
            late_poll()
        if t == opt.get('pa_t', 14):
            a(f'buffer_load_dwordx2 {vr(VPOLL,2)}, v{VPA}, {sr(RWS,4)}, 0 offen {SC}')
            vm.add('pa')
        for rep in range(2 if (t < 3 and not opt.get('s2fill', 0)) else 1):
            if pend:
                tag, g = pend.pop(0)
                for x in g: a(x)
                vm.add(tag, sum('buffer_load' in x for x in g))
    def b_end(t):
        if t == 26 and not opt.get('x_noshift'):
            set_shift(a, Sb(28), QA, VSAV+2, vr(CD, 16), Kb(28))
        if t == (29 if opt.get('cflag', 1) else 28) and TB9 != 29.5:
            comb_write()
        if t == 29 and TB9 != 29.5:
            gate_factor(a, -1)
        if t == 34:
            p3_bases(a, W2_SLOT)
        if t == 35:
            lds_post(a, 32)
    def cin_b(t):
        if t == 28: return vr(CD, 16)
        if t == 36: return vr(CE, 16)
        return '0'
    isA = lambda t: t >= 28
    pipeline(a, 37, rd_b, lambda t: QA if isA(t) else QB, lambda t: OA if isA(t) else OB, cin_b, b_start, b_slot, b_end, 'b', fill_b)
    a('s_nop 11')
    stamp(a, 'endP')
    if opt.get('x_hint'): flag_prep(a, 6, 0)
    finalize(a, OA, 43, 45)
    if opt.get('x_hint'):
        flag_fire(a, 6, 's51', 0, PACK[0])
        a('s_mov_b32 s51, 0x40000000')
    stamp(a, 'st2')
    fbflag_publish(a)
    lds_wait(a, 16, 32, 'w2ok')
    p3_trs(a, 0)
    p3_addr(a)
    flag_prep(a, 6)
    a('s_waitcnt lgkmcnt(7)')
    bv = opt.get('bvec', 0)
    if opt.get('bearly', 1) and not bv: spoll_issue(a, LO)
    a('s_waitcnt vmcnt(0)')
    flag_fire(a, 6, 's51', 2, PACK[0])
    stamp(a, 'fs')
    a('s_setprio 0')
    if bv:
        a('s_cmp_ge_u32 s38, 28')
        a('s_cbranch_scc1 L_p3_x')
        a('v_lshlrev_b32 v36, 7, v1')
        if bv == 2:
            a('s_mov_b64 exec, 0xff')
            a(f'buffer_load_dwordx2 v[38:39], v36, {sr(RWS,4)}, s7 offen {SC}')
            a('s_mov_b64 exec, -1')
        p3_trs(a, 1)
        a('s_mov_b64 exec, 0xff')
        a(f's_mov_b32 s61, {SPIN_LIMIT}')
        if bv == 2:
            a('s_branch L_bv_chk')
        a.label('L_bv_lp')
        a(f'buffer_load_dwordx2 v[38:39], v36, {sr(RWS,4)}, s7 offen {SC}')
        a.label('L_bv_chk')
        a('ds_read_b32 v37, v13')
        a('s_waitcnt vmcnt(0) lgkmcnt(0)')
        a('v_cmp_ne_u32 vcc, 0, v37')
        a('s_cbranch_vccnz L_bv_out')
        a(f'v_cmp_ne_u64 vcc, {sr(NONCE,2)}, v[38:39]')
        a('s_sub_u32 s61, s61, 1')
        a('s_cselect_b64 vcc, 0, vcc')
        a('s_cbranch_vccz L_bv_ok')
        a('s_mov_b64 exec, vcc')
        a('s_branch L_bv_lp')
        a.label('L_bv_out')
        a('s_mov_b64 exec, -1')
        a('s_branch L_p3_x')
        a.label('L_bv_ok')
        a('s_mov_b64 exec, -1')
        p3_oloads(a, 0)
        a('s_branch L_p3_l1')
    if not opt.get('bearly', 1): spoll_issue(a, LO)
    p3_shared(a, opt)

    a.c('===== rerun requested: true row maxima of both branches, split into three bf16 terms =====')
    a.label('L_b_fallback')
    b_setup(a)
    true_max_B(a)
    a('s_mov_b32 exec_lo, 0')
    a(f'v_mov_b64 {vr(QA+6,2)}, 0')
    a('s_mov_b32 exec_lo, -1')
    for i in range(16):
        a(f'v_mov_b32 v{Sb(1)+i}, {NEGBIG}')
    for i in range(9):
        skip = a.new('fbA')
        a(f's_cmp_lt_u32 s40, {i}')
        a(f's_cbranch_scc1 {skip}')
        a(f's_sub_u32 s48, s40, {i}')
        a('s_lshl_b32 s48, s48, 12')
        a(f'buffer_load_dwordx4 {vr(K0,4)}, v{KOF[RA]}, {sr(R1,4)}, s48 offen {SC}')
        a(f'buffer_load_dwordx4 {vr(K0+4,4)}, v{KOF[RA]}, {sr(R1,4)}, s48 offen offset:1024 {SC}')
        a('s_waitcnt vmcnt(0)')
        qk(a, Sb(0), K0, QA, cin_b(28 + i), 0)
        qk(a, Sb(0), K0, QA, None, 1)
        a('s_nop 15')
        for r in range(16):
            a(f'v_max_f32 v{Sb(1)+r}, v{Sb(1)+r}, v{Sb(0)+r}')
        a.label(skip)
    split3(a, Sb(1), VSAV+2)
    a(f'v_mov_b32 v{VPOLL}, s{NONCE}')
    a(f'v_mov_b32 v{VPOLL+1}, s{NONCE+1}')
    a('s_barrier')
    a('s_branch L_b_restart')

    def first_setup():
        window(a, 33, 36, 37, 40)
        a('v_and_b32 v3, 15, v1')
        a('v_lshrrev_b32 v4, 4, v1')
        a('v_lshrrev_b32 v5, 1, v3')
        a('v_xor_b32 v5, v5, v4')
        a('s_lshl_b32 s40, s34, 12')
        a('v_lshl_add_u32 v6, v3, 7, s40')
        a(f'v_lshl_add_u32 v{XR[0]}, v5, 4, v6')
        a(f'v_xor_b32 v{XR[1]}, 64, v{XR[0]}')
        a('v_bfe_u32 v5, v1, 2, 2')
        a('v_lshl_add_u32 v5, v4, 2, v5')
        a(f'v_mul_u32_u24 v5, {2*WP}, v5')
        a('v_and_b32 v6, 3, v1')
        a('v_lshl_add_u32 v5, v6, 3, v5')
        a(f's_add_u32 s40, s37, {WRING}')
        a(f'v_add_u32 v{WRB}, s40, v5')
        a(f'v_lshlrev_b32 v{VGA}, 4, v4')
        a(f'v_add_u32 v{VGA}, {GATE}, v{VGA}')
        a(f'v_mov_b32 v2, {LDS_SIZE}')
        a('s_mov_b32 vcc_lo, 0x00010001')
        a('s_mov_b32 vcc_hi, 0x00010001')
        a(f'v_cndmask_b32 v{VGA}, v2, v{VGA}, vcc')
        a('s_waitcnt lgkmcnt(0)')
        stamp(a, 'karg')
    def later_setup(var):
        G = []
        def grp(f, atomic=False):
            n0 = len(a.lines)
            f()
            L = a.lines[n0:]
            del a.lines[n0:]
            if atomic: G.append(L)
            else: G.extend([x] for x in L)
        def tag():
            sk = a.new('notag')
            a('s_or_b32 s53, s2, s34')
            a(f's_cbranch_scc1 {sk}')
            a(f's_memrealtime {sr(NONCE,2)}')
            a('s_waitcnt lgkmcnt(0)')
            a(f's_lshl_b64 {sr(NONCE,2)}, {sr(NONCE,2)}, 1')
            a(f's_or_b32 s{NONCE}, s{NONCE}, 1')
            a(f'v_mov_b32 v{VGO}, s{NONCE}')
            a(f'v_mov_b32 v{VGO+1}, s{NONCE+1}')
            a('s_mov_b64 exec, 1')
            a(f'buffer_store_dwordx2 {vr(VGO,2)}, off, {sr(R3,4)}, 0 {SC}')
            a('s_mov_b64 exec, -1')
            a.label(sk)
        def rest1():
            columns()
            window(a, 62, 38, 39, 40)
            a(f'v_add_u32 v{WRL}, s39, v{WRL}')
            a(f'v_add_u32 v{WRA}, {WRING}, v{WRL}')
            a(f'v_add_u32 v{WRE}, {WE}, v{WRL}')
            a('v_lshlrev_b32 v2, 4, v3')
            a(f'v_lshl_add_u32 v{VST}, v4, 9, v2')
            a('v_cmp_eq_u32 vcc, 12, v3')
            a('v_mov_b32 v2, 0x3f803f80')
            a(f's_mov_b32 s50, {f32bits(CSCALE)}')
            a(f's_mov_b32 s51, {f32bits(CSCALE)}')
            a(f'v_cndmask_b32 v{VPAD}, 0, v2, vcc')
            p2_scalars(a)
            a('s_lshl_b32 s46, s62, 6')
            a('s_add_u32 s46, s46, s40')
            a('s_lshl_b32 s46, s46, 7')
            a(f's_add_u32 s3, s46, {WS_F1}')
            a('s_lshl_b32 s46, s33, 6')
            a('s_add_u32 s46, s46, s40')
            a('s_lshl_b32 s46, s46, 7')
            a(f's_add_u32 s52, s46, {WS_F1 + 131072}')
            mksrd(a, RWS, P_WS, WS_END)
        def fwarm():
            a('v_lshlrev_b32 v2, 3, v1')
            a(f'v_mov_b32 v{VGO}, 0')
            a(f'v_mov_b32 v{VGO+1}, 0')
            a('s_add_u32 s46, s45, 2048')
            flag_fire(a, VGO, 's45')
            flag_fire(a, VGO, 's46')
            if opt.get('fw1', 0):
                flag_fire(a, VGO, 's52')
        def rest2():
            p2_srds(a)
            p3_setup(a)
            store_offsets(a, var, 33, 1)
            store_offsets(a, var, 62, 0)
            prefill(a, var)
        grp(lambda: mksrd(a, R3, P_DBG, 256))
        grp(tag, True)
        grp(rest1)
        grp(rest2)
        if opt.get('fwarm', 1): grp(fwarm, True)
        return G
    later = []
    curvar = [None]
    def hookB(u):
        if u == 14:
            while later: a.lines.extend(later.pop(0))
        if u == 22:
            a(f'buffer_load_dwordx2 {vr(VGO,2)}, off, {sr(R3,4)}, 0 {SC}')
        if u == NU - 1 and not opt.get('zlate', 0):
            for N in range(NZ1, 14):
                a(f'ds_read_b128 {vr(ZG[N-NZ1],4)}, v{VGA} offset:{N*64}')
    def hookA(u):
        if opt.get('zlate', 0) and u == opt.get('nf', 8) - 3:
            for N in range(NZ1, 14):
                a(f'ds_read_b128 {vr(XF+4*(N-NZ1),4)}, v{VGA} offset:{N*64}')
        if opt.get('zlate', 0) and u == opt.get('nf', 8):
            for N in range(NZ1, 14):
                zmfma(a, N, XF+4*(N-NZ1))
        if u == opt.get('nf', 8):
            stamp(a, 'preF')
            a('s_waitcnt vmcnt(0)')
            get_nonce(a, VGO, 'go_a')
            flag_store(a, VGO, 's52')
            stamp(a, 'flagB')
        if u == 37:
            prefill(a, curvar[0], PKA)
    for var in VARIANTS:
        a.c(f'===== waves 0-3: phase-1 products, section kinds {var} =====')
        a.label(f'P1B_{var}')
        first_setup()
        later.extend(later_setup(var))
        if not opt.get('sliced', 0):
            while len(later) > opt.get('fwarm', 1): a.lines.extend(later.pop(0))
        stamp(a, 'g0')
        a('s_barrier')
        first_reads(a, False)
        gemm_pass(a, var, False, hookB, p1_epi(var, PK, True))
        stamp(a, 'stB')
        if not opt.get('zlate', 0):
            a('s_waitcnt lgkmcnt(0)')
            for N in range(NZ1, 14):
                zmfma(a, N, ZG[N-NZ1])
        stamp(a, 'g7')
        a('s_barrier')
        first_reads(a, True)
        curvar[0] = var
        gemm_pass(a, var, True, hookA, p1_epi(var, PKA, False))
        a(f'v_mov_b32 v{PKA+24}, v{VST}')
        a('s_branch L_a_attn')
    a.c('===== waves 0-3: attention stream a (36 full-branch tiles) =====')
    a.label('L_a_attn')
    stamp(a, 'endA')
    a('v_and_b32 v3, 31, v1')
    a('s_lshl_b32 s46, s35, 7')
    a(f's_add_u32 s46, s46, {ZBUF}')
    a('v_lshl_add_u32 v3, v3, 2, s46')
    a('s_mov_b64 exec, 0xffff')
    a(f'ds_write2_b32 v3, v{ZD}, v{ZD+4} offset1:16')
    a('s_mov_b64 exec, -1')
    a(f'ds_read_b32 v{VZ}, v3')
    p2_vec1(a)
    a('s_mov_b32 s63, 0')
    a('s_add_u32 s45, s45, 2048')
    a.label('L_a_restart')
    vm = VM()
    a('v_and_b32 v2, 15, v1')
    a(f'v_mov_b32 v3, {FBFLAG}')
    a('v_lshl_add_u32 v2, v2, 2, v3')
    a(f'ds_write_b32 v2, v{VZERO}')
    if opt.get('st_t0', 3) < 0:
        for t in range(3):
            tile_stores(a, PKA+8*t, PKA+24, SOFF[t], SC)
        vm.add('st', 6)
    zero16(a, OB)
    a('s_waitcnt lgkmcnt(0)')
    stamp(a, 'preB0')
    a('s_barrier')
    stamp(a, 'B0')
    rd_a = lambda t: (RA, ((t//4) % 4)*16384 + (t % 4)*4096)
    a(f'ds_read_b128 {vr(QB,4)}, v{VD} offset:{QBUF}')
    a(f'ds_read_b128 {vr(QB+4,4)}, v{VD} offset:{QBUF+1024}')
    initial_reads(rd_a)
    def fill_a():
        if late == 1:
            for g in dma_a(1):
                for x in g: a(x)
            vm.add('s1', 4)
        if opt.get('s2fill', 0):
            for g in dma_a(2):
                for x in g: a(x)
            vm.add('s2', 4)
        else:
            a('s_nop 5')
            pend.extend(('s2', g) for g in dma_a(2))
    a('s_waitcnt lgkmcnt(10)')
    pend = []
    def a_start(t):
        if t % 4 == 1 and t <= 29:
            s = (t + 3)//4
            if s >= 2 or late == 1:
                a(f's_waitcnt vmcnt({vm.wait_for(f"s{s}")})' + (' lgkmcnt(0)' if s >= 7 else ''))
            a('s_barrier')
            assert not pend or s == 1
            if s + 2 <= 8:
                pend.extend((f's{s+2}', g) for g in dma_a(s + 2))
            elif s == 7:
                mksrd(a, R3, P_AWO, 448*896)
                if opt.get('w2touch', 1):
                    a('s_and_b32 s46, s36, 3')
                    a('s_lshl_b32 s46, s46, 2')
                    a('s_add_u32 s46, s46, s35')
                    a('s_mul_i32 s46, s46, 14')
                    a('s_add_u32 s46, s46, 224')
                    a('v_min_u32 v3, 13, v1')
                    a('v_add_u32 v3, s46, v3')
                    a('v_mul_u32_u24 v3, 896, v3')
                    a('s_lshl_b32 s46, s37, 7')
                    a(f'buffer_load_dword v{VPOLL}, v3, {sr(R3,4)}, s46 offen')
                    vm.add('touch')
                pend.extend(pairs('wo', dma_wo(R0, W1_SLOT[1], 1) + dma_wo(R0, W1_SLOT[2], 2)))
            else:
                pend.extend(pairs('wo', dma_wo(R3, W2_SLOT[1], 1) + dma_wo(R3, W2_SLOT[0], 0)))
        if t == opt.get('ta9', 36):
            a(f's_waitcnt vmcnt({vm.wait_for("wo")}) lgkmcnt(0)')
            a('s_barrier')
            stamp(a, 'B9')
        if t == opt.get('st_t0', 3) + opt.get('st_lag', 7):
            a(f's_waitcnt vmcnt({vm.wait_for("st")})')
            flag_store(a, 4, 's3')
            vm.add('fl')
    def a_slot(t):
        st0 = opt.get('st_t0', 3)
        if st0 <= t < st0 + 3:
            t -= st0
            tile_stores(a, PKA+8*t, PKA+24, SOFF[t], SC)
            vm.add('st', 2)
            t += st0
        for rep in range(2 if (t < 3 and not opt.get('s2fill', 0)) else 1):
            if pend:
                tag, g = pend.pop(0)
                for x in g: a(x)
                vm.add(tag, sum('buffer_load' in x for x in g))
    def a_end(t):
        def comb_reads():
            if opt.get('cflag', 1): a('ds_read_b32 v26, v27')
            for i in range(4):
                a(f'ds_read_b128 {vr(OA+4*i,4)}, v7 offset:{i*1024}')
        if t == opt.get('crd_t', 32):
            a(f'v_add_u32 v7, {COMB}, v{VD}')
            a(f's_lshl2_add_u32 s46, s35, {FBFLAG + 48}')
            a('v_mov_b32 v27, s46')
            comb_reads()
        if t == 34 and opt.get('cflag', 1):
            a.label('L_comb_chk')
            a('v_cmp_ne_u32 vcc, 0, v26')
            a('s_cbranch_vccnz L_comb_ok')
            comb_reads()
            a('s_waitcnt lgkmcnt(0)')
            a('s_branch L_comb_chk')
            a.label('L_comb_ok')
        if t == 28:
            gate_factor(a, +1)
        if t == 33:
            p3_bases(a, W1_SLOT)
        if t == opt.get('touch_t', 20):
            p2_vec2(a)
    pipeline(a, 36, rd_a, lambda t: QB, lambda t: OB, lambda t: '0', a_start, a_slot, a_end, 'a', fill_a)
    if opt.get('ta9', 36) == 36:
        a(f's_waitcnt vmcnt({vm.wait_for("wo")}) lgkmcnt(0)')
        a('s_barrier')
    a('s_setprio 3')
    flag_prep(a, 24, 0)
    a('s_nop 7')
    stamp(a, 'endP')
    for r in range(16):
        a(f'v_add_f32 v{OB+r}, v{OB+r}, v{OA+r}')
    finalize(a, OB, 44, 45)
    stamp(a, 'st2')
    fbflag_publish(a)
    if opt.get('ta9', 36) > 36:
        a('s_waitcnt vmcnt(2) lgkmcnt(0)')
        a('s_barrier')
    for g in dma_wo(R3, W2_SLOT[2], 2) + dma_wo(R3, W2_SLOT[3], 3):
        for x in g: a(x)
    p3_addr(a)
    if not opt.get('aprio', 1): a('s_setprio 0')
    a('s_waitcnt vmcnt(8)')
    flag_fire(a, 24, 's51', 0, PACK[0])
    stamp(a, 'fs')
    if opt.get('aearly', 1): spoll_issue(a, LO)
    p3_trs(a, 0)
    a('s_waitcnt vmcnt(1) lgkmcnt(6)')
    if not opt.get('aearly', 1): spoll_issue(a, LO)
    lds_post(a, 16)
    stamp(a, 'w2')
    a('s_branch L_p3')

    a.label('L_a_fallback')
    for r in SOFF + [3]:
        a(f's_mov_b32 s{r}, 0x40000000')
    for r in range(3):
        a(f'v_mov_b32 v{PKA+24+r}, 0')
    a('s_barrier')
    a('s_branch L_a_restart')

    a.label('L_exit')
    dump_stamps(a, 0)
    a.label('L_done')
    a('s_endpgm')
    return 256

DOC = """;
;     waves 4-7 stream x and W into LDS). Results go to d_ws as MFMA fragments (Q pre-scaled by log2(e)/sqrt(28));
;     the gate logit comes from an extra small product.
;     feed the P V product directly (sparse MFMA picks their upper halves), a ones row of V gives the row sums.
;  3. Output projection of gated, normalised head outputs: 224 workgroups, 64x64 output tile each.
"""
def build(path, **opt):
    global SLEEP2, FULLFLAG, BST
    BST = opt.get('bst', 'sc1')
    DENSE[0] = opt.get('dense', 1)
    KVF[0] = opt.get('kvf', 'sc1')
    REORD[0] = opt.get('reord', 1); EPIW[0] = opt.get('epiw', 3)
    FULL[0] = opt.get('full', 1)
    PACK[0] = opt.get('pack', 0)
    SWAPH[0] = opt.get('swaph', 0)
    XP.clear(); XP.update(opt.get('xp', {}))
    XNOWO[:] = [1] if opt.get('x_nowo') else []
    P1_BARS[:] = opt.get('bars', [0, 1, 2, 3, 4, 5, 6, 7, 10, 12])
    PV.clear(); PV.update(opt.get('pv', dict(slot=1, prio='dec', lag=3, altend=29)))
    SLEEP2 = opt.get('sleep2', 3); FULLFLAG = opt.get('fullflag', 1)
    a = Asm()
    hdr = open('cdna_kernels/' + NAME + '.s.ref').read().split('\n')
    head = [l for l in hdr if l.startswith(';') and '@launch' not in l]
    out = '\n'.join(head) + '\n'
    out += f'; @launch grid=(256,1,1) block=(512,1,1) lds={LDS_SIZE}\n'
    out += DOC
    out += '.amdgcn_target "amdgcn-amd-amdhsa--gfx950"\n.text\n'
    v = gen(a, NAME + '_kernel', opt)
    out += a.text()
    out += '.section .rodata,"a"\n.p2align 6\n'
    out += kernel_desc(NAME + '_kernel', v, 102)
    open(path, 'w').write(out)

SETS = {
 'A': ['g0', 'g1', 'g5', 'g6', 'endB', 'g7', 'g10', 'g12'],
 'B': ['preF', 'flagB', 'pb', 'poll0', 'f1b', 'endA', 'preB0', 'B0'],
 'C': ['B0', 'p0', 'q1', 'q5', 'q9', 'q17', 'q25', 'endP'],
 'D': ['endP', 'st2', 'B9', 'flag2', 'f2b', 'mfB', 'preC', 'C'],
 'E': ['endP', 'flag2', 'C', 'f2a', 'mfA', 'st'],
 'H': ['st2', 'p2w', 'fs', 'f2b0', 'f2bx', 'f2b1', 'f2b2', 'f2b'],
 'I': ['endB', 'g7', 'flagB', 'g12', 'f1b', 'preB0', 'B0', 'endP'],
 'J': ['st2', 'flag2', 'fack', 'fs', 'f2b', 'mfB', 'C', 'f2a'],
 'K': ['endP', 'st2', 'fs', 'w2', 'f2b', 'f2a', 'mfA', 'X'],
 'L': ['B9', 'C', 'f2a', 'mfB', 'mfA', 'X', 'st'],
 'M': ['g1', 'g6', 'endB', 'g7', 'flagB', 'g12', 'preB0', 'B0'],
 'N': ['g1', 'endB', 'g7', 'preF', 'flagB', 'g12', 'f1b', 'endA'],
 'O': ['B0', 'q1', 'q5', 'q9', 'q17', 'q25', 'q33', 'endP'],
 'P': ['f1b', 'shift', 'preB0', 'B0', 'p0', 'q1', 'q5', 'endP'],
 'Q': ['q1', 'q5', 'q9', 'q13', 'q17', 'q21', 'q25', 'q29'],
 'R': ['q25', 'q29', 'endP', 'st2', 'fs', 'f2a', 'mfA', 'X'],
 'S': ['g1', 'g2', 'g6', 'g7', 'g10', 'g12', 'f1b', 'endA'],
 'T': ['pre', 'karg', 'i0', 'i1', 'g0', 'g1', 'g2', 'g6'],
 'U': ['g1', 'h1', 'g2', 'h2', 'g3', 'h6', 'endB', 'endA'],
 'Z': [],
 'F': ['g6', 'endB', 'g7', 'preF', 'flagB', 'g10', 'g12', 'B0'],
 'G': ['q17', 'q21', 'q25', 'p29', 'q30', 'p33', 'q33', 'endP'],
}
def build_all(tag, sets='ABCDE', **opt):
    common.DIAG = False
    build(f'work/{tag}.s', **opt)
    common.DIAG = True
    for k in sets:
        common.STAMPS = SETS[k]
        build(f'work/{tag}_{k}.s', **opt)
        s = open(f'work/{tag}_{k}.s').read()
        open(f'work/{tag}_{k}.s', 'w').write('; STAMPS start ' + ' '.join(SETS[k]) + '\n' + s)
    common.DIAG = False

if __name__ == '__main__':
    build_all('v22', 'Z')
```

```python
import fused, common, sys
def mk(tag, prob_shift, maxsh):
    def stamp_init2(a):
        a('s_memrealtime s[72:73]')
        a('v_readfirstlane_b32 s74, v0')
        a('s_waitcnt lgkmcnt(0)')
        a('s_mul_i32 s75, s2, 2654435761')
        a('s_add_u32 s72, s72, s75')
        a('s_mul_i32 s74, s74, 40503')
        a('s_add_u32 s72, s72, s74')
    def stamp2(a, i):
        sk, lp = a.new('jit'), a.new('jitl')
        a('s_cselect_b32 s74, 1, 0')
        a('s_mul_i32 s72, s72, 1664525')
        a('s_add_u32 s72, s72, 1013904223')
        a(f's_lshr_b32 s73, s72, {32 - prob_shift}')
        a(f's_cbranch_scc1 {sk}')
        a(f's_bfe_u32 s73, s72, {(maxsh << 16) | 8}')
        a.label(lp)
        a('s_sleep 1')
        a('s_sub_u32 s73, s73, 1')
        a(f's_cbranch_scc0 {lp}')
        a.label(sk)
        a('s_cmp_lg_u32 s74, 0')
    fused.stamp_init = stamp_init2; fused.stamp = stamp2
    fused.build(f'work/{tag}.s')
mk('jit1', 3, 5)
mk('jit2', 4, 7)
```

```python
import sys
from common import *
import common

WS_F1 = 20 << 20
WS_F2 = WS_F1 + 262144
NONCE = 100
XRING = 0
WE = 65536
WRING = 98304
GATE = 159744
ZBUF = 161792
FBFLAG = 162304
LDS_SIZE = 163840
QBUF = 49152
COMB = 65536
W1_SLOT = [147456, 16384, 32768, 81920]
W2_SLOT = [98304, 49152, 0, 65536]

VARIANTS = ['QQQ', 'QKK', 'KKK', 'KKV', 'VVV']
SC = 'sc1'
SPIN_LIMIT = 1 << 16
SLEEP2 = 2
FULLFLAG = 1

P_X, P_AW, P_AWO, P_BW, P_BWO, P_G, P_OUT, P_DBG, P_WS = 4, 6, 8, 12, 14, 16, 18, 20, 22
R0, RWS, R1, R2, R3 = 24, 28, 64, 68, 96

def mksrd(a, d, p, nbytes):
    srd(a, d, p, p+1, nbytes)

def dispatch(a, sreg, prefix):
    a(f's_cmp_lt_u32 s{sreg}, 5')
    a(f's_cbranch_scc1 {prefix}_QQQ')
    a(f's_cmp_eq_u32 s{sreg}, 5')
    a(f's_cbranch_scc1 {prefix}_QKK')
    a(f's_cmp_lt_u32 s{sreg}, 10')
    a(f's_cbranch_scc1 {prefix}_KKK')
    a(f's_cmp_eq_u32 s{sreg}, 10')
    a(f's_cbranch_scc1 {prefix}_KKV')
    a(f's_branch {prefix}_VVV')

def window(a, cb_s, ws0_s, co_s, t):
    a(f's_mul_i32 s{ws0_s}, s{cb_s}, 168')
    a(f's_and_b32 s{co_s}, s{ws0_s}, 15')
    a(f's_sub_u32 s{ws0_s}, s{ws0_s}, s{co_s}')

def wslot(g):
    if g < 7: return WRING + (g % 5)*12288
    return {7: WE, 8: WE + 12288, 9: WRING + 2*12288, 10: 0, 11: WRING + 3*12288, 12: 32768, 13: WRING + 4*12288}[g]

def spin_mask(a, vdata, vaddr, soff, name, sleep, loaded=False, need=None):
    ok, lp = a.new(name + '_ok'), a.new(name + '_lp')
    a(f's_mov_b32 s61, {SPIN_LIMIT}')
    if not loaded:
        a(f'buffer_load_dwordx2 {vr(vdata,2)}, v{vaddr}, {sr(RWS,4)}, {soff} offen {SC}')
        a('s_waitcnt vmcnt(0)')
        stamp(a, 'poll0')
    a.label(lp)
    a(f'v_cmp_ne_u64 vcc, {sr(NONCE,2)}, {vr(vdata,2)}')
    a('s_sub_u32 s61, s61, 1')
    a('s_cselect_b64 vcc, 0, vcc')
    if need is None:
        a(f's_cbranch_vccz {ok}')
    else:
        a(f's_and_b32 s46, vcc_lo, {need}')
        a('s_or_b32 s46, s46, vcc_hi')
        a(f's_cbranch_scc0 {ok}')
    a('s_mov_b64 exec, vcc')
    if sleep: a(f's_sleep {sleep}')
    a(f'buffer_load_dwordx2 {vr(vdata,2)}, v{vaddr}, {sr(RWS,4)}, {soff} offen {SC}')
    a('s_waitcnt vmcnt(0)')
    a(f's_branch {lp}')
    a.label(ok)
    a('s_mov_b64 exec, -1')

def get_nonce(a, vdata, name):
    ok, lp = a.new(name + '_ok'), a.new(name + '_lp')
    a(f's_mov_b32 s61, {SPIN_LIMIT}')
    a.label(lp)
    a(f'v_cmp_eq_u32 vcc, 0, v{vdata}')
    a('s_sub_u32 s61, s61, 1')
    a('s_cselect_b64 vcc, 0, vcc')
    a(f's_cbranch_vccz {ok}')
    a('s_sleep 8')
    a(f'buffer_load_dwordx2 {vr(vdata,2)}, off, {sr(R3,4)}, 0 {SC}')
    a('s_waitcnt vmcnt(0)')
    a(f's_branch {lp}')
    a.label(ok)
    a(f'v_readfirstlane_b32 s{NONCE}, v{vdata}')
    a(f'v_readfirstlane_b32 s{NONCE+1}, v{vdata+1}')
    a('s_nop 1')

XR = [8, 9]
WRB, WRA, WRE, WRL = 12, 13, 6, 5
VST, VPAD = 14, 7
WB = [16, 24, 32, 40]
PK = 52
ACC = 80
XF = 128
VGO = 76
VGA = 79
ZD = 240
ZG = [24+8, 24+12, 40, 44]
NZ1 = 10
WP = 176
NU = 42

XP = {}
REORD = [1]
def sub(u):
    if REORD[0] and u >= 36:
        return 12 + (u - 36) % 2, (u - 36)//2
    return u//3, u % 3

def group(isA, u):
    if u >= NU: return []
    N, i = sub(u)
    g = (7 if isA else 0) + N//2
    if g < 7: base, off = WRB, wslot(g) - WRING
    elif g < 9: base, off = WRE, wslot(g) - WE
    elif g in (10, 12): base, off = WRL, wslot(g)
    else: base, off = WRA, wslot(g) - WRING
    L = []
    if not isA and i == 0:
        for st in range(2):
            L.append(f'ds_read_b128 {vr(XF+8*N+4*st,4)}, v{XR[N%2]} offset:{XRING + ((N//2)%4)*16384 + st*2048}')
    for dt in range(2):
        for e in range(2):
            L.append(f'ds_read_b64_tr_b16 {vr(WB[u%4]+4*dt+2*e,2)}, v{base} offset:{off + (N%2)*32*WP + e*WP + i*56 + dt*32}')
    if not isA and i == 2 and N < NZ1:
        L.append(f'ds_read_b128 {vr(XF+8*(N+4),4)}, v{VGA} offset:{N*64}')
    return L

def first_reads(a, isA):
    for u in range(3):
        for x in group(isA, u): a(x)

def zmfma(a, N, greg):
    for st in range(2):
        a(f'v_mfma_f32_16x16x32_bf16 {vr(ZD+4*st,4)}, {vr(greg,4)}, {vr(XF+8*N+4*st,4)}, {"0" if N == 0 else vr(ZD+4*st,4)}')

P1_BARS = [0, 1, 2, 3, 4, 5, 6, 7, 10, 12]
def gemm_pass(a, var, isA, hook, epi):
    pend = []
    for u in range(NU):
        N, i = sub(u)
        nx = list(group(isA, u+3))
        young = len(group(isA, u+1)) + len(group(isA, u+2))
        a(f's_waitcnt lgkmcnt({young})')
        if young + len(nx) > 15:
            nx[-1] = 's_waitcnt lgkmcnt(14)\n' + nx[-1]
        if u + 3 < NU and (u+3) % 6 == 0:
            g = (7 if isA else 0) + (u+3)//6
            if g in P1_BARS:
                stamp(a, f'g{g}')
                a('s_barrier')
                stamp(a, f'h{g}')
        if REORD[0] and u in (39, 41):
            pend += epi[(u - 39)//2]
        cut = {0: [0, 0, 0, 0, 0], 4: [0, 1, 2, 3, 4], 5: [0, 2, 3, 4, 5], 6: [0, 2, 4, 5, 6]}[len(nx)]
        for q, (dt, st) in enumerate(((0, 0), (0, 1), (1, 0), (1, 1))):
            xf = vr(XF+8*N+4*st, 4); wf = vr(WB[u%4]+4*dt, 4)
            if var[i] == 'V':
                d = vr(ACC+16*i+8*dt+4*st, 4)
                a(f'v_mfma_f32_16x16x32_bf16 {d}, {xf}, {wf}, {"0" if N == 0 else d}')
            else:
                d = vr(ACC+16*i+8*st+4*dt, 4)
                a(f'v_mfma_f32_16x16x32_bf16 {d}, {wf}, {xf}, {"0" if N == 0 else d}')
            for x in nx[cut[q]:cut[q+1]]: a(x)
            k = 0
            while pend and k < EPIW[0]:
                g = pend.pop(0)
                for x in g: a(x)
                k += len(g)
            if u == 40 and q == 3: a('s_nop 1')
        if i == 2 and not isA and N < NZ1:
            zmfma(a, N, XF+8*(N+4))
        hook(u)
    stamp(a, 'endA0' if isA else 'endB')
    if REORD[0] and sum(len(g) for g in pend) < 8:
        a('s_nop 7')
    for g in pend + sum(epi[(2 if REORD[0] else 0):], []):
        for x in g: a(x)
EPIW = [2]

SOFF = [47, 59, 16]
SOFFB = [54, 55, 17]
def store_offsets(a, var, cb_s, br):
    SOFF = SOFFB if br else globals()['SOFF']
    a(f's_mul_i32 s58, s{cb_s}, 3')
    for i in range(3):
        a(f's_add_u32 s61, s58, {i}')
        a('s_and_b32 s61, s61, 15')
        a('s_lshl_b32 s61, s61, 6')
        a('s_add_u32 s61, s61, s40')
        ty = var[i]
        if ty == 'Q':
            a(f's_lshl_b32 s61, s61, 11')
            a(f's_add_u32 s{SOFF[i]}, s61, {WS_Q + br*1024*2048}')
        else:
            a(f's_lshl_b32 s61, s61, 12')
            a(f's_add_u32 s{SOFF[i]}, s61, {br*1024*4096 + (2048 if ty == "V" else 0)}')

PKA = 192
def prefill(a, var, PK=PK):
    for i in range(3):
        p = PK + 8*i
        ty = var[i]
        if ty == 'V':
            for r in range(4, 8):
                a(f'v_mov_b32 v{p+r}, v{VPAD}')
        else:
            for st in range(2):
                a(f'v_mov_b32 v{p+4*st+2}, {"0" if ty == "Q" else "0x3f803f80"}')
                a(f'v_mov_b32 v{p+4*st+3}, {"0" if ty == "Q" else "0x3f80"}')

def tile_stores(a, p, va, soff, fl):
    a(f'buffer_store_dwordx4 {vr(p,4)}, v{va}, {sr(RWS,4)}, s{soff} offen {fl}')
    a(f'buffer_store_dwordx4 {vr(p+4,4)}, v{va}, {sr(RWS,4)}, s{soff} offen offset:256 {fl}')

def p1_epi(var, PK, stores):
    E = []
    for i in range(3):
        ty = var[i]
        d = ACC + 16*i; p = PK + 8*i
        cvt = lambda r: f'v_cvt_pk_bf16_f32 v{p+r}, v{d+2*r}, v{d+2*r+1}'
        G = []
        if ty == 'Q':
            if i == 2: G += [[f'v_pk_mul_f32 {vr(d+r,2)}, {vr(d+r,2)}, s[50:51]'] for r in range(0, 16, 2)]
            else: G += [[f'v_mul_f32 v{d+r}, s50, v{d+r}'] for r in range(16)]
        if ty == 'V':
            G += [[cvt(r)] for r in range(4)]
            G.append(['s_mov_b32 exec_lo, 0x0fff0fff', 's_mov_b32 exec_hi, 0x0fff0fff'] + [cvt(r) for r in range(4, 8)] + ['s_mov_b64 exec, -1'])
        else:
            G += [[cvt(r)] for r in (0, 1, 4, 5)]
            G.append(['s_mov_b32 exec_hi, 0xffff'] + [cvt(r) for r in (2, 3, 6, 7)] + ['s_mov_b32 exec_hi, -1'])
        if stores:
            G.append([f'buffer_store_dwordx4 {vr(p,4)}, v{VST}, {sr(RWS,4)}, s{SOFFB[i]} offen {SC}'])
            G.append([f'buffer_store_dwordx4 {vr(p+4,4)}, v{VST}, {sr(RWS,4)}, s{SOFFB[i]} offen offset:256 {SC}'])
        E.append(G)
    return E

def flag_prep(a, tmp, va=2):
    a(f'v_lshlrev_b32 v{va}, 3, v1')
    a(f'v_mov_b32 v{tmp}, s{NONCE}')
    a(f'v_mov_b32 v{tmp+1}, s{NONCE+1}')

def flag_fire(a, tmp, soff, va=2, one=False):
    a('s_mov_b64 exec, 1' if one else 's_mov_b64 exec, 0xffff')
    a(f'buffer_store_dwordx2 {vr(tmp,2)}, v{va}, {sr(RWS,4)}, {soff} offen {SC}')
    a('s_mov_b64 exec, -1')

def flag_store(a, tmp, soff):
    flag_prep(a, tmp)
    flag_fire(a, tmp, soff)

RA, RBA, RB0, RB1, VD, IDX, VZ, VWO = 8, 9, 10, 11, 12, 13, 14, 15
QB, QA, OB, OA, S0, K0, V0, CD, CE = 16, 24, 32, 48, 64, 128, 160, 192, 208
VA0 = 224
VSAV = 228
VPOLL = 232
VPA = 236
VZERO, VONE = 237, 227
VTAG = 238
VP2 = 234
VTMP = 240
KOF = {8: 248, 9: 249, 10: 250, 11: 251}
NEGBIG = 0xff000000
LOG2E = f32bits(math.log2(math.e))

PV = {}
def Sb(t): return S0 + 16*(t % 4)
def Kb(t): return K0 + 8*(t % 4)
def Vb(t): return V0 + 8*(t % 4)

def qk(a, d, k, q, cin, half):
    if half == 0:
        a(f'v_mfma_f32_32x32x16_bf16 {vr(d,16)}, {vr(k,4)}, {vr(q,4)}, {cin}')
    else:
        a(f'v_mfma_f32_32x32x16_bf16 {vr(d,16)}, {vr(k+4,4)}, {vr(q+4,4)}, {vr(d,16)}')

def rowmax(a, s, out, t1, t2):
    a(f'v_max3_f32 v{out}, v{s}, v{s+1}, v{s+2}')
    a(f'v_max3_f32 v{t1}, v{s+3}, v{s+4}, v{s+5}')
    a(f'v_max3_f32 v{out}, v{out}, v{s+6}, v{s+7}')
    a(f'v_max3_f32 v{t1}, v{t1}, v{s+8}, v{s+9}')
    a(f'v_max3_f32 v{out}, v{out}, v{s+10}, v{s+11}')
    a(f'v_max3_f32 v{t1}, v{t1}, v{s+12}, v{s+13}')
    a(f'v_max3_f32 v{out}, v{out}, v{s+14}, v{s+15}')
    a(f'v_max_f32 v{t1}, v{out}, v{t1}')
    a(f'v_mov_b32 v{t2}, v{t1}')
    a('s_nop 1')
    a(f'v_permlane32_swap_b32 v{t1}, v{t2}')
    a('s_nop 1')
    a(f'v_max_f32 v{out}, v{t1}, v{t2}')

def zero16(a, r):
    for i in range(0, 16, 2):
        a(f'v_mov_b64 {vr(r+i,2)}, 0')

KVF = ['sc1']
def dma_tile(srdn, m0base_s, m0imm, soff_imm, voff=VD, soff_s=None):
    L = []
    for f in range(4):
        g = []
        if f == 0:
            g.append(f's_add_u32 m0, s{m0base_s}, {m0imm}')
            g.append(f's_mov_b32 s48, {soff_imm}' if soff_s is None else 's_nop 0')
        so = 's48' if soff_s is None else soff_s
        g.append(f'buffer_load_dwordx4 v{voff}, {sr(srdn,4)}, {so} offen offset:{f*1024} {KVF[0]} lds')
        L.append(g)
    return L

XNOWO = []
def dma_wo(srdn, slot, kq):
    if XNOWO: return [['s_nop 0'] for i in range(4)]
    L = []
    for i in range(4):
        if i < 2:
            g = [f's_add_u32 m0, s39, {slot + i*1024}', f's_mov_b32 s48, {(kq*112 + 8*i)*896}']
        else:
            g = [f's_add_u32 m0, s62, {slot + i*1024}', f's_add_u32 s48, s49, {(kq*112 + 8*i)*896}']
        g.append(f'buffer_load_dwordx4 v{VWO}, {sr(srdn,4)}, s48 offen lds')
        L.append(g)
    return L

def set_shift(a, s, q, sav, cin, kreg, quick=0):
    l1, l2 = a.new('fbq'), a.new('fbq_e')
    a.c('row shift: maximum over one key tile, or the true row maximum on a rerun')
    a('s_cmp_lg_u32 s60, 0')
    a(f's_cbranch_scc1 {l1}')
    qk(a, s, kreg, q, cin, 0)
    qk(a, s, kreg, q, None, 1)
    a('s_nop 11')
    if quick:
        for k in range(5):
            a(f'v_max3_f32 v{s+3*k}, v{s+3*k}, v{s+3*k+1}, v{s+3*k+2}')
        a(f'v_max3_f32 v2, v{s}, v{s+3}, v{s+15}')
        a(f'v_max3_f32 v3, v{s+6}, v{s+9}, v{s+12}')
        a('v_max_f32 v2, v2, v3')
    else:
        rowmax(a, s, 2, 3, 4)
    a('s_mov_b32 exec_lo, 0')
    a(f'v_cvt_pk_bf16_f32 v{q+6}, -v2, 0')
    a('s_mov_b32 exec_lo, -1')
    a(f's_branch {l2}')
    a.label(l1)
    a('s_mov_b32 exec_lo, 0')
    a(f'v_mov_b64 {vr(q+6,2)}, {vr(sav,2)}')
    a('s_mov_b32 exec_lo, -1')
    a.label(l2)
    a('s_nop 1')

def check(a, o, lower, dst=58):
    a(f'v_cmp_nle_f32 s[52:53], v{o+12}, s56')
    if lower:
        a(f'v_cmp_nge_f32 s[54:55], v{o+12}, s57')
        a('s_or_b32 s53, s53, s55')
    a(f's_or_b32 s{dst}, s{dst}, s53')

VGF = 234
def gate_factor(a, sign):
    a(f'v_mul_f32 v{VGF}, {LOG2E if sign > 0 else (LOG2E ^ 0x80000000)}, v{VZ}')
    a(f'v_exp_f32 v{VGF}, v{VGF}')
    a(f'v_mov_b32 v{VTMP+6}, 0')
    a(f'v_mov_b32 v{VTMP+7}, 0')
    a(f'v_add_f32 v{VGF}, 1.0, v{VGF}')

def finalize(a, o, data_s, flag_s):
    a.c('row sums outside 2^-40..2^40 (or NaN) request a rerun with the true maxima; nothing is published then')
    a(f'v_mul_f32 v2, v{o+12}, v{VGF}')
    a(f'v_cmp_nle_f32 s[52:53], v{o+12}, s56')
    a('v_rcp_f32 v2, v2')
    a(f'v_cmp_nge_f32 s[54:55], v{o+12}, s57')
    a('v_mov_b32 v4, v2')
    a('s_or_b32 s58, s53, s55')
    a('s_cmp_lg_u32 s60, 0')
    a('v_permlane32_swap_b32 v2, v4')
    a('s_cselect_b32 s58, 0, s58')
    if PV.get('nofb'): a('s_mov_b32 s58, 0')
    a('s_or_b32 s46, s58, s63')
    p = VTMP
    for h in range(2):
        for r in range(8*h, 8*h + 8):
            a(f'v_mul_f32 v{o+r}, v{o+r}, v4')
        if h == 0:
            a(f's_cselect_b32 s50, 0x40000000, s{data_s}')
            a(f's_cselect_b32 s51, 0x40000000, s{flag_s}')
            a('s_cselect_b32 s63, s63, 1')
        for r in range(4*h, 4*h + 4):
            if r == 6: a('s_mov_b32 exec_hi, 0')
            a(f'v_cvt_pk_bf16_f32 v{p+r}, v{o+2*r}, v{o+2*r+1}')
        if h == 1: a('s_mov_b32 exec_hi, -1')
        a(f'buffer_store_dwordx4 {vr(p+4*h,4)}, v{RA}, {sr(RWS,4)}, s50 offen offset:{1024*h} {SC}')

def finalize_store(a, soff):
    p = VTMP
    a(f'buffer_store_dwordx4 {vr(p,4)}, v{RA}, {sr(RWS,4)}, s{soff} offen {SC}')
    a(f'buffer_store_dwordx4 {vr(p+4,4)}, v{RA}, {sr(RWS,4)}, s{soff} offen offset:1024 {SC}')

def fbflag_publish(a):
    skip = a.new('noflag')
    a('s_cmp_eq_u32 s58, 0')
    a(f's_cbranch_scc1 {skip}')
    a(f'v_mov_b32 v2, {FBFLAG}')
    a(f'ds_write_b32 v2, v{VONE}')
    a.label(skip)

def split3(a, s, sav):
    rowmax(a, s, 2, 3, 4)
    a('v_cvt_pk_bf16_f32 v3, -v2, 0')
    a('v_lshlrev_b32 v4, 16, v3')
    a('v_sub_f32 v2, -v2, v4')
    a('v_cvt_pk_bf16_f32 v5, v2, 0')
    a('v_lshlrev_b32 v4, 16, v5')
    a('v_sub_f32 v2, v2, v4')
    a(f'v_or_b32 v{sav}, v3, v4')
    a(f'v_cvt_pk_bf16_f32 v{sav+1}, v2, 0')

def true_max_B(a):
    a('s_mov_b32 exec_lo, 0')
    a(f'v_mov_b64 {vr(QB+6,2)}, 0')
    a('s_mov_b32 exec_lo, -1')
    for i in range(16):
        a(f'v_mov_b32 v{Sb(1)+i}, {NEGBIG}')
    a('s_mov_b32 s48, 0')
    lp = a.new('fbB')
    a.label(lp)
    a(f'buffer_load_dwordx4 {vr(K0,4)}, v{RA}, {sr(R2,4)}, s48 offen {SC}')
    a(f'buffer_load_dwordx4 {vr(K0+4,4)}, v{RA}, {sr(R2,4)}, s48 offen offset:1024 {SC}')
    a('s_waitcnt vmcnt(0)')
    qk(a, Sb(0), K0, QB, '0', 0)
    qk(a, Sb(0), K0, QB, None, 1)
    a('s_nop 15')
    for i in range(16):
        a(f'v_max_f32 v{Sb(1)+i}, v{Sb(1)+i}, v{Sb(0)+i}')
    a('s_add_u32 s48, s48, 4096')
    a(f's_cmp_lt_u32 s48, {64*4096}')
    a(f's_cbranch_scc1 {lp}')
    split3(a, Sb(1), VSAV)

class VM:
    def __init__(self): self.q = []
    def add(self, tag, n=1): self.q += [tag]*n
    def wait_for(self, *tags):
        last = max((i for i, t in enumerate(self.q) if t in tags), default=-1)
        n = len(self.q) - 1 - last
        self.q = self.q[last+1:]
        return n

class Stream:
    def __init__(self, N, n2, addr):
        self.N, self.n2, self.addr = N, n2, addr
        self.extra = {}
    def tile(self, t):
        return t//2 if t < self.n2 else self.n2//2 + t - self.n2
    def reads(self, t):
        R = [[], [], [], []]
        if self.n2 <= t + 3 < self.N:
            for f in range(4): R[f].append((self.tile(t+3), f))
        elif t + 3 < self.n2 and (t + 3) % 2 == 0:
            for f in range(2): R[PV.get('rs', (2, 3))[f]].append(((t+3)//2, f))
        if 0 <= t + 2 < self.n2 and (t + 2) % 2 == 0:
            for f in range(2): R[PV.get('rs', (2, 3))[f]].append(((t+2)//2, 2 + f))
        return R
    def emit(self, a, j, f):
        base, off = self.addr(j)
        dst = (Kb(j) + 4*f) if f < 2 else (Vb(j) + 4*(f-2))
        a(f'ds_read_b128 {vr(dst,4)}, v{KOF[base] if f < 2 else base} offset:{off + f*1024}')

def pipeline(a, st, qreg, oreg, cin, at_start, at_slot, at_end, name, fill, after_reads):
    N = st.N
    lq = VM()
    first = [x for t in (-3, -2, -1) for r in st.reads(t) for x in r]
    first.sort(key=lambda x: (x[0] - (1.5 if x[1] < 2 else 0), x[1]))
    for j, f in first:
        st.emit(a, j, f); lq.add((j, f))
    after_reads()
    def need(*tags):
        if any(x in lq.q for x in tags):
            a(f's_waitcnt lgkmcnt({lq.wait_for(*tags)})')
    K = lambda t: Kb(st.tile(t))
    V = lambda t: Vb(st.tile(t))
    kt = lambda t: [(st.tile(t), 0), (st.tile(t), 1)] if t < N else []
    vt = lambda t: [(st.tile(t), 2), (st.tile(t), 3)]
    need(*kt(0))
    qk(a, Sb(0), K(0), qreg(0), cin(0), 0)
    qk(a, Sb(0), K(0), qreg(0), None, 1)
    fill()
    need(*kt(1))
    a('s_nop 2')
    def pv(o, v, sreg):
        a(f'v_smfmac_f32_32x32x32_bf16 {vr(o,16)}, {vr(v,4)}, {vr(sreg,8)}, v{IDX}')
    for t in range(N):
        a.c(f'--- {name} period {t}')
        stamp(a, f'p{t}')
        if t in (9, 17) and not XP and common.STAMPS: cstamp(a, 0 if t == 9 else 1)
        at_start(t)
        stamp(a, f'q{t}')
        n0 = len(a.lines)
        at_slot(t)
        slot = a.lines[n0:]
        del a.lines[n0:]
        pre = []
        while slot and slot[0].strip().startswith(('s_add', 's_mov', 's_nop')) and 'exec' not in slot[0]:
            pre.append(slot.pop(0))
        R = st.reads(t)
        if t in PV.get('early', (24, 28)):
            R[2] += R[3]; R[3] = []
        def rd(k):
            for j, f in R[k]:
                st.emit(a, j, f); lq.add((j, f))
            for x in st.extra.get((t, k), []):
                a(x)
                if x.startswith('ds_'): lq.add('x')
        e = lambda i: a(f'v_exp_f32 v{Sb(t)+i}, v{Sb(t)+i}')
        ae = PV.get('altend', 29)
        lag = PV.get('lag', 3) if name == 'b' else 0
        def setp(pos):
            if t < ae:
                k = (t - 1) % 4
                bias = PV.get('bias', 1) if (name == 'b' and t >= 25) else 0
                if pos == (0 if k == 0 else lag): a(f's_setprio {min(3, 3 - k + bias)}')
            elif pos == 0 and t == ae:
                a('s_setprio 0')
        if t + 1 < N:
            qk(a, Sb(t+1), K(t+1), qreg(t+1), cin(t+1), 0)
        setp(0)
        rd(0)
        a.lines.extend(pre[:1])
        if t == 0:
            a('s_nop 3')
        for i in range(0, 4): e(i)
        if t + 1 < N:
            qk(a, Sb(t+1), K(t+1), qreg(t+1), None, 1)
        setp(1)
        rd(1)
        a.lines.extend(pre[1:])
        for i in range(4, 8): e(i)
        if t >= 1:
            pv(oreg(t-1), V(t-1)+4, Sb(t-1)+8)
        setp(2)
        if t + 2 == N:
            a('s_waitcnt lgkmcnt(0)'); lq.q = []
        else:
            need(*(kt(t+2) + vt(t)))
        rd(2)
        for i in range(8, 12): e(i)
        pv(oreg(t), V(t), Sb(t))
        setp(3)
        rd(3)
        a.lines.extend(slot)
        for i in range(12, 16): e(i)
        at_end(t)
    a('s_nop 1')
    pv(oreg(N-1), V(N-1)+4, Sb(N-1)+8)

PACK = [0]
def p2_scalars(a):
    a('s_lshl_b32 s39, s35, 12')
    a('s_lshl_b32 s40, s32, 2')
    a('s_add_u32 s40, s40, s35')
    a('s_mov_b32 s60, 0')
    a('s_lshl_b32 s41, s33, 6')
    a('s_add_u32 s41, s41, s40')
    a('s_lshl_b32 s41, s41, 11')
    a(f's_add_u32 s41, s41, {WS_Q}')
    a(f's_add_u32 s42, s41, {16*64*2048}')
    a('s_lshl_b32 s45, s40, 5')
    a('s_add_u32 s45, s45, s33')
    a('s_lshl_b32 s43, s45, 11')
    a(f's_add_u32 s43, s43, {WS_O}')
    a(f's_add_u32 s44, s43, {16*2048}')
    if PACK[0]:
        g = PACK[0]
        a(f's_and_b32 s46, s45, {g-1}')
        a(f's_andn2_b32 s45, s45, {g-1}')
        a('s_lshl_b32 s45, s45, 7')
        a('s_lshl3_add_u32 s45, s46, s45')
    else:
        a('s_lshl_b32 s45, s45, 7')
    a(f's_add_u32 s45, s45, {WS_F2}')
    a(f's_mov_b32 s56, {f32bits(2.0**40)}')
    a(f's_mov_b32 s57, {f32bits(2.0**-40)}')
    a('s_lshr_b32 s38, s2, 3')
    a('s_mul_i32 s36, s38, 37')
    a('s_lshr_b32 s36, s36, 8')
    a('s_mul_i32 s37, s36, 7')
    a('s_sub_u32 s37, s38, s37')
    a('s_and_b32 s46, s2, 1')
    a('s_lshl_b32 s46, s46, 4')
    a('s_add_u32 s36, s36, s46')
    a('s_and_b32 s46, s2, 6')
    a('s_lshl_b32 s46, s46, 1')
    a('s_add_u32 s36, s36, s46')
    a('s_cmp_eq_u32 s35, 3')
    a(f's_cselect_b32 s49, {-16*896 & 0xffffffff}, 0')

def p2_srds(a):
    a('s_lshl_b32 s46, s33, 18')
    a(f's_add_u32 s10, s{P_WS}, s46')
    a(f's_addc_u32 s11, s{P_WS+1}, 0')
    srd(a, R1, 10, 11, 262144)
    a(f's_add_u32 s10, s10, {16*262144}')
    a('s_addc_u32 s11, s11, 0')
    srd(a, R2, 10, 11, 262144)
    mksrd(a, R0, P_BWO, 448*896)

NQ2 = [1]
def p2_vec1(a):
    a('s_min_u32 s62, s39, 10240')
    a(f'v_lshlrev_b32 v{RA}, 4, v1')
    a(f'v_mov_b32 v{IDX}, 0xdddddddd')
    a(f'v_add_u32 v{VD}, s39, v{RA}')
    a(f'v_mov_b32 v{VZERO}, 0')
    a(f'v_mov_b32 v{VONE}, 1')
    a('v_and_b32 v2, 0x23, v1')
    a('v_bfe_u32 v3, v1, 2, 1')
    a('v_lshl_add_u32 v2, v3, 4, v2')
    a('v_bfe_u32 v3, v1, 3, 2')
    a('v_lshl_add_u32 v2, v3, 2, v2')
    a(f'v_lshlrev_b32 v{KOF[RA]}, 4, v2')
    a('s_and_b32 s46, s35, 1')
    a(f's_lshl_b32 s46, s46, {13 if NQ2[0] else 31}')
    a(f's_and_b32 s46, s46, 0x2000')
    a(f'v_add_u32 v{RB0}, s46, v{RA}')
    a(f'v_add_u32 v{KOF[RB0]}, s46, v{KOF[RA]}')

def p2_vec2(a):
    a('v_lshrrev_b32 v3, 3, v1')
    a('s_lshl_b32 s46, s35, 5')
    a('v_add_u32 v3, s46, v3')
    a('v_mul_u32_u24 v3, 896, v3')
    a('v_and_b32 v4, 7, v1')
    a('v_bfe_u32 v5, v1, 4, 1')
    a('v_lshlrev_b32 v5, 2, v5')
    a('v_xor_b32 v4, v4, v5')
    a('v_lshl_add_u32 v3, v4, 4, v3')
    a('s_lshl_b32 s46, s37, 7')
    a(f'v_add_u32 v{VWO}, s46, v3')

P3_D = [32, 48]
P3_OF = [64, 96]
P3_W = [128, 192]
XCH = 114688 - 128
XS = 8192 + 32
FULL = [1]
def p3_setup(a):
    a('s_and_b32 s4, s34, 1')
    a('s_lshr_b32 s5, s34, 1')
    a('s_lshl_b32 s46, s36, 1')
    a('s_add_u32 s46, s46, s4')
    a('s_lshl_b32 s47, s46, 5')
    a('s_xor_b32 s48, s5, 2')
    a('s_lshl_b32 s48, s48, 3')
    a('s_add_u32 s47, s47, s48')
    a('s_lshl_b32 s6, s47, 11')
    a(f's_add_u32 s6, s6, {WS_O}')
    a('s_lshl_b32 s7, s47, 7')
    a(f's_add_u32 s7, s7, {WS_F2}')

SWAPH = [0]
def p3_bases(a, tab):
    a('v_lshrrev_b32 v3, 5, v1')
    a('v_bfe_u32 v4, v1, 2, 2')
    a('v_bfe_u32 v5, v1, 4, 1')
    a('v_and_b32 v6, 3, v1')
    a('v_lshlrev_b32 v6, 3, v6')
    a('v_lshl_add_u32 v6, v5, 5, v6')
    a('v_lshl_add_u32 v6, v4, 7, v6')
    a('v_lshrrev_b32 v4, 1, v4')
    a('v_lshl_add_u32 v6, v4, 6, v6')
    a('s_bitcmp1_b32 s5, 0')
    f, g = (3, 2) if SWAPH[0] else (2, 3)
    a(f's_mov_b32 s12, {tab[0]}')
    a(f's_cselect_b32 s12, {tab[f]}, s12')
    a(f's_mov_b32 s13, {(tab[1] - tab[0]) & 0xffffffff}')
    a(f's_cselect_b32 s13, {(tab[g] - tab[f]) & 0xffffffff}, s13')
    a('v_add_u32 v11, s12, v6')
    a('v_xor_b32 v12, 64, v11')
    a('v_lshl_add_u32 v9, v3, 9, v11')
    a('v_xor_b32 v10, 64, v9')

DENSE = [1]
DSTEP = [(0, 0), (1, 0), (2, 0), (3, 0), (0, 1), (1, 1), (2, 1)]
DLOAD = [(0, 0), (1, 0), (2, 0), (3, 0), (3, 1), (0, 1), (1, 1), (2, 1)]
DROW = [16, 24, 20]
def p3_trs(a, half):
    if half == 1:
        for r in range(4):
            a(f'v_add_u32 v{9+r}, s13, v{9+r}')
    if DENSE[0]:
        T = P3_W[half] + 56
        a(f'v_lshrrev_b32 v{T+6}, 5, v1')
        for hb in range(3):
            a(f'v_mul_u32_u24 v{T+2*hb}, {(84 + DROW[hb] - hb*28 - 24)*128}, v{T+6}')
            a(f'v_add_u32 v{T+2*hb}, v{T+2*hb}, v11')
            a(f'v_xor_b32 v{T+2*hb+1}, 64, v{T+2*hb}')
    for n, (hb, f) in enumerate(DSTEP if DENSE[0] else [(n//2, n % 2) for n in range(8)]):
        a('s_waitcnt lgkmcnt(11)')
        for nt in range(2):
            for e in range(2):
                base = 9 + nt
                if f == 1 and e == 1:
                    base = T + 2*hb + nt if DENSE[0] else 11 + nt
                a(f'ds_read_b64_tr_b16 {vr(P3_W[half]+8*n+4*nt+2*e,2)}, v{base} offset:{(hb*28 + 16*f + 8*e)*128}')

def p3_oloads(a, half):
    for hb, f in (DLOAD if DENSE[0] else [(n//2, n % 2) for n in range(8)]):
        i = 2*hb + f
        a(f'buffer_load_dwordx4 {vr(P3_OF[half]+4*i,4)}, v{RA}, {sr(RWS,4)}, s{52 + 2*half + i//4} offen offset:{(i%4)*1024} {SC}')

def p3_mfmas(a, half, extra, dst=None):
    P3_D = dst or globals()['P3_D']
    def mm(n, i):
        for nt in range(2):
            cin = '0' if (n == 0 and (half == 0 or dst)) else vr(P3_D[nt], 16)
            a(f'v_mfma_f32_32x32x16_bf16 {vr(P3_D[nt],16)}, {vr(P3_W[half]+8*n+4*nt,4)}, {vr(P3_OF[half]+4*i,4)}, {cin}')
    if not DENSE[0]:
        for n in range(8):
            a(f's_waitcnt vmcnt({7 - n + extra})')
            mm(n, n)
        return
    D = P3_OF[half] + 28
    def fix(hb):
        X = P3_OF[half] + 8*hb + 4
        a(f's_waitcnt vmcnt({2 - hb + extra})')
        if hb < 2:
            a(f'v_permlane32_swap_b32 v{X+2}, v{D+2*hb}')
            a(f'v_permlane32_swap_b32 v{X+3}, v{D+2*hb+1}')
        else:
            a('s_mov_b32 exec_lo, 0')
            a(f'v_mov_b32 v{X+2}, v{D}')
            a(f'v_mov_b32 v{X+3}, v{D+1}')
            a('s_mov_b32 exec_lo, -1')
    for n, (hb, f) in enumerate(DSTEP):
        if n < 3: a(f's_waitcnt vmcnt({7 - n + extra})')
        if 3 <= n < 6: fix(n - 3)
        mm(n, 2*hb + f)

def p3_addr(a):
    if SWAPH[0]:
        a('s_bitcmp1_b32 s5, 0')
        a('s_cselect_b32 s46, 8192, 0')
        a('s_cselect_b32 s0, 512, 0')
        a('s_cselect_b32 s1, 0, 512')
        a('s_add_u32 s52, s6, s46')
        a('s_add_u32 s53, s52, 4096')
        a('s_xor_b32 s54, s52, 8192')
        a('s_add_u32 s55, s54, 4096')
    else:
        for k in range(4):
            a(f's_add_u32 s{52+k}, s6, {k*4096}')
    a(f's_add_u32 s10, s{P_WS}, s7')
    a(f's_addc_u32 s11, s{P_WS+1}, 0')
    a('s_lshl_b32 s46, s4, 12')
    a('s_lshl_b32 s47, s5, 10')
    a('s_add_u32 s47, s47, s46')
    a(f's_add_u32 s47, s47, {XCH}')
    a(f'v_add_u32 v3, s47, v{RA}')
    if FULL[0]:
        a('v_lshrrev_b32 v5, 3, v1')
        a('s_lshl_b32 s47, s5, 3')
        a('v_add_u32 v5, s47, v5')
        a('v_bfe_u32 v6, v1, 1, 2')
        a(f'v_mul_u32_u24 v4, {XS}, v6')
        a('v_lshl_add_u32 v4, v5, 4, v4')
        a('v_and_b32 v6, 1, v1')
        a('v_lshl_add_u32 v4, v6, 3, v4')
        a(f's_add_u32 s47, s46, {XCH}')
        a('v_add_u32 v4, s47, v4')
        a('s_lshl1_add_u32 s46, s36, s4')
        a('s_lshl_b32 s46, s46, 5')
        a('v_add_u32 v5, s46, v5')
        a('v_mul_u32_u24 v5, 896, v5')
        a('v_and_b32 v6, 7, v1')
        a('v_lshl_add_u32 v5, v6, 4, v5')
        a('s_lshl_b32 s50, s37, 7')
    else:
        a(f's_mul_i32 s47, s5, {XS}')
        a('s_add_u32 s47, s47, s46')
        a(f's_add_u32 s47, s47, {XCH}')
        a(f'v_add_u32 v4, s47, v{RA}')
        a('v_and_b32 v5, 31, v1')
        a('s_lshl_b32 s46, s36, 1')
        a('s_add_u32 s46, s46, s4')
        a('s_lshl_b32 s46, s46, 5')
        a('v_add_u32 v5, s46, v5')
        a('v_mul_u32_u24 v5, 896, v5')
        a('v_lshrrev_b32 v6, 5, v1')
        a('v_lshl_add_u32 v5, v6, 4, v5')
        a('s_lshl_b32 s46, s37, 7')
        a('s_lshl_b32 s47, s5, 5')
        a('s_add_u32 s50, s46, s47')
    a(f'v_mov_b32 v13, {FBFLAG}')

def lds_post(a, off):
    a('s_lshl_b32 s46, s35, 2')
    a(f's_add_u32 s46, s46, {FBFLAG + off}')
    a('v_mov_b32 v2, s46')
    a('v_mov_b32 v7, 1')
    a('ds_write_b32 v2, v7')

def lds_wait(a, off, tmp, name):
    lp = a.new(name)
    a(f'v_mov_b32 v2, {FBFLAG + off}')
    a.label(lp)
    a(f'ds_read_b128 {vr(tmp,4)}, v2')
    a('s_waitcnt lgkmcnt(0)')
    a(f'v_and_b32 v{tmp}, v{tmp}, v{tmp+1}')
    a(f'v_and_b32 v{tmp+2}, v{tmp+2}, v{tmp+3}')
    a(f'v_and_b32 v{tmp}, v{tmp}, v{tmp+2}')
    a(f'v_cmp_eq_u32 vcc, 0, v{tmp}')
    a(f's_cbranch_vccnz {lp}')

SP = [64, 66, 68, 70, 24, 26, 96, 98]
LO, HI = [0, 1, 2, 3], [4, 5, 6, 7]
def units(ks):
    if PACK[0] == 0: return [[k] for k in ks]
    out = []
    for k in ks:
        lim = min(PACK[0], 4 if k < 4 else 2)
        if out and len(out[-1]) < lim and out[-1][-1] + 1 == k and (k % lim): out[-1].append(k)
        else: out.append([k])
    return out
def spoll_issue(a, ks):
    for u in units(ks):
        g = PACK[0] or 1
        off = (u[0]//g)*g*128 + (u[0] % g)*8
        a(f's_load_dwordx{2*len(u)} {sr(SP[u[0]],2*len(u))}, s[10:11], {off} glc')

def spoll_spin(a, ks, name, also=()):
    ok, lp = a.new(name + '_ok'), a.new(name + '_lp')
    a(f's_mov_b32 s61, {SPIN_LIMIT}')
    a('s_waitcnt lgkmcnt(0)')
    a.label(lp)
    a('s_mov_b32 s58, 0')
    for u in units(ks) + units(also):
        sk, do = a.new(name + '_k'), a.new(name + '_d')
        for k in u:
            a(f's_cmp_eq_u64 {sr(SP[k],2)}, {sr(NONCE,2)}')
            a(f's_cbranch_scc1 {sk}' if k == u[-1] else f's_cbranch_scc0 {do}')
        a.label(do)
        spoll_issue(a, u)
        if u[0] in ks: a('s_mov_b32 s58, 1')
        a.label(sk)
    a('s_cmp_eq_u32 s58, 0')
    a(f's_cbranch_scc1 {ok}')
    a('ds_read_b32 v6, v13')
    if SLEEP2: a(f's_sleep {SLEEP2}')
    a('s_waitcnt lgkmcnt(0)')
    a('v_cmp_ne_u32 vcc, 0, v6')
    a('s_cbranch_vccnz L_p3_x')
    a('s_sub_u32 s61, s61, 1')
    a(f's_cbranch_scc0 {lp}')
    a.label(ok)

def spoll_either(a, name, hi_label):
    ok, lp = a.new(name + '_ok'), a.new(name + '_lp')
    a(f's_mov_b32 s61, {SPIN_LIMIT}')
    a('s_waitcnt lgkmcnt(0)')
    a.label(lp)
    a('s_mov_b32 s58, 0')
    for k in LO + HI:
        sk = a.new(name + '_k')
        a(f's_cmp_eq_u64 {sr(SP[k],2)}, {sr(NONCE,2)}')
        a(f's_cbranch_scc1 {sk}')
        spoll_issue(a, [k])
        a(f's_bitset1_b32 s58, {k//4}')
        a.label(sk)
    a('s_bitcmp0_b32 s58, 0')
    a(f's_cbranch_scc1 {ok}')
    a('s_bitcmp0_b32 s58, 1')
    a(f's_cbranch_scc1 {hi_label}')
    a('ds_read_b32 v6, v13')
    if SLEEP2: a(f's_sleep {SLEEP2}')
    a('s_waitcnt lgkmcnt(0)')
    a('v_cmp_ne_u32 vcc, 0, v6')
    a('s_cbranch_vccnz L_p3_x')
    a('s_sub_u32 s61, s61, 1')
    a(f's_cbranch_scc0 {lp}')
    a.label(ok)

def p3_shared(a, opt):
    a.c('===== phase 3: wait for the head outputs, project, exchange, store =====')
    a.label('L_p3')
    a('s_cmp_ge_u32 s38, 28')
    a('s_cbranch_scc1 L_p3_x')
    if opt.get('also', 1):
        if not opt.get('adapt', 1):
            for k in HI:
                a(f's_mov_b32 s{SP[k]}, 0')
        if opt.get('adapt', 1):
            a('s_waitcnt lgkmcnt(0)')
            spoll_issue(a, HI)
            for k in LO:
                a(f's_cmp_eq_u64 {sr(SP[k],2)}, {sr(NONCE,2)}')
                a('s_cbranch_scc0 L_p3_notyet')
            stamp(a, 'f2b')
            p3_oloads(a, 0)
            p3_trs(a, 1)
            a('s_branch L_p3_hi')
            a.label('L_p3_notyet')
        if opt.get('trs1first', 1): p3_trs(a, 1)
        if opt.get('comm', 0):
            spoll_either(a, 'f2e', 'L_p3_hfirst')
        else:
            spoll_spin(a, LO, 'f2b', HI)
        stamp(a, 'f2b')
        p3_oloads(a, 0)
        if not opt.get('trs1first', 1): p3_trs(a, 1)
        a.label('L_p3_hi')
    else:
        spoll_spin(a, LO, 'f2b')
        stamp(a, 'f2b')
        spoll_issue(a, HI)
        p3_oloads(a, 0)
        p3_trs(a, 1)
    spoll_spin(a, HI, 'f2a')
    a.label('L_p3_l1')
    stamp(a, 'f2a')
    p3_oloads(a, 1)
    def products(first, tag):
        a('s_cmp_lt_u32 s34, 4')
        a(f's_cbranch_scc1 L_p3_m{tag}')
        lds_wait(a, 32, 32, 'rdok')
        a.label(f'L_p3_m{tag}')
        a('s_setprio 0')
        if opt.get('comm', 0):
            D2 = [P3_W[first], P3_W[first] + 16]
            p3_mfmas(a, first, 8, P3_D)
            p3_mfmas(a, 1 - first, 0, D2)
        else:
            p3_mfmas(a, 0, 8)
            stamp(a, 'mfB')
            p3_mfmas(a, 1, 0)
        stamp(a, 'mfA')
        a('s_cmp_ge_u32 s34, 4')
        a(f's_cbranch_scc1 L_p3_w{tag}')
        lds_wait(a, 32, 64, 'rdok')
        a.label(f'L_p3_w{tag}')
        a('s_nop 8')
        if opt.get('comm', 0):
            for r in range(0, 32, 2):
                a(f'v_pk_add_f32 {vr(P3_D[0]+r,2)}, {vr(P3_D[0]+r,2)}, {vr(D2[0]+r,2)}')
    products(0, '')
    a.label('L_p3_pack')
    for d in range(4):
        for r in range(4):
            a(f'v_cvt_pk_bf16_f32 v{96+4*d+r}, v{32+8*d+2*r}, v{32+8*d+2*r+1}')
        a(f'ds_write_b128 v3, {vr(96+4*d,4)} offset:{d*XS}')
    a.label('L_p3_x')
    a('s_waitcnt lgkmcnt(0)')
    mksrd(a, R1, P_OUT, 2048*896)
    a('s_barrier')
    stamp(a, 'X')
    a('ds_read_b32 v6, v13')
    for s in range(4):
        if FULL[0]:
            a(f'ds_read2st64_b64 {vr(128 + 4*s, 4)}, v4 offset0:{2*s} offset1:{2*s+1}')
        else:
            a(f'ds_read_b128 {vr(128 + 4*s, 4)}, v4 offset:{s*1024}')
    a('s_mov_b32 s47, 0xffff0000')
    a('s_waitcnt lgkmcnt(3)')
    a('v_cmp_ne_u32 vcc, 0, v6')
    a('s_cmp_ge_u32 s38, 28')
    a('s_cbranch_vccnz L_p3_fb')
    a('s_cbranch_scc1 L_exit')
    for s in range(2 if opt.get('x_two') else 4):
        if s: a(f's_waitcnt lgkmcnt({3 - s})')
        for r in range(4):
            a(f'v_lshlrev_b32 v{96+8*s+2*r}, 16, v{128+4*s+r}')
            a(f'v_and_b32 v{96+8*s+2*r+1}, s47, v{128+4*s+r}')
        if s % 2 == 1:
            for r in range(0, 8, 2):
                a(f'v_pk_add_f32 {vr(96+8*(s-1)+r,2)}, {vr(96+8*(s-1)+r,2)}, {vr(96+8*s+r,2)}')
    for r in range(0, 8, 2):
        a(f'v_pk_add_f32 {vr(96+r,2)}, {vr(96+r,2)}, {vr(112+r,2)}')
    for r in range(4):
        a(f'v_cvt_pk_bf16_f32 v{28+r}, v{96+2*r}, v{96+2*r+1}')
    if not FULL[0]:
        a('s_nop 1')
        a('v_permlane32_swap_b32 v28, v30')
        a('v_permlane32_swap_b32 v29, v31')
    a(f'buffer_store_dwordx4 v[28:31], v5, {sr(R1,4)}, s50 offen {opt.get("outfl", "sc1")}')
    stamp(a, 'st')
    dump_stamps(a, 0)
    a('s_endpgm')

    if opt.get('comm', 0):
        a.label('L_p3_hfirst')
        stamp(a, 'f2b')
        p3_oloads(a, 1)
        spoll_spin(a, LO, 'f2l')
        stamp(a, 'f2a')
        p3_oloads(a, 0)
        products(1, 'h')
        a('s_branch L_p3_pack')

    a.label('L_p3_fb')
    a('s_setprio 0')
    a('s_waitcnt vmcnt(0) lgkmcnt(0)')
    a('s_mov_b32 s60, 1')
    p2_srds(a)
    p2_vec1(a)
    a('s_cmp_lt_u32 s34, 4')
    a('s_cbranch_scc1 L_a_fallback')
    a('s_branch L_b_fallback')

def publish_decision(a, o, data_s, flag_s):
    a('s_mov_b32 s58, 0')
    check(a, o, True)
    a('s_cmp_lg_u32 s60, 0')
    a('s_cselect_b32 s58, 0, s58')
    if PV.get('nofb'): a('s_mov_b32 s58, 0')
    a('s_or_b32 s46, s58, s63')
    a(f's_cselect_b32 s50, 0x40000000, s{data_s}')
    a(f's_cselect_b32 s51, 0x40000000, s{flag_s}')
    a('s_cselect_b32 s63, s63, 1')

VPB = 235
def b_setup(a, part=3):
    if part & 1: b_setup1(a)
    if part & 2: b_setup2(a, part == 3)

def b_setup1(a):
    a('s_add_u32 s46, s33, 16')
    a('s_mul_i32 s46, s46, 43')
    a('s_lshr_b32 s46, s46, 7')
    a('s_add_u32 s47, s33, 32')
    a('s_mul_i32 s47, s47, 43')
    a('s_lshr_b32 s47, s47, 7')
    a('s_mul_i32 s48, s33, 43')
    a('s_lshr_b32 s48, s48, 7')
    a('s_lshl_b32 s46, s46, 6')
    a('s_lshl_b32 s47, s47, 6')
    a('s_lshl_b32 s48, s48, 6')
    a('s_add_u32 s48, s48, s40')
    a('v_and_b32 v2, 15, v1')
    a('v_lshl_add_u32 v2, v2, 2, s35')
    a('v_add_u32 v3, s46, v2')
    a('v_add_u32 v4, s47, v2')
    a('v_mov_b32 v5, s48')
    a('v_cmp_gt_u32 vcc, 16, v1')
    a('v_cmp_gt_u32 s[12:13], 32, v1')
    a('s_nop 0')
    a('v_cndmask_b32 v3, v4, v3, vcc')
    a(f'v_cndmask_b32 v{VPB}, v5, v3, s[12:13]')
    a(f'v_lshlrev_b32 v{VPB}, 7, v{VPB}')
    a(f'v_add_u32 v{VPB}, {WS_F1 + 131072}, v{VPB}')
    a('v_and_b32 v2, 3, v1')
    a('v_min_u32 v2, 2, v2')
    a('v_sub_u32 v2, s32, v2')
    a('v_max_i32 v2, 0, v2')
    a('s_sub_u32 s50, 3, s35')
    a('v_lshl_add_u32 v2, v2, 2, s50')
    a('v_add_u32 v3, s46, v2')
    a('v_add_u32 v4, s47, v2')
    a('v_cmp_gt_u32 vcc, 4, v1')
    a('v_cmp_gt_u32 s[12:13], 8, v1')
    a('s_nop 0')
    a('v_cndmask_b32 v3, v4, v3, vcc')
    a(f'v_cndmask_b32 v{VPA}, v5, v3, s[12:13]')
    a(f'v_lshlrev_b32 v{VPA}, 7, v{VPA}')
    a(f'v_add_u32 v{VPA}, {WS_F1}, v{VPA}')
    a('s_add_u32 s47, s39, 65536')
    a('s_lshl_b32 s46, s32, 2')
    a('s_add_u32 s46, s46, 3')
    a('s_sub_u32 s46, s46, s35')
    a('s_lshl_b32 s46, s46, 12')
    a(f'v_add_u32 v{VA0}, s46, v{RA}')
    a(f'v_subrev_u32 v{VA0+1}, 16384, v{VA0}')
    a(f'v_subrev_u32 v{VA0+2}, 32768, v{VA0}')
    a('s_sub_u32 s46, 65536 + 32768 + 3*4096, s39')
    a(f'v_add_u32 v{RBA}, s46, v{RA}')
    a(f'v_add_u32 v{KOF[RBA]}, s46, v{KOF[RA]}')
    for r in (RB1, RB0):
        a(f'v_add_u32 v{r}, {131072 if r == RB1 else 65536}, v{RB0}')
        a(f'v_add_u32 v{KOF[r]}, {131072 if r == RB1 else 65536}, v{KOF[RB0]}')

def b_setup2(a, edge=True):
    a('v_and_b32 v3, 31, v1')
    a('v_lshrrev_b32 v2, 5, v1')
    a('v_lshlrev_b32 v2, 4, v2')
    a('v_sub_u32 v3, v3, v2')
    a(f'v_mov_b32 v2, {NEGBIG}')
    for r in range(0, 16, 2):
        for u in range(2):
            cr = r + u
            a(f'v_cmp_le_i32 s[{10+2*u}:{11+2*u}], {cr}, v3')
        a('s_nop 0')
        for u in range(2):
            a(f'v_cndmask_b32 v{CD+r+u}, v2, 0, s[{10+2*u}:{11+2*u}]')
            if edge: a(f'v_cndmask_b32 v{CE+r+u}, 0, v2, s[{10+2*u}:{11+2*u}]')

def gen(a, label, opt):
    LSTEP = opt.get('lstep', 9)
    LATE = sum(1 << t for t in list(range(LSTEP, 9)) + list(range(9 + LSTEP, 16))) if LSTEP < 9 else 0
    if opt.get('pg', 1): a('.p2align 12')
    kernel_header(a, label)
    a('s_cmp_ge_u32 s2, 256')
    a('s_cbranch_scc1 L_done')
    stamp_init(a)
    a('s_load_dwordx16 s[4:19], s[0:1], 0')
    a('s_load_dwordx4 s[20:23], s[0:1], 64')
    a('v_lshrrev_b32 v2, 6, v0')
    a('v_and_b32 v1, 63, v0')
    a('v_readfirstlane_b32 s34, v2')
    m48 = opt.get('m48', 0)
    if m48:
        a('s_bfe_u32 s38, s2, 0x20003')
        a('s_and_b32 s32, s2, 3')
        a('s_lshl2_add_u32 s32, s32, s38')
        a('s_lshr_b32 s40, s2, 5')
        a('s_bfe_u32 s33, s2, 0x10002')
        a('s_lshl3_add_u32 s33, s33, s40')
    else:
        a('s_bfe_u32 s40, s2, 0x30003')
        a('s_and_b32 s32, s2, 1')
        a('s_lshl3_add_u32 s32, s32, s40')
        a('s_lshr_b32 s38, s2, 6')
    if opt.get('rot', 2) == 2:
        a('s_lshl1_add_u32 s63, s38, s40')
        a('s_sub_u32 s40, s63, 7')
        a('s_cselect_b32 s63, s63, s40')
    elif opt.get('rot') in (3, 4):
        a('s_lshl1_add_u32 s63, s38, s40')
        a(f's_bfe_u32 s40, s2, {0x10001 if opt["rot"] == 3 else 0x20001}')
        a('s_add_u32 s63, s63, s40')
        for k in range(2):
            a('s_sub_u32 s40, s63, 7')
            a('s_cselect_b32 s63, s63, s40')
    elif opt.get('rot') == 5:
        a('s_add_u32 s63, s38, s40')
        a('s_and_b32 s63, s63, 3')
        a('s_bfe_u32 s40, s2, 0x10001')
        a('s_xor_b32 s40, s40, s2')
        a('s_and_b32 s40, s40, 1')
        a('s_lshl1_add_u32 s63, s63, s40')
        a('s_sub_u32 s40, s63, 7')
        a('s_cselect_b32 s63, s63, s40')
    else:
        a('s_add_u32 s63, s38, s40')
        a('s_and_b32 s63, s63, 3')
        a('s_lshl_b32 s63, s63, 1')
    a('s_and_b32 s35, s34, 3')
    if not m48:
        a('s_bfe_u32 s33, s2, 0x20001')
        a('s_lshl2_add_u32 s33, s33, s38')
    def columns():
        a('s_xor_b32 s62, s33, 1')
        a('s_lshr_b32 s40, s33, 1')
        a('s_cmp_eq_u32 s40, 2')
        a('s_cselect_b32 s62, s33, s62')
        a('s_cmp_eq_u32 s40, 5')
        a('s_cselect_b32 s62, s33, s62')
    compact = opt.get('compact', 0)
    def cons_entry():
        if opt.get('codewarm', 1):
            a('s_getpc_b64 s[46:47]')
            a.label('L_pc')
            a('s_lshr_b32 s48, s2, 3')
            a('s_lshl2_add_u32 s48, s48, s34')
            a(f's_mul_i32 s48, s48, {opt.get("cwn", 5)}')
            a(f'v_min_u32 v2, {opt.get("cwn", 5) - 1}, v1')
            a('v_add_lshl_u32 v2, s48, v2, 7')
            a('v_min_u32 v2, L_done - L_pc, v2')
            a('global_load_dword v78, v2, s[46:47]')
        dispatch(a, 33, 'P1B')
    a('s_cmp_lt_u32 s34, 4')
    if compact:
        a('s_cbranch_scc1 L_cons')
    else:
        a('s_cbranch_scc0 L_loader')
        cons_entry()
        a.label('L_loader')

    XA = [240, 241, 242, 243]
    WA = [244, 245, 246]
    a.c('===== waves 4-7: phase-1 loader =====')
    a('s_setprio 3')
    a('v_lshrrev_b32 v3, 3, v1')
    a('v_lshrrev_b32 v4, 4, v1')
    a('v_and_b32 v5, 7, v1')
    a('v_xor_b32 v5, v5, v4')
    a('s_lshl2_add_u32 s40, s32, s35')
    a('v_lshl_add_u32 v3, s40, 5, v3')
    a('v_mul_u32_u24 v3, 896, v3')
    a(f'v_lshl_add_u32 v{XA[0]}, v5, 4, v3')
    a(f'v_xor_b32 v{XA[1]}, 64, v{XA[0]}')
    a(f'v_add_u32 v{XA[1]}, {8*896 - 1024}, v{XA[1]}')
    a(f'v_add_u32 v{XA[2]}, {16*896 - 2048}, v{XA[0]}')
    a(f'v_add_u32 v{XA[3]}, {16*896 - 2048}, v{XA[1]}')
    def wcalc():
        window(a, 33, 54, 37, 40)
        a('s_mul_i32 s40, s35, 192')
        a('s_movk_i32 s41, 2688')
        a('s_movk_i32 s42, -176')
        a('v_add_u32 v3, s40, v1')
        a('v_lshlrev_b32 v5, 4, v3')
        a('v_mul_u32_u24 v3, 745, v3')
        for i in range(3):
            if i:
                a(f'v_add_u32 v3, {745*64}, v3')
            a('v_lshrrev_b32 v4, 13, v3')
            a('v_and_b32 v6, 7, v4')
            a('v_mul_u32_u24 v6, 9, v6')
            a('v_lshrrev_b32 v6, 1, v6')
            a('v_bfi_b32 v6, 7, v6, v4')
            a('v_mad_i32_i24 v4, v4, s42, v5')
            a(f'v_mad_u32_u24 v{WA[i]}, v6, s41, v4')
        a('s_cmp_eq_u32 s35, 3')
        a('s_cselect_b32 s40, 0x40000000, 0')
        a(f'v_add_u32 v{WA[2]}, s40, v{WA[2]}')
        a(f's_mul_i32 s53, s63, {64*2688}')
        a('s_add_u32 s53, s54, s53')
    xfirst = opt.get('xfirst', 0)
    if not xfirst: wcalc()
    a('s_lshl_b32 s58, s35, 12')
    a('s_mul_i32 s59, s35, 3072')
    a('s_lshl_b32 s52, s63, 7')
    a(f's_mov_b32 s{R0+2}, {2048*896}')
    a(f's_mov_b32 s{R0+3}, 0x20000')
    a(f's_mov_b32 s{R1+2}, {448*2688}')
    a(f's_mov_b32 s{R1+3}, s{R0+3}')
    def gate_load():
        a('s_cmp_lg_u32 s35, 3')
        a('s_cbranch_scc1 L_nogate')
        a('v_lshl_add_u32 v2, v1, 4, s52')
        a('v_subrev_u32 v4, 896, v2')
        a('v_min_u32 v2, v2, v4')
        a(f's_mov_b32 m0, {GATE}')
        mksrd(a, R3, P_G, 896)
        a(f'buffer_load_dwordx4 v2, {sr(R3,4)}, 0 offen lds')
        a.label('L_nogate')
    a('s_mov_b32 m0, s58')
    stamp(a, 'pre')
    a('s_waitcnt lgkmcnt(0)')
    stamp(a, 'karg')
    a(f's_mov_b64 {sr(R0,2)}, {sr(P_X,2)}')
    vm = VM()
    def loads_x(g):
        for i in range(4):
            a(f'buffer_load_dwordx4 v{XA[i]}, {sr(R0,4)}, s52 offen offset:{i*1024} {opt.get("xfl", "")} lds')
        vm.add(g, 4)
    def loads_w(g):
        for i in range(3):
            a(f'buffer_load_dwordx4 v{WA[i]}, {sr(R1 if g < 7 else R2,4)}, s53 offen offset:{i*1024} {opt.get("wfl", "")} lds')
        vm.add(g, 3)
    def issue(g, x=True):
        a(f's_add_u32 m0, s59, {wslot(g)}')
        a(f's_add_u32 s3, s16, {g % 7}')
        a('s_sub_u32 s53, s3, 7')
        a('s_cselect_b32 s3, s3, s53')
        a(f's_mul_i32 s53, s3, {64*2688}')
        a(f's_add_u32 s53, s{54 if g < 7 else 55}, s53')
        loads_w(g)
        if g < 7 and x:
            a(f's_add_u32 m0, s58, {XRING + (g % 4)*16384}')
            a('s_lshl_b32 s52, s3, 7')
            loads_x(g)
    loads_x(0)
    if xfirst == 2:
        a('s_add_u32 s3, s63, 1')
        a('s_sub_u32 s53, s3, 7')
        a('s_cselect_b32 s3, s3, s53')
        a(f's_add_u32 m0, s58, {XRING + 16384}')
        a('s_lshl_b32 s52, s3, 7')
        loads_x(0)
    if xfirst: wcalc()
    a(f's_add_u32 m0, s59, {wslot(0)}')
    a(f's_mov_b64 {sr(R1,2)}, {sr(P_BW,2)}')
    loads_w(0)
    gate_load()
    a('s_mov_b32 s16, s63')
    stamp(a, 'i0')
    issue(1, xfirst != 2)
    a('s_setprio 0')
    if compact:
        a('s_branch L_over')
        a.label('L_cons')
        cons_entry()
        a.label('L_over')
    stamp(a, 'i1')
    def slice0():
        columns()
        window(a, 62, 55, 39, 40)
        mksrd(a, R2, P_AW, 448*2688)
        mksrd(a, RWS, P_WS, WS_END)
        mksrd(a, R3, P_DBG, 256)
        p2_scalars(a)
    def slice1():
        p3_setup(a)
        p2_vec1(a)
        p2_vec2(a)
        a('s_mov_b32 s63, 0')
    sl = opt.get('lsl', [0.5, 6.5, 6.5, 10.5])
    slices = {}
    for g, f in zip(sl, [slice0, slice1, lambda: b_setup(a, 1), lambda: b_setup(a, 2)]):
        slices.setdefault(g, []).append(f)
    sched = opt.get('sched', {0: [2], 1: [3], 2: [4], 3: [5], 4: [6], 5: [7, 8], 6: [9], 7: [10, 11, 12, 13]})
    need = opt.get('need', {7: [7, 8, 9], 10: [10, 11], 12: [12, 13, 'go', 'p0']})
    for g in P1_BARS:
        n = vm.wait_for(*need.get(g, [g]))
        if g == P1_BARS[-1] and opt.get('pgb', 0):
            a('s_branch L_pgb')
            a('.p2align 12')
            a.label('L_pgb')
        a(f's_waitcnt vmcnt({n})')
        if g == P1_BARS[-1]:
            break
        stamp(a, f'g{g}')
        if XP and g in (2, 6): cstamp(a, 0 if g == 2 else 1)
        a('s_barrier')
        for f in slices.get(g, []): f()
        if g == opt.get('spf_g', -1):
            st = opt.get('spf_st', 128)
            a('s_mul_i32 s0, s2, 37')
            a('s_mul_i32 s1, s35, 9')
            a('s_add_u32 s0, s0, s1')
            a('s_min_u32 s0, s0, 9398')
            a('s_lshl_b32 s0, s0, 7')
            for k in range(10*128//st):
                a(f's_load_dword s1, {sr(P_AW,2)}, s0 offset:{k*st}')
        for c in sched.get(g, []):
            issue(c)
        for f in slices.get(g + 0.5, []): f()
        if g == 10 and opt.get('early0', 0):
            a(f'v_mov_b64 {vr(VPOLL,2)}, 0')
            if opt['early0'] > 1:
                a(f's_waitcnt vmcnt({vm.wait_for(12)})')
            a('s_mov_b32 exec_lo, 0x02010201')
            a('s_mov_b32 exec_hi, 1')
            a(f'buffer_load_dwordx2 {vr(VPOLL,2)}, v{VPB}, {sr(RWS,4)}, 0 offen {SC}')
            a('s_mov_b64 exec, -1')
            vm.add('e0')
        if g == 3:
            a(f'buffer_load_dwordx2 {vr(VTAG,2)}, off, {sr(R3,4)}, 0 {SC}')
            vm.add('go')
    get_nonce(a, VTAG, 'go_b')
    a('s_waitcnt lgkmcnt(0)')
    p2_srds(a)
    stamp(a, 'g12')
    a('s_barrier')
    stamp(a, 'pb')
    staged = opt.get('staged', 1)
    m0 = 0x02010201 if opt.get('late_s1', 2) else 0x06030603
    if opt.get('narrow', 1):
        if opt.get('early0', 0):
            a('s_waitcnt vmcnt(0)')
        else:
            a(f'v_mov_b64 {vr(VPOLL,2)}, 0')
        a(f's_mov_b32 exec_lo, {m0}')
        a('s_mov_b32 exec_hi, 1')
        spin_mask(a, VPOLL, VPB, '0', 'f1b', opt.get('sleep1', 1), bool(opt.get('early0', 0)))
    else:
        spin_mask(a, VPOLL, VPB, '0', 'f1b', opt.get('sleep1', 1), False, m0 if staged else None)
    stamp(a, 'f1b')

    a.c('===== waves 4-7: attention stream b (28 full-branch tiles, then the sliding window) =====')
    a.label('L_b_restart')
    vm = VM()
    a(f'buffer_load_dwordx4 {vr(QB,4)}, v{RA}, {sr(RWS,4)}, s42 offen {SC}')
    a(f'buffer_load_dwordx4 {vr(QB+4,4)}, v{RA}, {sr(RWS,4)}, s42 offen offset:1024 {SC}')
    bsl = {s: s % 5 for s in range(7)}
    bkt = {s: 36 + 4*s for s in range(7)}
    dma_a = lambda s: dma_tile(R2, 39, (s % 4)*16384, 4*s*4096)
    dma_b = lambda s: dma_tile(R2, 47, bsl[s]*16384, bkt[s]*4096)
    late = opt.get('late_s1', 2)
    if opt.get('kdirect'):
        a(f'buffer_load_dwordx4 {vr(Kb(3),4)}, v{VD}, {sr(R2,4)}, 0 offen {SC}')
        a(f'buffer_load_dwordx4 {vr(Kb(3)+4,4)}, v{VD}, {sr(R2,4)}, 0 offen offset:1024 {SC}')
        vm.add('k0', 2)
    for k, g in enumerate(dma_a(0) + dma_b(0)):
        for x in g: a(x)
        vm.add('k0' if (k < 2 and not opt.get('kdirect')) else 's0')
    if late == 0:
        for g in dma_a(1) + dma_b(1):
            for x in g: a(x)
        vm.add('s1', 8)
    em = (~(LATE | LATE << 16)) & 0xffffffff
    if opt.get('narrow', 1):
        a(f's_mov_b32 exec_lo, {em}')
        a(f'buffer_load_dwordx2 {vr(VPOLL,2)}, v{VPB}, {sr(RWS,4)}, 0 offen {SC}')
        a('s_mov_b32 exec_lo, -1')
        vm.add('s0')
    nq2 = NQ2[0]
    QB2b, OB2b = VTMP, CE
    zero16(a, OB)
    zero16(a, OA)
    if nq2: zero16(a, OB2b)
    a(f's_waitcnt vmcnt({vm.wait_for("k0")})')
    if not opt.get('x_nob'):
        if not opt.get('kdirect'):
            a(f'ds_read_b128 {vr(Kb(3),4)}, v{VD}')
            a(f'ds_read_b128 {vr(Kb(3)+4,4)}, v{VD} offset:1024')
            a('s_waitcnt lgkmcnt(0)')
        set_shift(a, Sb(0), QB, VSAV, '0', Kb(3), opt.get('quick', 0))
    a(f'ds_write_b128 v{VD}, {vr(QB,4)} offset:{QBUF}')
    a(f'ds_write_b128 v{VD}, {vr(QB+4,4)} offset:{QBUF+1024}')
    stamp(a, 'shift')
    a(f's_waitcnt vmcnt({vm.wait_for("s0")}) lgkmcnt(0)')
    if staged:
        a(f's_mov_b32 exec_lo, {em}')
        spin_mask(a, VPOLL, VPB, '0', 'f1c', 1, True)
    if late == 2:
        for g in dma_a(1) + dma_b(1):
            for x in g: a(x)
        vm.add('s1', 8)
    def late_poll():
        a(f's_mov_b32 exec_lo, {~em & 0xffffffff}')
        a('s_mov_b32 exec_hi, 0')
        a(f'buffer_load_dwordx2 {vr(VPOLL,2)}, v{VPB}, {sr(RWS,4)}, 0 offen {SC}')
        a('s_mov_b64 exec, -1')
        vm.add('pl')
    if LATE and LSTEP == 3:
        late_poll()
    stamp(a, 'preB0')
    a('s_barrier')
    stamp(a, 'B0')
    n2b = 28 if nq2 else 0
    def addr_b(j):
        nb = 14 if nq2 else 28
        if j >= nb:
            return (RBA, (j - nb)*4096)
        s, r = (j//2, j % 2) if nq2 else (j//4, j % 4)
        off = bsl[s]*16384 + r*4096
        return (RB1, off - 65536) if bsl[s] == 4 else (RB0, off)
    stb = Stream(37, n2b, addr_b)
    xm = opt.get('xm', 1)
    if xm == 1 and nq2:
        for i, k in enumerate(opt.get('xw', (0, 0, 1, 2))):
            stb.extra.setdefault((28, k), []).append(f'ds_write_b128 v7, {vr(OB2b+4*i,4)} offset:{i*1024}')
    if nq2:
        a(f'v_xor_b32 v2, 4096, v{VD}')
        a(f'ds_read_b128 {vr(QB2b,4)}, v2 offset:{QBUF}')
        a(f'ds_read_b128 {vr(QB2b+4,4)}, v2 offset:{QBUF+1024}')
    def zread():
        a('v_and_b32 v3, 31, v1')
        a('s_lshl_b32 s46, s35, 7')
        a(f's_add_u32 s46, s46, {ZBUF}')
        a('v_lshl_add_u32 v3, v3, 2, s46')
        a(f'ds_read_b32 v{VZ}, v3')
    def fill_b():
        if late == 1:
            for g in dma_b(1):
                for x in g: a(x)
            vm.add('s1', 4)
        if opt.get('s2fill', 0):
            for g in dma_b(2):
                for x in g: a(x)
            vm.add('s2', 4)
        else:
            zread()
            a('s_nop 0')
            pend.extend(('s2', g) for g in dma_b(2))
    pend = []
    TB9 = opt.get('tb9', 31)
    TB8 = opt.get('tb8', 29)
    bar_b = {1: 1, 5: 2, 9: 3, 13: 4, 17: 5, 21: 6, 25: 7, TB8: 8, TB9: 9}
    def pairs(tag, d):
        return [(tag, d[2*i] + d[2*i+1]) for i in range(len(d)//2)]
    def comb_write():
        a(f'v_add_u32 v7, {COMB}, v{VD}')
        a('s_nop 1')
        for i in range(4):
            a(f'ds_write_b128 v7, {vr(OB+4*i,4)} offset:{i*1024}')
        if opt.get('cflag', 1):
            lds_post(a, 48)
    def b_start(t):
        if t in bar_b:
            s = bar_b[t]
            tags = [f's{s}'] + (['pa'] if s == 5 else []) + (['pl'] if s == LSTEP - 2 else [])
            a(f's_waitcnt vmcnt({vm.wait_for(*tags)})' + {7: ' lgkmcnt(0)', 8: f' lgkmcnt({4 if TB8 == 30 else 0})'}.get(s, ''))
            if LATE and s == LSTEP - 2:
                spin_mask(a, VPOLL, VPB, '0', 'f1l', 2, True)
            if s == 5:
                spin_mask(a, VPOLL, VPA, '0', 'f1a', 2, True)
            a('s_barrier')
            assert not pend or s == 1
            if s + 2 in bsl:
                pend.extend((f's{s+2}', g) for g in dma_b(s + 2))
            elif s == 5:
                a(f'buffer_load_dwordx4 {vr(QA,4)}, v{RA}, {sr(RWS,4)}, s41 offen {SC}')
                a(f'buffer_load_dwordx4 {vr(QA+4,4)}, v{RA}, {sr(RWS,4)}, s41 offen offset:1024 {SC}')
                vm.add('s7', 2)
                pend.extend(pairs('s7', dma_tile(R1, 47, 32768, 0, voff=VA0, soff_s='0') + dma_tile(R1, 47, 49152, 0, voff=VA0+1, soff_s='0')))
            elif s == 6:
                pend.extend(pairs('s8', dma_tile(R1, 47, 65536, 0, voff=VA0+2, soff_s='0')) + pairs('s9', dma_wo(R0, W1_SLOT[0], 0)))
            elif s == 7:
                pend.extend(('s9', g) for g in dma_wo(R0, W1_SLOT[3], 3))
        if t == 29 and xm == 0:
            a('s_setprio 3')
            if nq2:
                a(f'v_xor_b32 v7, 4096, v{VD}')
                a(f'v_add_u32 v7, {COMB}, v7')
                for i in range(4):
                    a(f'ds_write_b128 v7, {vr(OB2b+4*i,4)} offset:{i*1024}')
                lds_post(a, 64)
                a('v_xor_b32 v2, 4, v2')
                a(f'v_add_u32 v7, {COMB}, v{VD}')
                a.label('L_bx')
                a('ds_read_b32 v3, v2')
                for i in range(4):
                    a(f'ds_read_b128 {vr(OB2b+4*i,4)}, v7 offset:{i*1024}')
                a('s_waitcnt lgkmcnt(0)')
                a('v_cmp_eq_u32 vcc, 0, v3')
                a('s_cbranch_vccnz L_bx')
                for r in range(16):
                    a(f'v_add_f32 v{OB+r}, v{OB+r}, v{OB2b+r}')
            comb_write()
        if t == 29 and xm == 1 and nq2:
            a(f'v_add_u32 v7, {COMB}, v{VD}')
            for i in range(4):
                a(f'ds_read_b128 {vr(OB2b+4*i,4)}, v7 offset:{i*1024}')
        if t == opt.get('prio_t', 33):
            a('s_setprio 2')
    def b_slot(t):
        if LATE and t == 4*(LSTEP - 2) - 3 - opt.get('pl_lead', 2):
            late_poll()
        if t == opt.get('pa_t', 14):
            a(f'buffer_load_dwordx2 {vr(VPOLL,2)}, v{VPA}, {sr(RWS,4)}, 0 offen {SC}')
            vm.add('pa')
        for rep in range(2 if (t < 3 and not opt.get('s2fill', 0)) else 1):
            if pend:
                tag, g = pend.pop(0)
                for x in g: a(x)
                vm.add(tag, sum('buffer_load' in x for x in g))
    def b_end(t):
        if t == 26:
            set_shift(a, Sb(28), QA, VSAV+2, vr(CD, 16), Kb(stb.tile(28)))
        if t == 27 and xm == 1 and nq2:
            a(f'v_xor_b32 v7, 4096, v{VD}')
            a(f'v_add_u32 v7, {COMB}, v7')
        if t == 29:
            if xm == 1:
                if nq2:
                    a('s_waitcnt lgkmcnt(4)')
                    for r in range(16):
                        a(f'v_add_f32 v{OB+r}, v{OB+r}, v{OB2b+r}')
                comb_write()
            gate_factor(a, -1)
        if t == 30:
            for r in range(16):
                a(f'v_xor_b32 v{CD+r}, {NEGBIG}, v{CD+r}')
        if t == 34:
            p3_bases(a, W2_SLOT)
        if t == 35:
            lds_post(a, 32)
    cin_b = lambda t: vr(CD, 16) if t in (28, 36) else '0'
    own = lambda t, n2: t >= n2 or t % 2 == 1
    pipeline(a, stb, lambda t: QA if t >= 28 else (QB if own(t, n2b) else QB2b), lambda t: OA if t >= 28 else (OB if own(t, n2b) else OB2b),
             cin_b, b_start, b_slot, b_end, 'b', fill_b, lambda: None)
    a('s_nop 11')
    stamp(a, 'endP')
    if opt.get('x_hint'): flag_prep(a, 6, 0)
    finalize(a, OA, 43, 45)
    if opt.get('x_hint'):
        flag_fire(a, 6, 's51', 0, PACK[0])
        a('s_mov_b32 s51, 0x40000000')
    stamp(a, 'st2')
    fbflag_publish(a)
    lds_wait(a, 16, 32, 'w2ok')
    p3_trs(a, 0)
    p3_addr(a)
    flag_prep(a, 6)
    a('s_waitcnt lgkmcnt(7)')
    bv = opt.get('bvec', 0)
    if opt.get('bearly', 1) and not bv: spoll_issue(a, LO)
    a('s_waitcnt vmcnt(0)')
    flag_fire(a, 6, 's51', 2, PACK[0])
    stamp(a, 'fs')
    a('s_setprio 0')
    if bv:
        a('s_cmp_ge_u32 s38, 28')
        a('s_cbranch_scc1 L_p3_x')
        a('v_lshlrev_b32 v36, 7, v1')
        if bv == 2:
            a('s_mov_b64 exec, 0xff')
            a(f'buffer_load_dwordx2 v[38:39], v36, {sr(RWS,4)}, s7 offen {SC}')
            a('s_mov_b64 exec, -1')
        p3_trs(a, 1)
        a('s_mov_b64 exec, 0xff')
        a(f's_mov_b32 s61, {SPIN_LIMIT}')
        if bv == 2:
            a('s_branch L_bv_chk')
        a.label('L_bv_lp')
        a(f'buffer_load_dwordx2 v[38:39], v36, {sr(RWS,4)}, s7 offen {SC}')
        a.label('L_bv_chk')
        a('ds_read_b32 v37, v13')
        a('s_waitcnt vmcnt(0) lgkmcnt(0)')
        a('v_cmp_ne_u32 vcc, 0, v37')
        a('s_cbranch_vccnz L_bv_out')
        a(f'v_cmp_ne_u64 vcc, {sr(NONCE,2)}, v[38:39]')
        a('s_sub_u32 s61, s61, 1')
        a('s_cselect_b64 vcc, 0, vcc')
        a('s_cbranch_vccz L_bv_ok')
        a('s_mov_b64 exec, vcc')
        a('s_branch L_bv_lp')
        a.label('L_bv_out')
        a('s_mov_b64 exec, -1')
        a('s_branch L_p3_x')
        a.label('L_bv_ok')
        a('s_mov_b64 exec, -1')
        p3_oloads(a, 0)
        a('s_branch L_p3_l1')
    if not opt.get('bearly', 1): spoll_issue(a, LO)
    p3_shared(a, opt)

    a.c('===== rerun requested: true row maxima of both branches, split into three bf16 terms =====')
    a.label('L_b_fallback')
    b_setup(a)
    true_max_B(a)
    a('s_mov_b32 exec_lo, 0')
    a(f'v_mov_b64 {vr(QA+6,2)}, 0')
    a('s_mov_b32 exec_lo, -1')
    for i in range(16):
        a(f'v_mov_b32 v{Sb(1)+i}, {NEGBIG}')
    for i in range(9):
        skip = a.new('fbA')
        a(f's_cmp_lt_u32 s40, {i}')
        a(f's_cbranch_scc1 {skip}')
        a(f's_sub_u32 s48, s40, {i}')
        a('s_lshl_b32 s48, s48, 12')
        a(f'buffer_load_dwordx4 {vr(K0,4)}, v{KOF[RA]}, {sr(R1,4)}, s48 offen {SC}')
        a(f'buffer_load_dwordx4 {vr(K0+4,4)}, v{KOF[RA]}, {sr(R1,4)}, s48 offen offset:1024 {SC}')
        a('s_waitcnt vmcnt(0)')
        qk(a, Sb(0), K0, QA, {0: vr(CD, 16), 8: vr(CE, 16)}.get(i, '0'), 0)
        qk(a, Sb(0), K0, QA, None, 1)
        a('s_nop 15')
        for r in range(16):
            a(f'v_max_f32 v{Sb(1)+r}, v{Sb(1)+r}, v{Sb(0)+r}')
        a.label(skip)
    split3(a, Sb(1), VSAV+2)
    a(f'v_mov_b32 v{VPOLL}, s{NONCE}')
    a(f'v_mov_b32 v{VPOLL+1}, s{NONCE+1}')
    a('s_barrier')
    a('s_branch L_b_restart')

    def first_setup():
        window(a, 33, 36, 37, 40)
        a('v_and_b32 v3, 15, v1')
        a('v_lshrrev_b32 v4, 4, v1')
        a('v_lshrrev_b32 v5, 1, v3')
        a('v_xor_b32 v5, v5, v4')
        a('s_lshl_b32 s40, s34, 12')
        a('v_lshl_add_u32 v6, v3, 7, s40')
        a(f'v_lshl_add_u32 v{XR[0]}, v5, 4, v6')
        a(f'v_xor_b32 v{XR[1]}, 64, v{XR[0]}')
        a('v_bfe_u32 v5, v1, 2, 2')
        a('v_lshl_add_u32 v5, v4, 2, v5')
        a(f'v_mul_u32_u24 v5, {2*WP}, v5')
        a('v_and_b32 v6, 3, v1')
        a('v_lshl_add_u32 v5, v6, 3, v5')
        a(f's_add_u32 s40, s37, {WRING}')
        a(f'v_add_u32 v{WRB}, s40, v5')
        a(f'v_lshlrev_b32 v{VGA}, 4, v4')
        a(f'v_add_u32 v{VGA}, {GATE}, v{VGA}')
        a(f'v_mov_b32 v2, {LDS_SIZE}')
        a('s_mov_b32 vcc_lo, 0x00010001')
        a('s_mov_b32 vcc_hi, 0x00010001')
        a(f'v_cndmask_b32 v{VGA}, v2, v{VGA}, vcc')
        a('s_waitcnt lgkmcnt(0)')
        stamp(a, 'karg')
    def later_setup(var):
        G = []
        def grp(f, atomic=False):
            n0 = len(a.lines)
            f()
            L = a.lines[n0:]
            del a.lines[n0:]
            if atomic: G.append(L)
            else: G.extend([x] for x in L)
        def tag():
            sk = a.new('notag')
            a('s_or_b32 s53, s2, s34')
            a(f's_cbranch_scc1 {sk}')
            a(f's_memrealtime {sr(NONCE,2)}')
            a('s_waitcnt lgkmcnt(0)')
            a(f's_lshl_b64 {sr(NONCE,2)}, {sr(NONCE,2)}, 1')
            a(f's_or_b32 s{NONCE}, s{NONCE}, 1')
            a(f'v_mov_b32 v{VGO}, s{NONCE}')
            a(f'v_mov_b32 v{VGO+1}, s{NONCE+1}')
            a('s_mov_b64 exec, 1')
            a(f'buffer_store_dwordx2 {vr(VGO,2)}, off, {sr(R3,4)}, 0 {SC}')
            a('s_mov_b64 exec, -1')
            a.label(sk)
        def rest1():
            columns()
            window(a, 62, 38, 39, 40)
            a(f'v_add_u32 v{WRL}, s39, v{WRL}')
            a(f'v_add_u32 v{WRA}, {WRING}, v{WRL}')
            a(f'v_add_u32 v{WRE}, {WE}, v{WRL}')
            a('v_lshlrev_b32 v2, 4, v3')
            a(f'v_lshl_add_u32 v{VST}, v4, 9, v2')
            a('v_cmp_eq_u32 vcc, 12, v3')
            a('v_mov_b32 v2, 0x3f803f80')
            a(f's_mov_b32 s50, {f32bits(CSCALE)}')
            a(f's_mov_b32 s51, {f32bits(CSCALE)}')
            a(f'v_cndmask_b32 v{VPAD}, 0, v2, vcc')
            p2_scalars(a)
            a('s_lshl_b32 s46, s62, 6')
            a('s_add_u32 s46, s46, s40')
            a('s_lshl_b32 s46, s46, 7')
            a(f's_add_u32 s3, s46, {WS_F1}')
            a('s_lshl_b32 s46, s33, 6')
            a('s_add_u32 s46, s46, s40')
            a('s_lshl_b32 s46, s46, 7')
            a(f's_add_u32 s52, s46, {WS_F1 + 131072}')
            mksrd(a, RWS, P_WS, WS_END)
        def fwarm():
            a('v_lshlrev_b32 v2, 3, v1')
            a(f'v_mov_b32 v{VGO}, 0')
            a(f'v_mov_b32 v{VGO+1}, 0')
            a('s_add_u32 s46, s45, 2048')
            flag_fire(a, VGO, 's45')
            flag_fire(a, VGO, 's46')
            if opt.get('fw1', 0):
                flag_fire(a, VGO, 's52')
        def rest2():
            p2_srds(a)
            p3_setup(a)
            store_offsets(a, var, 33, 1)
            store_offsets(a, var, 62, 0)
            prefill(a, var)
        grp(lambda: mksrd(a, R3, P_DBG, 256))
        grp(tag, True)
        grp(rest1)
        grp(rest2)
        if opt.get('fwarm', 1): grp(fwarm, True)
        return G
    later = []
    curvar = [None]
    def hookB(u):
        if u == 14:
            while later: a.lines.extend(later.pop(0))
        if u == 22:
            a(f'buffer_load_dwordx2 {vr(VGO,2)}, off, {sr(R3,4)}, 0 {SC}')
        if u == NU - 1 and not opt.get('zlate', 0):
            for N in range(NZ1, 14):
                a(f'ds_read_b128 {vr(ZG[N-NZ1],4)}, v{VGA} offset:{N*64}')
    def hookA(u):
        if opt.get('zlate', 0) and u == opt.get('nf', 8) - 3:
            for N in range(NZ1, 14):
                a(f'ds_read_b128 {vr(XF+4*(N-NZ1),4)}, v{VGA} offset:{N*64}')
        if opt.get('zlate', 0) and u == opt.get('nf', 8):
            for N in range(NZ1, 14):
                zmfma(a, N, XF+4*(N-NZ1))
        if u == opt.get('nf', 8):
            stamp(a, 'preF')
            a('s_waitcnt vmcnt(0)')
            get_nonce(a, VGO, 'go_a')
            flag_store(a, VGO, 's52')
            stamp(a, 'flagB')
        if u == 37:
            prefill(a, curvar[0], PKA)
    for var in VARIANTS:
        if opt.get('pgv') is not None:
            a('.p2align 12')
            if opt['pgv']: a(f'.fill {opt["pgv"]//4}, 4, 0xbf800000')
        a.c(f'===== waves 0-3: phase-1 products, section kinds {var} =====')
        a.label(f'P1B_{var}')
        first_setup()
        later.extend(later_setup(var))
        if not opt.get('sliced', 0):
            while len(later) > opt.get('fwarm', 1): a.lines.extend(later.pop(0))
        stamp(a, 'g0')
        a('s_barrier')
        first_reads(a, False)
        gemm_pass(a, var, False, hookB, p1_epi(var, PK, True))
        stamp(a, 'stB')
        if not opt.get('zlate', 0):
            a('s_waitcnt lgkmcnt(0)')
            for N in range(NZ1, 14):
                zmfma(a, N, ZG[N-NZ1])
        stamp(a, 'g7')
        a('s_barrier')
        first_reads(a, True)
        curvar[0] = var
        gemm_pass(a, var, True, hookA, p1_epi(var, PKA, False))
        a(f'v_mov_b32 v{PKA+24}, v{VST}')
        a('s_branch L_a_attn')
    if opt.get('pga'): a('.p2align 12')
    a.c('===== waves 0-3: attention stream a (36 full-branch tiles) =====')
    a.label('L_a_attn')
    stamp(a, 'endA')
    a('v_and_b32 v3, 31, v1')
    a('s_lshl_b32 s46, s35, 7')
    a(f's_add_u32 s46, s46, {ZBUF}')
    a('v_lshl_add_u32 v3, v3, 2, s46')
    a('s_mov_b64 exec, 0xffff')
    a(f'ds_write2_b32 v3, v{ZD}, v{ZD+4} offset1:16')
    a('s_mov_b64 exec, -1')
    a(f'ds_read_b32 v{VZ}, v3')
    p2_vec1(a)
    a('s_mov_b32 s63, 0')
    a('s_add_u32 s45, s45, 2048')
    a.label('L_a_restart')
    vm = VM()
    a('v_and_b32 v2, 31, v1')
    a(f'v_mov_b32 v3, {FBFLAG}')
    a('v_lshl_add_u32 v2, v2, 2, v3')
    a(f'ds_write_b32 v2, v{VZERO}')
    if opt.get('st_t0', 3) < 0:
        for t in range(3):
            tile_stores(a, PKA+8*t, PKA+24, SOFF[t], SC)
        vm.add('st', 6)
    QB2a, OB2a, CT = QA, OA, 192
    zero16(a, OB)
    if nq2: zero16(a, OB2a)
    a(f'v_xor_b32 v2, 4096, v{VD}')
    a('s_waitcnt lgkmcnt(0)')
    stamp(a, 'preB0')
    a('s_barrier')
    stamp(a, 'B0')
    n2a = 32 if nq2 else 0
    def addr_a(j):
        if nq2:
            return (RB0, ((j//2) % 4)*16384 + (j % 2)*4096) if j < 16 else (RA, (j - 16)*4096)
        return (RA, ((j//4) % 4)*16384 + (j % 4)*4096)
    sta = Stream(36, n2a, addr_a)
    if nq2:
        a(f'ds_read_b128 {vr(QB2a,4)}, v2 offset:{QBUF}')
        a(f'ds_read_b128 {vr(QB2a+4,4)}, v2 offset:{QBUF+1024}')
    a(f'ds_read_b128 {vr(QB,4)}, v{VD} offset:{QBUF}')
    a(f'ds_read_b128 {vr(QB+4,4)}, v{VD} offset:{QBUF+1024}')
    def fill_a():
        if late == 1:
            for g in dma_a(1):
                for x in g: a(x)
            vm.add('s1', 4)
        if opt.get('s2fill', 0):
            for g in dma_a(2):
                for x in g: a(x)
            vm.add('s2', 4)
        else:
            a('s_nop 5')
            pend.extend(('s2', g) for g in dma_a(2))
    pend = []
    def a_start(t):
        if t % 4 == 1 and t <= 29:
            s = (t + 3)//4
            if s >= 2 or late == 1:
                a(f's_waitcnt vmcnt({vm.wait_for(f"s{s}")})' + (' lgkmcnt(0)' if s >= 7 else ''))
            a('s_barrier')
            assert not pend or s == 1
            if s + 2 <= 8:
                pend.extend((f's{s+2}', g) for g in dma_a(s + 2))
            elif s == 7:
                mksrd(a, R3, P_AWO, 448*896)
                if opt.get('w2touch', 1):
                    a('s_and_b32 s46, s36, 3')
                    a('s_lshl_b32 s46, s46, 2')
                    a('s_add_u32 s46, s46, s35')
                    a('s_mul_i32 s46, s46, 14')
                    a('s_add_u32 s46, s46, 224')
                    a('v_min_u32 v3, 13, v1')
                    a('v_add_u32 v3, s46, v3')
                    a('v_mul_u32_u24 v3, 896, v3')
                    a('s_lshl_b32 s46, s37, 7')
                    a(f'buffer_load_dword v{VPOLL}, v3, {sr(R3,4)}, s46 offen')
                    vm.add('touch')
                pend.extend(pairs('wo', dma_wo(R0, W1_SLOT[1], 1) + dma_wo(R0, W1_SLOT[2], 2)))
            else:
                pend.extend(pairs('wo', dma_wo(R3, W2_SLOT[1], 1) + dma_wo(R3, W2_SLOT[0], 0)))
        if t == opt.get('st_t0', 3) + opt.get('st_lag', 7):
            a(f's_waitcnt vmcnt({vm.wait_for("st")})')
            flag_store(a, 4, 's3')
            vm.add('fl')
    def a_slot(t):
        st0 = opt.get('st_t0', 3)
        if st0 <= t < st0 + 3:
            t -= st0
            tile_stores(a, PKA+8*t, PKA+24, SOFF[t], SC)
            vm.add('st', 2)
            t += st0
        for rep in range(2 if (t < 3 and not opt.get('s2fill', 0)) else 1):
            if pend:
                tag, g = pend.pop(0)
                for x in g: a(x)
                vm.add(tag, sum('buffer_load' in x for x in g))
    def a_end(t):
        def comb_reads():
            a('ds_read_b32 v220, v221')
            for i in range(4):
                a(f'ds_read_b128 {vr(CT+4*i,4)}, v7 offset:{i*1024}')
        if t == opt.get('crd_t', 31):
            a(f'v_add_u32 v222, {COMB}, v{VD}')
            a(f'v_xor_b32 v7, {4096 if nq2 else 0}, v222')
            a(f's_xor_b32 s46, s35, {int(nq2)}')
            a(f's_lshl2_add_u32 s46, s46, {FBFLAG + 48}')
            a('v_mov_b32 v221, s46')
            comb_reads()
        if t == opt.get('crd_t', 31) + 2:
            a.label('L_comb_chk')
            a('v_cmp_ne_u32 vcc, 0, v220')
            a('s_cbranch_vccnz L_comb_ok')
            comb_reads()
            a('s_waitcnt lgkmcnt(0)')
            a('s_branch L_comb_chk')
            a.label('L_comb_ok')
            if nq2:
                for r in range(16):
                    a(f'v_add_f32 v{OB2a+r}, v{OB2a+r}, v{CT+r}')
                for i in range(4):
                    w = f'ds_write_b128 v7, {vr(OB2a+4*i,4)} offset:{i*1024}'
                    if opt.get('aw', 1): sta.extra.setdefault((t + 1, i), []).append(w)
                    else: a(w)
        if t == 28:
            gate_factor(a, +1)
        if t == 33:
            p3_bases(a, W1_SLOT)
        if t == opt.get('touch_t', 20):
            p2_vec2(a)
    pipeline(a, sta, lambda t: QB if own(t, n2a) else QB2a, lambda t: OB if own(t, n2a) else OB2a, lambda t: '0',
             a_start, a_slot, a_end, 'a', fill_a, lambda: None)
    a(f's_waitcnt vmcnt({vm.wait_for("wo")}) lgkmcnt(0)')
    a('s_barrier')
    a('s_setprio 3')
    if nq2:
        for i in range(4):
            a(f'ds_read_b128 {vr(CT+4*i,4)}, v222 offset:{i*1024}')
    flag_prep(a, 24, 0)
    a('s_nop 3' if nq2 else 's_nop 7')
    a('s_waitcnt lgkmcnt(0)')
    stamp(a, 'endP')
    for r in range(16):
        a(f'v_add_f32 v{OB+r}, v{OB+r}, v{CT+r}')
    finalize(a, OB, 44, 45)
    stamp(a, 'st2')
    fbflag_publish(a)
    for g in dma_wo(R3, W2_SLOT[2], 2) + dma_wo(R3, W2_SLOT[3], 3):
        for x in g: a(x)
    p3_addr(a)
    if not opt.get('aprio', 1): a('s_setprio 0')
    a('s_waitcnt vmcnt(8)')
    flag_fire(a, 24, 's51', 0, PACK[0])
    stamp(a, 'fs')
    if opt.get('aearly', 1): spoll_issue(a, LO)
    p3_trs(a, 0)
    a('s_waitcnt vmcnt(1) lgkmcnt(6)')
    if not opt.get('aearly', 1): spoll_issue(a, LO)
    lds_post(a, 16)
    stamp(a, 'w2')
    a('s_branch L_p3')

    a.label('L_a_fallback')
    for r in SOFF + [3]:
        a(f's_mov_b32 s{r}, 0x40000000')
    for r in range(3):
        a(f'v_mov_b32 v{PKA+24+r}, 0')
    a('s_barrier')
    a('s_branch L_a_restart')

    a.label('L_exit')
    dump_stamps(a, 0)
    a.label('L_done')
    a('s_endpgm')
    return 256

DOC = """;
"""
def build(path, **opt):
    global SLEEP2, FULLFLAG, BST
    BST = opt.get('bst', 'sc1')
    NQ2[0] = opt.get('nq2', 1)
    DENSE[0] = opt.get('dense', 1)
    KVF[0] = opt.get('kvf', 'sc1')
    REORD[0] = opt.get('reord', 0); EPIW[0] = opt.get('epiw', 3)
    FULL[0] = opt.get('full', 1)
    PACK[0] = opt.get('pack', 0)
    SWAPH[0] = opt.get('swaph', 0)
    XP.clear(); XP.update(opt.get('xp', {}))
    XNOWO[:] = [1] if opt.get('x_nowo') else []
    P1_BARS[:] = opt.get('bars', [0, 1, 2, 3, 4, 5, 6, 7, 10, 12])
    PV.clear(); PV.update(opt.get('pv', dict(slot=1, prio='dec', lag=3, altend=29)))
    SLEEP2 = opt.get('sleep2', 3); FULLFLAG = opt.get('fullflag', 1)
    a = Asm()
    hdr = open('cdna_kernels/' + NAME + '.s.ref').read().split('\n')
    head = [l for l in hdr if l.startswith(';') and '@launch' not in l]
    out = '\n'.join(head) + '\n'
    out += f'; @launch grid=(256,1,1) block=(512,1,1) lds={LDS_SIZE}\n'
    out += DOC
    out += '.amdgcn_target "amdgcn-amd-amdhsa--gfx950"\n.text\n'
    v = gen(a, NAME + '_kernel', opt)
    out += a.text()
    out += '.section .rodata,"a"\n.p2align 6\n'
    out += kernel_desc(NAME + '_kernel', v, 102)
    open(path, 'w').write(out)

SETS = {
 'A': ['g0', 'g1', 'g5', 'g6', 'endB', 'g7', 'g10', 'g12'],
 'B': ['preF', 'flagB', 'pb', 'poll0', 'f1b', 'endA', 'preB0', 'B0'],
 'C': ['B0', 'p0', 'q1', 'q5', 'q9', 'q17', 'q25', 'endP'],
 'D': ['endP', 'st2', 'B9', 'flag2', 'f2b', 'mfB', 'preC', 'C'],
 'E': ['endP', 'flag2', 'C', 'f2a', 'mfA', 'st'],
 'H': ['st2', 'p2w', 'fs', 'f2b0', 'f2bx', 'f2b1', 'f2b2', 'f2b'],
 'I': ['endB', 'g7', 'flagB', 'g12', 'f1b', 'preB0', 'B0', 'endP'],
 'J': ['st2', 'flag2', 'fack', 'fs', 'f2b', 'mfB', 'C', 'f2a'],
 'K': ['endP', 'st2', 'fs', 'w2', 'f2b', 'f2a', 'mfA', 'X'],
 'L': ['B9', 'C', 'f2a', 'mfB', 'mfA', 'X', 'st'],
 'M': ['g1', 'g6', 'endB', 'g7', 'flagB', 'g12', 'preB0', 'B0'],
 'N': ['g1', 'endB', 'g7', 'preF', 'flagB', 'g12', 'f1b', 'endA'],
 'O': ['B0', 'q1', 'q5', 'q9', 'q17', 'q25', 'q33', 'endP'],
 'P': ['f1b', 'shift', 'preB0', 'B0', 'p0', 'q1', 'q5', 'endP'],
 'Q': ['q1', 'q5', 'q9', 'q13', 'q17', 'q21', 'q25', 'q29'],
 'R': ['q25', 'q29', 'endP', 'st2', 'fs', 'f2a', 'mfA', 'X'],
 'S': ['g1', 'g2', 'g6', 'g7', 'g10', 'g12', 'f1b', 'endA'],
 'T': ['pre', 'karg', 'i0', 'i1', 'g0', 'g1', 'g2', 'g6'],
 'U': ['g1', 'h1', 'g2', 'h2', 'g3', 'h6', 'endB', 'endA'],
 'Z': [],
 'F': ['g6', 'endB', 'g7', 'preF', 'flagB', 'g10', 'g12', 'B0'],
 'G': ['q17', 'q21', 'q25', 'p29', 'q30', 'p33', 'q33', 'endP'],
}
def build_all(tag, sets='ABCDE', **opt):
    common.DIAG = False
    build(f'work/{tag}.s', **opt)
    common.DIAG = True
    for k in sets:
        common.STAMPS = SETS[k]
        build(f'work/{tag}_{k}.s', **opt)
        s = open(f'work/{tag}_{k}.s').read()
        open(f'work/{tag}_{k}.s', 'w').write('; STAMPS start ' + ' '.join(SETS[k]) + '\n' + s)
    common.DIAG = False

if __name__ == '__main__':
    build_all('v22', 'Z')
```

```python
import sys
from common import *
import common

WS_F1 = 20 << 20
WS_F2 = WS_F1 + 262144
NONCE = 100
XRING = 0
WE = 65536
WRING = 98304
GATE = 159744
ZBUF = 161792
FBFLAG = 162304
LDS_SIZE = 163840
QBUF = 49152
COMB = 65536
W1_SLOT = [147456, 16384, 32768, 81920]
W2_SLOT = [98304, 49152, 0, 65536]

VARIANTS = ['QQQ', 'QKK', 'KKK', 'KKV', 'VVV']
SC = 'sc1'
SPIN_LIMIT = 1 << 16
SLEEP2 = 2
FULLFLAG = 1

P_X, P_AW, P_AWO, P_BW, P_BWO, P_G, P_OUT, P_DBG, P_WS = 4, 6, 8, 12, 14, 16, 18, 20, 22
R0, RWS, R1, R2, R3 = 24, 28, 64, 68, 96

def mksrd(a, d, p, nbytes):
    srd(a, d, p, p+1, nbytes)

def dispatch(a, sreg, prefix):
    a(f's_cmp_lt_u32 s{sreg}, 5')
    a(f's_cbranch_scc1 {prefix}_QQQ')
    a(f's_cmp_eq_u32 s{sreg}, 5')
    a(f's_cbranch_scc1 {prefix}_QKK')
    a(f's_cmp_lt_u32 s{sreg}, 10')
    a(f's_cbranch_scc1 {prefix}_KKK')
    a(f's_cmp_eq_u32 s{sreg}, 10')
    a(f's_cbranch_scc1 {prefix}_KKV')
    a(f's_branch {prefix}_VVV')

def window(a, cb_s, ws0_s, co_s, t):
    a(f's_mul_i32 s{ws0_s}, s{cb_s}, 168')
    a(f's_and_b32 s{co_s}, s{ws0_s}, 15')
    a(f's_sub_u32 s{ws0_s}, s{ws0_s}, s{co_s}')

def wslot(g):
    if g < 7: return WRING + (g % 5)*12288
    return {7: WE, 8: WE + 12288, 9: WRING + 2*12288, 10: 0, 11: WRING + 3*12288, 12: 32768, 13: WRING + 4*12288}[g]

def spin_mask(a, vdata, vaddr, soff, name, sleep, loaded=False, need=None):
    ok, lp = a.new(name + '_ok'), a.new(name + '_lp')
    a(f's_mov_b32 s61, {SPIN_LIMIT}')
    if not loaded:
        a(f'buffer_load_dwordx2 {vr(vdata,2)}, v{vaddr}, {sr(RWS,4)}, {soff} offen {SC}')
        a('s_waitcnt vmcnt(0)')
        stamp(a, 'poll0')
    a.label(lp)
    a(f'v_cmp_ne_u64 vcc, {sr(NONCE,2)}, {vr(vdata,2)}')
    a('s_sub_u32 s61, s61, 1')
    a('s_cselect_b64 vcc, 0, vcc')
    if need is None:
        a(f's_cbranch_vccz {ok}')
    else:
        a(f's_and_b32 s46, vcc_lo, {need}')
        a('s_or_b32 s46, s46, vcc_hi')
        a(f's_cbranch_scc0 {ok}')
    a('s_mov_b64 exec, vcc')
    if sleep: a(f's_sleep {sleep}')
    a(f'buffer_load_dwordx2 {vr(vdata,2)}, v{vaddr}, {sr(RWS,4)}, {soff} offen {SC}')
    a('s_waitcnt vmcnt(0)')
    a(f's_branch {lp}')
    a.label(ok)
    a('s_mov_b64 exec, -1')

def get_nonce(a, vdata, name):
    ok, lp = a.new(name + '_ok'), a.new(name + '_lp')
    a(f's_mov_b32 s61, {SPIN_LIMIT}')
    a.label(lp)
    a(f'v_cmp_eq_u32 vcc, 0, v{vdata}')
    a('s_sub_u32 s61, s61, 1')
    a('s_cselect_b64 vcc, 0, vcc')
    a(f's_cbranch_vccz {ok}')
    a('s_sleep 8')
    a(f'buffer_load_dwordx2 {vr(vdata,2)}, off, {sr(R3,4)}, 0 {SC}')
    a('s_waitcnt vmcnt(0)')
    a(f's_branch {lp}')
    a.label(ok)
    a(f'v_readfirstlane_b32 s{NONCE}, v{vdata}')
    a(f'v_readfirstlane_b32 s{NONCE+1}, v{vdata+1}')
    a('s_nop 1')

XR = [8, 9]
WRB, WRA, WRE, WRL = 12, 13, 6, 5
VST, VPAD = 14, 7
WB = [16, 24, 32, 40]
PK = 52
ACC = 80
XF = 128
VGO = 76
VGA = 79
ZD = 240
ZG = [24+8, 24+12, 40, 44]
NZ1 = 10
WP = 176
NU = 42

XP = {}
REORD = [1]
ZPAD = [0]
ZP = {WRB: 48, WRA: 49, WRE: 50, WRL: 51}
def sub(u):
    if REORD[0] and u >= 36:
        return 12 + (u - 36) % 2, (u - 36)//2
    return u//3, u % 3

def group(isA, u):
    if u >= NU: return []
    N, i = sub(u)
    g = (7 if isA else 0) + N//2
    if g < 7: base, off = WRB, wslot(g) - WRING
    elif g < 9: base, off = WRE, wslot(g) - WE
    elif g in (10, 12): base, off = WRL, wslot(g)
    else: base, off = WRA, wslot(g) - WRING
    L = []
    if not isA and i == 0:
        for st in range(2):
            L.append(f'ds_read_b128 {vr(XF+8*N+4*st,4)}, v{XR[N%2]} offset:{XRING + ((N//2)%4)*16384 + st*2048}')
    for dt in range(2):
        for e in range(2):
            L.append(f'ds_read_b64_tr_b16 {vr(WB[u%4]+4*dt+2*e,2)}, v{ZP[base] if (dt and ZPAD[0]) else base} offset:{off + (N%2)*32*WP + e*WP + i*56 + dt*32}')
    if not isA and i == 2 and N < NZ1:
        L.append(f'ds_read_b128 {vr(XF+8*(N+4),4)}, v{VGA} offset:{N*64}')
    return L

def first_reads(a, isA):
    for u in range(3):
        for x in group(isA, u): a(x)

def zmfma(a, N, greg):
    for st in range(2):
        a(f'v_mfma_f32_16x16x32_bf16 {vr(ZD+4*st,4)}, {vr(greg,4)}, {vr(XF+8*N+4*st,4)}, {"0" if N == 0 else vr(ZD+4*st,4)}')

P1_BARS = [0, 1, 2, 3, 4, 5, 6, 7, 10, 12]
def gemm_pass(a, var, isA, hook, epi):
    pend = []
    for u in range(NU):
        N, i = sub(u)
        nx = list(group(isA, u+3))
        young = len(group(isA, u+1)) + len(group(isA, u+2))
        a(f's_waitcnt lgkmcnt({young})')
        if young + len(nx) > 15:
            nx[-1] = 's_waitcnt lgkmcnt(14)\n' + nx[-1]
        if u + 3 < NU and (u+3) % 6 == 0:
            g = (7 if isA else 0) + (u+3)//6
            if g in P1_BARS:
                stamp(a, f'g{g}')
                a('s_barrier')
                stamp(a, f'h{g}')
        if REORD[0] and u in (39, 41):
            pend += epi[(u - 39)//2]
        cut = {0: [0, 0, 0, 0, 0], 4: [0, 1, 2, 3, 4], 5: [0, 2, 3, 4, 5], 6: [0, 2, 4, 5, 6]}[len(nx)]
        for q, (dt, st) in enumerate(((0, 0), (0, 1), (1, 0), (1, 1))):
            xf = vr(XF+8*N+4*st, 4); wf = vr(WB[u%4]+4*dt, 4)
            if var[i] == 'V':
                d = vr(ACC+16*i+8*dt+4*st, 4)
                a(f'v_mfma_f32_16x16x32_bf16 {d}, {xf}, {wf}, {"0" if N == 0 else d}')
            else:
                d = vr(ACC+16*i+8*st+4*dt, 4)
                a(f'v_mfma_f32_16x16x32_bf16 {d}, {wf}, {xf}, {"0" if N == 0 else d}')
            for x in nx[cut[q]:cut[q+1]]: a(x)
            k = 0
            while pend and k < EPIW[0]:
                g = pend.pop(0)
                for x in g: a(x)
                k += len(g)
            if u == 40 and q == 3: a('s_nop 1')
        if i == 2 and not isA and N < NZ1:
            zmfma(a, N, XF+8*(N+4))
        hook(u)
    stamp(a, 'endA0' if isA else 'endB')
    if REORD[0] and sum(len(g) for g in pend) < 8:
        a('s_nop 7')
    for g in pend + sum(epi[(2 if REORD[0] else 0):], []):
        for x in g: a(x)
EPIW = [2]

SOFF = [47, 59, 16]
SOFFB = [54, 55, 17]
def store_offsets(a, var, cb_s, br):
    SOFF = SOFFB if br else globals()['SOFF']
    a(f's_mul_i32 s58, s{cb_s}, 3')
    for i in range(3):
        a(f's_add_u32 s61, s58, {i}')
        a('s_and_b32 s61, s61, 15')
        a('s_lshl_b32 s61, s61, 6')
        a('s_add_u32 s61, s61, s40')
        ty = var[i]
        if ty == 'Q':
            a(f's_lshl_b32 s61, s61, 11')
            a(f's_add_u32 s{SOFF[i]}, s61, {WS_Q + br*1024*2048}')
        else:
            a(f's_lshl_b32 s61, s61, 12')
            a(f's_add_u32 s{SOFF[i]}, s61, {br*1024*4096 + (2048 if ty == "V" else 0)}')

PKA = 192
def prefill(a, var, PK=PK):
    for i in range(3):
        p = PK + 8*i
        ty = var[i]
        if ty == 'V':
            for r in range(4, 8):
                a(f'v_mov_b32 v{p+r}, v{VPAD}')
        else:
            for st in range(2):
                a(f'v_mov_b32 v{p+4*st+2}, {"0" if ty == "Q" else "0x3f803f80"}')
                a(f'v_mov_b32 v{p+4*st+3}, {"0" if ty == "Q" else "0x3f80"}')

def tile_stores(a, p, va, soff, fl):
    a(f'buffer_store_dwordx4 {vr(p,4)}, v{va}, {sr(RWS,4)}, s{soff} offen {fl}')
    a(f'buffer_store_dwordx4 {vr(p+4,4)}, v{va}, {sr(RWS,4)}, s{soff} offen offset:256 {fl}')

def p1_epi(var, PK, stores):
    E = []
    for i in range(3):
        ty = var[i]
        d = ACC + 16*i; p = PK + 8*i
        cvt = lambda r: f'v_cvt_pk_bf16_f32 v{p+r}, v{d+2*r}, v{d+2*r+1}'
        G = []
        if ty == 'Q':
            if i == 2: G += [[f'v_pk_mul_f32 {vr(d+r,2)}, {vr(d+r,2)}, s[50:51]'] for r in range(0, 16, 2)]
            else: G += [[f'v_mul_f32 v{d+r}, s50, v{d+r}'] for r in range(16)]
        if ty == 'V':
            G += [[cvt(r)] for r in range(4)]
            G.append(['s_mov_b32 exec_lo, 0x0fff0fff', 's_mov_b32 exec_hi, 0x0fff0fff'] + [cvt(r) for r in range(4, 8)] + ['s_mov_b64 exec, -1'])
        else:
            G += [[cvt(r)] for r in (0, 1, 4, 5)]
            G.append(['s_mov_b32 exec_hi, 0xffff'] + [cvt(r) for r in (2, 3, 6, 7)] + ['s_mov_b32 exec_hi, -1'])
        if stores:
            G.append([f'buffer_store_dwordx4 {vr(p,4)}, v{VST}, {sr(RWS,4)}, s{SOFFB[i]} offen {SC}'])
            G.append([f'buffer_store_dwordx4 {vr(p+4,4)}, v{VST}, {sr(RWS,4)}, s{SOFFB[i]} offen offset:256 {SC}'])
        E.append(G)
    return E

def flag_prep(a, tmp, va=2):
    a(f'v_lshlrev_b32 v{va}, 3, v1')
    a(f'v_mov_b32 v{tmp}, s{NONCE}')
    a(f'v_mov_b32 v{tmp+1}, s{NONCE+1}')

def flag_fire(a, tmp, soff, va=2, one=False):
    a('s_mov_b64 exec, 1' if one else 's_mov_b64 exec, 0xffff')
    a(f'buffer_store_dwordx2 {vr(tmp,2)}, v{va}, {sr(RWS,4)}, {soff} offen {SC}')
    a('s_mov_b64 exec, -1')

def flag_store(a, tmp, soff):
    flag_prep(a, tmp)
    flag_fire(a, tmp, soff)

RA, RBA, RB0, RB1, VD, IDX, VZ, VWO = 8, 9, 10, 11, 12, 13, 14, 15
QB, QA, OB, OA, S0, K0, V0, CD, CE = 16, 24, 32, 48, 64, 128, 160, 192, 208
VA0 = 224
VSAV = 228
VPOLL = 232
VPA = 236
VZERO, VONE = 237, 227
VTAG = 238
VP2 = 234
VTMP = 240
KOF = {8: 248, 9: 249, 10: 250, 11: 251}
NEGBIG = 0xff000000
LOG2E = f32bits(math.log2(math.e))

PV = {}
def Sb(t): return S0 + 16*(t % 4)
def Kb(t): return K0 + 8*(t % 4)
def Vb(t): return V0 + 8*(t % 4)

def qk(a, d, k, q, cin, half):
    if half == 0:
        a(f'v_mfma_f32_32x32x16_bf16 {vr(d,16)}, {vr(k,4)}, {vr(q,4)}, {cin}')
    else:
        a(f'v_mfma_f32_32x32x16_bf16 {vr(d,16)}, {vr(k+4,4)}, {vr(q+4,4)}, {vr(d,16)}')

def rowmax(a, s, out, t1, t2):
    a(f'v_max3_f32 v{out}, v{s}, v{s+1}, v{s+2}')
    a(f'v_max3_f32 v{t1}, v{s+3}, v{s+4}, v{s+5}')
    a(f'v_max3_f32 v{out}, v{out}, v{s+6}, v{s+7}')
    a(f'v_max3_f32 v{t1}, v{t1}, v{s+8}, v{s+9}')
    a(f'v_max3_f32 v{out}, v{out}, v{s+10}, v{s+11}')
    a(f'v_max3_f32 v{t1}, v{t1}, v{s+12}, v{s+13}')
    a(f'v_max3_f32 v{out}, v{out}, v{s+14}, v{s+15}')
    a(f'v_max_f32 v{t1}, v{out}, v{t1}')
    a(f'v_mov_b32 v{t2}, v{t1}')
    a('s_nop 1')
    a(f'v_permlane32_swap_b32 v{t1}, v{t2}')
    a('s_nop 1')
    a(f'v_max_f32 v{out}, v{t1}, v{t2}')

def zero16(a, r):
    for i in range(0, 16, 2):
        a(f'v_mov_b64 {vr(r+i,2)}, 0')

KVF = ['sc1']
def dma_tile(srdn, m0base_s, m0imm, soff_imm, voff=VD, soff_s=None):
    L = []
    for f in range(4):
        g = []
        if f == 0:
            g.append(f's_add_u32 m0, s{m0base_s}, {m0imm}')
            g.append(f's_mov_b32 s48, {soff_imm}' if soff_s is None else 's_nop 0')
        so = 's48' if soff_s is None else soff_s
        g.append(f'buffer_load_dwordx4 v{voff}, {sr(srdn,4)}, {so} offen offset:{f*1024} {KVF[0]} lds')
        L.append(g)
    return L

XNOWO = []
def dma_wo(srdn, slot, kq):
    if XNOWO: return [['s_nop 0'] for i in range(4)]
    L = []
    for i in range(4):
        if i < 2:
            g = [f's_add_u32 m0, s39, {slot + i*1024}', f's_mov_b32 s48, {(kq*112 + 8*i)*896}']
        else:
            g = [f's_add_u32 m0, s62, {slot + i*1024}', f's_add_u32 s48, s49, {(kq*112 + 8*i)*896}']
        g.append(f'buffer_load_dwordx4 v{VWO}, {sr(srdn,4)}, s48 offen lds')
        L.append(g)
    return L

def set_shift(a, s, q, sav, cin, kreg, quick=0):
    l1, l2 = a.new('fbq'), a.new('fbq_e')
    a.c('row shift: maximum over one key tile, or the true row maximum on a rerun')
    a('s_cmp_lg_u32 s60, 0')
    a(f's_cbranch_scc1 {l1}')
    qk(a, s, kreg, q, cin, 0)
    qk(a, s, kreg, q, None, 1)
    a('s_nop 11')
    if quick:
        for k in range(5):
            a(f'v_max3_f32 v{s+3*k}, v{s+3*k}, v{s+3*k+1}, v{s+3*k+2}')
        a(f'v_max3_f32 v2, v{s}, v{s+3}, v{s+15}')
        a(f'v_max3_f32 v3, v{s+6}, v{s+9}, v{s+12}')
        a('v_max_f32 v2, v2, v3')
    else:
        rowmax(a, s, 2, 3, 4)
    a('s_mov_b32 exec_lo, 0')
    a(f'v_cvt_pk_bf16_f32 v{q+6}, -v2, 0')
    a('s_mov_b32 exec_lo, -1')
    a(f's_branch {l2}')
    a.label(l1)
    a('s_mov_b32 exec_lo, 0')
    a(f'v_mov_b64 {vr(q+6,2)}, {vr(sav,2)}')
    a('s_mov_b32 exec_lo, -1')
    a.label(l2)
    a('s_nop 1')

def check(a, o, lower, dst=58):
    a(f'v_cmp_nle_f32 s[52:53], v{o+12}, s56')
    if lower:
        a(f'v_cmp_nge_f32 s[54:55], v{o+12}, s57')
        a('s_or_b32 s53, s53, s55')
    a(f's_or_b32 s{dst}, s{dst}, s53')

VGF = 234
def gate_factor(a, sign):
    a(f'v_mul_f32 v{VGF}, {LOG2E if sign > 0 else (LOG2E ^ 0x80000000)}, v{VZ}')
    a(f'v_exp_f32 v{VGF}, v{VGF}')
    a(f'v_mov_b32 v{VTMP+6}, 0')
    a(f'v_mov_b32 v{VTMP+7}, 0')
    a(f'v_add_f32 v{VGF}, 1.0, v{VGF}')

def finalize(a, o, data_s, flag_s):
    a.c('row sums outside 2^-40..2^40 (or NaN) request a rerun with the true maxima; nothing is published then')
    a(f'v_mul_f32 v2, v{o+12}, v{VGF}')
    a(f'v_cmp_nle_f32 s[52:53], v{o+12}, s56')
    a('v_rcp_f32 v2, v2')
    a(f'v_cmp_nge_f32 s[54:55], v{o+12}, s57')
    a('v_mov_b32 v4, v2')
    a('s_or_b32 s58, s53, s55')
    a('s_cmp_lg_u32 s60, 0')
    a('v_permlane32_swap_b32 v2, v4')
    a('s_cselect_b32 s58, 0, s58')
    if PV.get('nofb'): a('s_mov_b32 s58, 0')
    a('s_or_b32 s46, s58, s63')
    p = VTMP
    for h in range(2):
        for r in range(8*h, 8*h + 8):
            a(f'v_mul_f32 v{o+r}, v{o+r}, v4')
        if h == 0:
            a(f's_cselect_b32 s50, 0x40000000, s{data_s}')
            a(f's_cselect_b32 s51, 0x40000000, s{flag_s}')
            a('s_cselect_b32 s63, s63, 1')
        for r in range(4*h, 4*h + 4):
            if r == 6: a('s_mov_b32 exec_hi, 0')
            a(f'v_cvt_pk_bf16_f32 v{p+r}, v{o+2*r}, v{o+2*r+1}')
        if h == 1: a('s_mov_b32 exec_hi, -1')
        a(f'buffer_store_dwordx4 {vr(p+4*h,4)}, v{RA}, {sr(RWS,4)}, s50 offen offset:{1024*h} {SC}')

def finalize_store(a, soff):
    p = VTMP
    a(f'buffer_store_dwordx4 {vr(p,4)}, v{RA}, {sr(RWS,4)}, s{soff} offen {SC}')
    a(f'buffer_store_dwordx4 {vr(p+4,4)}, v{RA}, {sr(RWS,4)}, s{soff} offen offset:1024 {SC}')

def fbflag_publish(a):
    skip = a.new('noflag')
    a('s_cmp_eq_u32 s58, 0')
    a(f's_cbranch_scc1 {skip}')
    a(f'v_mov_b32 v2, {FBFLAG}')
    a(f'ds_write_b32 v2, v{VONE}')
    a.label(skip)

def split3(a, s, sav):
    rowmax(a, s, 2, 3, 4)
    a('v_cvt_pk_bf16_f32 v3, -v2, 0')
    a('v_lshlrev_b32 v4, 16, v3')
    a('v_sub_f32 v2, -v2, v4')
    a('v_cvt_pk_bf16_f32 v5, v2, 0')
    a('v_lshlrev_b32 v4, 16, v5')
    a('v_sub_f32 v2, v2, v4')
    a(f'v_or_b32 v{sav}, v3, v4')
    a(f'v_cvt_pk_bf16_f32 v{sav+1}, v2, 0')

def true_max_B(a):
    a('s_mov_b32 exec_lo, 0')
    a(f'v_mov_b64 {vr(QB+6,2)}, 0')
    a('s_mov_b32 exec_lo, -1')
    for i in range(16):
        a(f'v_mov_b32 v{Sb(1)+i}, {NEGBIG}')
    a('s_mov_b32 s48, 0')
    lp = a.new('fbB')
    a.label(lp)
    a(f'buffer_load_dwordx4 {vr(K0,4)}, v{RA}, {sr(R2,4)}, s48 offen {SC}')
    a(f'buffer_load_dwordx4 {vr(K0+4,4)}, v{RA}, {sr(R2,4)}, s48 offen offset:1024 {SC}')
    a('s_waitcnt vmcnt(0)')
    qk(a, Sb(0), K0, QB, '0', 0)
    qk(a, Sb(0), K0, QB, None, 1)
    a('s_nop 15')
    for i in range(16):
        a(f'v_max_f32 v{Sb(1)+i}, v{Sb(1)+i}, v{Sb(0)+i}')
    a('s_add_u32 s48, s48, 4096')
    a(f's_cmp_lt_u32 s48, {64*4096}')
    a(f's_cbranch_scc1 {lp}')
    split3(a, Sb(1), VSAV)

class VM:
    def __init__(self): self.q = []
    def add(self, tag, n=1): self.q += [tag]*n
    def wait_for(self, *tags):
        last = max((i for i, t in enumerate(self.q) if t in tags), default=-1)
        n = len(self.q) - 1 - last
        self.q = self.q[last+1:]
        return n

class Stream:
    def __init__(self, N, n2, addr):
        self.N, self.n2, self.addr = N, n2, addr
        self.extra = {}
    def tile(self, t):
        return t//2 if t < self.n2 else self.n2//2 + t - self.n2
    def reads(self, t):
        R = [[], [], [], []]
        if self.n2 <= t + 3 < self.N:
            for f in range(4): R[f].append((self.tile(t+3), f))
        elif t + 3 < self.n2 and (t + 3) % 2 == 0:
            for f in range(2): R[PV.get('rs', (2, 3))[f]].append(((t+3)//2, f))
        if 0 <= t + 2 < self.n2 and (t + 2) % 2 == 0:
            for f in range(2): R[PV.get('rs', (2, 3))[f]].append(((t+2)//2, 2 + f))
        return R
    def emit(self, a, j, f):
        base, off = self.addr(j)
        dst = (Kb(j) + 4*f) if f < 2 else (Vb(j) + 4*(f-2))
        a(f'ds_read_b128 {vr(dst,4)}, v{KOF[base] if f < 2 else base} offset:{off + f*1024}')

def pipeline(a, st, qreg, oreg, cin, at_start, at_slot, at_end, name, fill, after_reads):
    N = st.N
    lq = VM()
    first = [x for t in (-3, -2, -1) for r in st.reads(t) for x in r]
    first.sort(key=lambda x: (x[0] - (1.5 if x[1] < 2 else 0), x[1]))
    for j, f in first:
        st.emit(a, j, f); lq.add((j, f))
    after_reads()
    def need(*tags):
        if any(x in lq.q for x in tags):
            a(f's_waitcnt lgkmcnt({lq.wait_for(*tags)})')
    K = lambda t: Kb(st.tile(t))
    V = lambda t: Vb(st.tile(t))
    kt = lambda t: [(st.tile(t), 0), (st.tile(t), 1)] if t < N else []
    vt = lambda t: [(st.tile(t), 2), (st.tile(t), 3)]
    need(*kt(0))
    qk(a, Sb(0), K(0), qreg(0), cin(0), 0)
    qk(a, Sb(0), K(0), qreg(0), None, 1)
    fill()
    need(*kt(1))
    a('s_nop 2')
    def pv(o, v, sreg):
        a(f'v_smfmac_f32_32x32x32_bf16 {vr(o,16)}, {vr(v,4)}, {vr(sreg,8)}, v{IDX}')
    for t in range(N):
        a.c(f'--- {name} period {t}')
        stamp(a, f'p{t}')
        if t in (9, 17) and not XP and common.STAMPS: cstamp(a, 0 if t == 9 else 1)
        at_start(t)
        stamp(a, f'q{t}')
        n0 = len(a.lines)
        at_slot(t)
        slot = a.lines[n0:]
        del a.lines[n0:]
        pre = []
        while slot and slot[0].strip().startswith(('s_add', 's_mov', 's_nop')) and 'exec' not in slot[0]:
            pre.append(slot.pop(0))
        R = st.reads(t)
        if t in PV.get('early', (24, 28)):
            R[2] += R[3]; R[3] = []
        def rd(k):
            for j, f in R[k]:
                st.emit(a, j, f); lq.add((j, f))
            for x in st.extra.get((t, k), []):
                a(x)
                if x.startswith('ds_'): lq.add('x')
        e = lambda i: a(f'v_exp_f32 v{Sb(t)+i}, v{Sb(t)+i}')
        ae = PV.get('altend', 29)
        lag = PV.get('lag', 3) if name == 'b' else 0
        def setp(pos):
            if t < ae:
                k = (t - 1) % 4
                bias = PV.get('bias', 1) if (name == 'b' and t >= 25) else 0
                if pos == (0 if k == 0 else lag): a(f's_setprio {min(3, 3 - k + bias)}')
            elif pos == 0 and t == ae:
                a('s_setprio 0')
        if PV.get('pair'):
            g = PV['pair'] - 1
            if t + 1 < N:
                qk(a, Sb(t+1), K(t+1), qreg(t+1), cin(t+1), 0)
            setp(0)
            rd(0)
            a.lines.extend(pre[:1])
            if t == 0: a('s_nop 3')
            for i in range(0, g): e(i)
            if t + 1 < N:
                qk(a, Sb(t+1), K(t+1), qreg(t+1), None, 1)
            setp(1)
            rd(1)
            a.lines.extend(pre[1:])
            for i in range(g, 8): e(i)
            if t >= 1:
                pv(oreg(t-1), V(t-1), Sb(t-1))
            setp(2)
            if t + 2 == N:
                a('s_waitcnt lgkmcnt(0)'); lq.q = []
            else:
                need(*(kt(t+2) + vt(t)))
            for i in range(8, 8 + g): e(i)
            if t >= 1:
                pv(oreg(t-1), V(t-1)+4, Sb(t-1)+8)
            setp(3)
            rd(2)
            rd(3)
            a.lines.extend(slot)
            for i in range(8 + g, 16): e(i)
            if t == N - 1:
                pv(oreg(t), V(t), Sb(t))
            a('s_nop 3') if t in (26, 27, 28, 29, 33) else None
            at_end(t)
            continue
        if t + 1 < N:
            qk(a, Sb(t+1), K(t+1), qreg(t+1), cin(t+1), 0)
        setp(0)
        rd(0)
        a.lines.extend(pre[:1])
        if t == 0:
            a('s_nop 3')
        for i in range(0, 4): e(i)
        if t + 1 < N:
            qk(a, Sb(t+1), K(t+1), qreg(t+1), None, 1)
        setp(1)
        rd(1)
        a.lines.extend(pre[1:])
        for i in range(4, 8): e(i)
        if t >= 1:
            pv(oreg(t-1), V(t-1)+4, Sb(t-1)+8)
        setp(2)
        if t + 2 == N:
            a('s_waitcnt lgkmcnt(0)'); lq.q = []
        else:
            need(*(kt(t+2) + vt(t)))
        rd(2)
        for i in range(8, 12): e(i)
        pv(oreg(t), V(t), Sb(t))
        setp(3)
        rd(3)
        a.lines.extend(slot)
        for i in range(12, 16): e(i)
        at_end(t)
    a('s_nop 1')
    pv(oreg(N-1), V(N-1)+4, Sb(N-1)+8)

PACK = [0]
def p2_scalars(a):
    a('s_lshl_b32 s39, s35, 12')
    a('s_lshl_b32 s40, s32, 2')
    a('s_add_u32 s40, s40, s35')
    a('s_mov_b32 s60, 0')
    a('s_lshl_b32 s41, s33, 6')
    a('s_add_u32 s41, s41, s40')
    a('s_lshl_b32 s41, s41, 11')
    a(f's_add_u32 s41, s41, {WS_Q}')
    a(f's_add_u32 s42, s41, {16*64*2048}')
    a('s_lshl_b32 s45, s40, 5')
    a('s_add_u32 s45, s45, s33')
    a('s_lshl_b32 s43, s45, 11')
    a(f's_add_u32 s43, s43, {WS_O}')
    a(f's_add_u32 s44, s43, {16*2048}')
    if PACK[0]:
        g = PACK[0]
        a(f's_and_b32 s46, s45, {g-1}')
        a(f's_andn2_b32 s45, s45, {g-1}')
        a('s_lshl_b32 s45, s45, 7')
        a('s_lshl3_add_u32 s45, s46, s45')
    else:
        a('s_lshl_b32 s45, s45, 7')
    a(f's_add_u32 s45, s45, {WS_F2}')
    a(f's_mov_b32 s56, {f32bits(2.0**40)}')
    a(f's_mov_b32 s57, {f32bits(2.0**-40)}')
    a('s_lshr_b32 s38, s2, 3')
    a('s_mul_i32 s36, s38, 37')
    a('s_lshr_b32 s36, s36, 8')
    a('s_mul_i32 s37, s36, 7')
    a('s_sub_u32 s37, s38, s37')
    a('s_and_b32 s46, s2, 1')
    a('s_lshl_b32 s46, s46, 4')
    a('s_add_u32 s36, s36, s46')
    a('s_and_b32 s46, s2, 6')
    a('s_lshl_b32 s46, s46, 1')
    a('s_add_u32 s36, s36, s46')
    a('s_cmp_eq_u32 s35, 3')
    a(f's_cselect_b32 s49, {-16*896 & 0xffffffff}, 0')

def p2_srds(a):
    a('s_lshl_b32 s46, s33, 18')
    a(f's_add_u32 s10, s{P_WS}, s46')
    a(f's_addc_u32 s11, s{P_WS+1}, 0')
    srd(a, R1, 10, 11, 262144)
    a(f's_add_u32 s10, s10, {16*262144}')
    a('s_addc_u32 s11, s11, 0')
    srd(a, R2, 10, 11, 262144)
    mksrd(a, R0, P_BWO, 448*896)

NQ2 = [1]
def p2_vec1(a):
    a('s_min_u32 s62, s39, 10240')
    a(f'v_lshlrev_b32 v{RA}, 4, v1')
    a(f'v_mov_b32 v{IDX}, 0xdddddddd')
    a(f'v_add_u32 v{VD}, s39, v{RA}')
    a(f'v_mov_b32 v{VZERO}, 0')
    a(f'v_mov_b32 v{VONE}, 1')
    a('v_and_b32 v2, 0x23, v1')
    a('v_bfe_u32 v3, v1, 2, 1')
    a('v_lshl_add_u32 v2, v3, 4, v2')
    a('v_bfe_u32 v3, v1, 3, 2')
    a('v_lshl_add_u32 v2, v3, 2, v2')
    a(f'v_lshlrev_b32 v{KOF[RA]}, 4, v2')
    a('s_and_b32 s46, s35, 1')
    a(f's_lshl_b32 s46, s46, {13 if NQ2[0] else 31}')
    a(f's_and_b32 s46, s46, 0x2000')
    a(f'v_add_u32 v{RB0}, s46, v{RA}')
    a(f'v_add_u32 v{KOF[RB0]}, s46, v{KOF[RA]}')

def p2_vec2(a):
    a('v_lshrrev_b32 v3, 3, v1')
    a('s_lshl_b32 s46, s35, 5')
    a('v_add_u32 v3, s46, v3')
    a('v_mul_u32_u24 v3, 896, v3')
    a('v_and_b32 v4, 7, v1')
    a('v_bfe_u32 v5, v1, 4, 1')
    a('v_lshlrev_b32 v5, 2, v5')
    a('v_xor_b32 v4, v4, v5')
    a('v_lshl_add_u32 v3, v4, 4, v3')
    a('s_lshl_b32 s46, s37, 7')
    a(f'v_add_u32 v{VWO}, s46, v3')

P3_D = [32, 48]
P3_OF = [64, 96]
P3_W = [128, 192]
XCH = 114688 - 128
XS = 8192 + 32
FULL = [1]
def p3_setup(a):
    a('s_and_b32 s4, s34, 1')
    a('s_lshr_b32 s5, s34, 1')
    a('s_lshl_b32 s46, s36, 1')
    a('s_add_u32 s46, s46, s4')
    a('s_lshl_b32 s47, s46, 5')
    a('s_xor_b32 s48, s5, 2')
    a('s_lshl_b32 s48, s48, 3')
    a('s_add_u32 s47, s47, s48')
    a('s_lshl_b32 s6, s47, 11')
    a(f's_add_u32 s6, s6, {WS_O}')
    a('s_lshl_b32 s7, s47, 7')
    a(f's_add_u32 s7, s7, {WS_F2}')

SWAPH = [0]
def p3_bases(a, tab):
    a('v_lshrrev_b32 v3, 5, v1')
    a('v_bfe_u32 v4, v1, 2, 2')
    a('v_bfe_u32 v5, v1, 4, 1')
    a('v_and_b32 v6, 3, v1')
    a('v_lshlrev_b32 v6, 3, v6')
    a('v_lshl_add_u32 v6, v5, 5, v6')
    a('v_lshl_add_u32 v6, v4, 7, v6')
    a('v_lshrrev_b32 v4, 1, v4')
    a('v_lshl_add_u32 v6, v4, 6, v6')
    a('s_bitcmp1_b32 s5, 0')
    f, g = (3, 2) if SWAPH[0] else (2, 3)
    a(f's_mov_b32 s12, {tab[0]}')
    a(f's_cselect_b32 s12, {tab[f]}, s12')
    a(f's_mov_b32 s13, {(tab[1] - tab[0]) & 0xffffffff}')
    a(f's_cselect_b32 s13, {(tab[g] - tab[f]) & 0xffffffff}, s13')
    a('v_add_u32 v11, s12, v6')
    a('v_xor_b32 v12, 64, v11')
    a('v_lshl_add_u32 v9, v3, 9, v11')
    a('v_xor_b32 v10, 64, v9')

DENSE = [1]
DSTEP = [(0, 0), (1, 0), (2, 0), (3, 0), (0, 1), (1, 1), (2, 1)]
DLOAD = [(0, 0), (1, 0), (2, 0), (3, 0), (3, 1), (0, 1), (1, 1), (2, 1)]
DROW = [16, 24, 20]
def p3_trs(a, half):
    if half == 1:
        for r in range(4):
            a(f'v_add_u32 v{9+r}, s13, v{9+r}')
    if DENSE[0]:
        T = P3_W[half] + 56
        a(f'v_lshrrev_b32 v{T+6}, 5, v1')
        for hb in range(3):
            a(f'v_mul_u32_u24 v{T+2*hb}, {(84 + DROW[hb] - hb*28 - 24)*128}, v{T+6}')
            a(f'v_add_u32 v{T+2*hb}, v{T+2*hb}, v11')
            a(f'v_xor_b32 v{T+2*hb+1}, 64, v{T+2*hb}')
    for n, (hb, f) in enumerate(DSTEP if DENSE[0] else [(n//2, n % 2) for n in range(8)]):
        a('s_waitcnt lgkmcnt(11)')
        for nt in range(2):
            for e in range(2):
                base = 9 + nt
                if f == 1 and e == 1:
                    base = T + 2*hb + nt if DENSE[0] else 11 + nt
                a(f'ds_read_b64_tr_b16 {vr(P3_W[half]+8*n+4*nt+2*e,2)}, v{base} offset:{(hb*28 + 16*f + 8*e)*128}')

def p3_oloads(a, half):
    for hb, f in (DLOAD if DENSE[0] else [(n//2, n % 2) for n in range(8)]):
        i = 2*hb + f
        a(f'buffer_load_dwordx4 {vr(P3_OF[half]+4*i,4)}, v{RA}, {sr(RWS,4)}, s{52 + 2*half + i//4} offen offset:{(i%4)*1024} {SC}')

def p3_mfmas(a, half, extra, dst=None):
    P3_D = dst or globals()['P3_D']
    def mm(n, i):
        for nt in range(2):
            cin = '0' if (n == 0 and (half == 0 or dst)) else vr(P3_D[nt], 16)
            a(f'v_mfma_f32_32x32x16_bf16 {vr(P3_D[nt],16)}, {vr(P3_W[half]+8*n+4*nt,4)}, {vr(P3_OF[half]+4*i,4)}, {cin}')
    if not DENSE[0]:
        for n in range(8):
            a(f's_waitcnt vmcnt({7 - n + extra})')
            mm(n, n)
        return
    D = P3_OF[half] + 28
    def fix(hb):
        X = P3_OF[half] + 8*hb + 4
        a(f's_waitcnt vmcnt({2 - hb + extra})')
        if hb < 2:
            a(f'v_permlane32_swap_b32 v{X+2}, v{D+2*hb}')
            a(f'v_permlane32_swap_b32 v{X+3}, v{D+2*hb+1}')
        else:
            a('s_mov_b32 exec_lo, 0')
            a(f'v_mov_b32 v{X+2}, v{D}')
            a(f'v_mov_b32 v{X+3}, v{D+1}')
            a('s_mov_b32 exec_lo, -1')
    for n, (hb, f) in enumerate(DSTEP):
        if n < 3: a(f's_waitcnt vmcnt({7 - n + extra})')
        if 3 <= n < 6: fix(n - 3)
        mm(n, 2*hb + f)

def p3_addr(a):
    if SWAPH[0]:
        a('s_bitcmp1_b32 s5, 0')
        a('s_cselect_b32 s46, 8192, 0')
        a('s_cselect_b32 s0, 512, 0')
        a('s_cselect_b32 s1, 0, 512')
        a('s_add_u32 s52, s6, s46')
        a('s_add_u32 s53, s52, 4096')
        a('s_xor_b32 s54, s52, 8192')
        a('s_add_u32 s55, s54, 4096')
    else:
        for k in range(4):
            a(f's_add_u32 s{52+k}, s6, {k*4096}')
    a(f's_add_u32 s10, s{P_WS}, s7')
    a(f's_addc_u32 s11, s{P_WS+1}, 0')
    a('s_lshl_b32 s46, s4, 12')
    a('s_lshl_b32 s47, s5, 10')
    a('s_add_u32 s47, s47, s46')
    a(f's_add_u32 s47, s47, {XCH}')
    a(f'v_add_u32 v3, s47, v{RA}')
    if FULL[0]:
        a('v_lshrrev_b32 v5, 3, v1')
        a('s_lshl_b32 s47, s5, 3')
        a('v_add_u32 v5, s47, v5')
        a('v_bfe_u32 v6, v1, 1, 2')
        a(f'v_mul_u32_u24 v4, {XS}, v6')
        a('v_lshl_add_u32 v4, v5, 4, v4')
        a('v_and_b32 v6, 1, v1')
        a('v_lshl_add_u32 v4, v6, 3, v4')
        a(f's_add_u32 s47, s46, {XCH}')
        a('v_add_u32 v4, s47, v4')
        a('s_lshl1_add_u32 s46, s36, s4')
        a('s_lshl_b32 s46, s46, 5')
        a('v_add_u32 v5, s46, v5')
        a('v_mul_u32_u24 v5, 896, v5')
        a('v_and_b32 v6, 7, v1')
        a('v_lshl_add_u32 v5, v6, 4, v5')
        a('s_lshl_b32 s50, s37, 7')
    else:
        a(f's_mul_i32 s47, s5, {XS}')
        a('s_add_u32 s47, s47, s46')
        a(f's_add_u32 s47, s47, {XCH}')
        a(f'v_add_u32 v4, s47, v{RA}')
        a('v_and_b32 v5, 31, v1')
        a('s_lshl_b32 s46, s36, 1')
        a('s_add_u32 s46, s46, s4')
        a('s_lshl_b32 s46, s46, 5')
        a('v_add_u32 v5, s46, v5')
        a('v_mul_u32_u24 v5, 896, v5')
        a('v_lshrrev_b32 v6, 5, v1')
        a('v_lshl_add_u32 v5, v6, 4, v5')
        a('s_lshl_b32 s46, s37, 7')
        a('s_lshl_b32 s47, s5, 5')
        a('s_add_u32 s50, s46, s47')
    a(f'v_mov_b32 v13, {FBFLAG}')

def lds_post(a, off):
    a('s_lshl_b32 s46, s35, 2')
    a(f's_add_u32 s46, s46, {FBFLAG + off}')
    a('v_mov_b32 v2, s46')
    a('v_mov_b32 v7, 1')
    a('ds_write_b32 v2, v7')

def lds_wait(a, off, tmp, name):
    lp = a.new(name)
    a(f'v_mov_b32 v2, {FBFLAG + off}')
    a.label(lp)
    a(f'ds_read_b128 {vr(tmp,4)}, v2')
    a('s_waitcnt lgkmcnt(0)')
    a(f'v_and_b32 v{tmp}, v{tmp}, v{tmp+1}')
    a(f'v_and_b32 v{tmp+2}, v{tmp+2}, v{tmp+3}')
    a(f'v_and_b32 v{tmp}, v{tmp}, v{tmp+2}')
    a(f'v_cmp_eq_u32 vcc, 0, v{tmp}')
    a(f's_cbranch_vccnz {lp}')

SP = [64, 66, 68, 70, 24, 26, 96, 98]
LO, HI = [0, 1, 2, 3], [4, 5, 6, 7]
def units(ks):
    if PACK[0] == 0: return [[k] for k in ks]
    out = []
    for k in ks:
        lim = min(PACK[0], 4 if k < 4 else 2)
        if out and len(out[-1]) < lim and out[-1][-1] + 1 == k and (k % lim): out[-1].append(k)
        else: out.append([k])
    return out
def spoll_issue(a, ks):
    for u in units(ks):
        g = PACK[0] or 1
        off = (u[0]//g)*g*128 + (u[0] % g)*8
        a(f's_load_dwordx{2*len(u)} {sr(SP[u[0]],2*len(u))}, s[10:11], {off} glc')

def spoll_spin(a, ks, name, also=()):
    ok, lp = a.new(name + '_ok'), a.new(name + '_lp')
    a(f's_mov_b32 s61, {SPIN_LIMIT}')
    a('s_waitcnt lgkmcnt(0)')
    a.label(lp)
    a('s_mov_b32 s58, 0')
    for u in units(ks) + units(also):
        sk, do = a.new(name + '_k'), a.new(name + '_d')
        for k in u:
            a(f's_cmp_eq_u64 {sr(SP[k],2)}, {sr(NONCE,2)}')
            a(f's_cbranch_scc1 {sk}' if k == u[-1] else f's_cbranch_scc0 {do}')
        a.label(do)
        spoll_issue(a, u)
        if u[0] in ks: a('s_mov_b32 s58, 1')
        a.label(sk)
    a('s_cmp_eq_u32 s58, 0')
    a(f's_cbranch_scc1 {ok}')
    a('ds_read_b32 v6, v13')
    if SLEEP2: a(f's_sleep {SLEEP2}')
    a('s_waitcnt lgkmcnt(0)')
    a('v_cmp_ne_u32 vcc, 0, v6')
    a('s_cbranch_vccnz L_p3_x')
    a('s_sub_u32 s61, s61, 1')
    a(f's_cbranch_scc0 {lp}')
    a.label(ok)

def spoll_either(a, name, hi_label):
    ok, lp = a.new(name + '_ok'), a.new(name + '_lp')
    a(f's_mov_b32 s61, {SPIN_LIMIT}')
    a('s_waitcnt lgkmcnt(0)')
    a.label(lp)
    a('s_mov_b32 s58, 0')
    for k in LO + HI:
        sk = a.new(name + '_k')
        a(f's_cmp_eq_u64 {sr(SP[k],2)}, {sr(NONCE,2)}')
        a(f's_cbranch_scc1 {sk}')
        spoll_issue(a, [k])
        a(f's_bitset1_b32 s58, {k//4}')
        a.label(sk)
    a('s_bitcmp0_b32 s58, 0')
    a(f's_cbranch_scc1 {ok}')
    a('s_bitcmp0_b32 s58, 1')
    a(f's_cbranch_scc1 {hi_label}')
    a('ds_read_b32 v6, v13')
    if SLEEP2: a(f's_sleep {SLEEP2}')
    a('s_waitcnt lgkmcnt(0)')
    a('v_cmp_ne_u32 vcc, 0, v6')
    a('s_cbranch_vccnz L_p3_x')
    a('s_sub_u32 s61, s61, 1')
    a(f's_cbranch_scc0 {lp}')
    a.label(ok)

def p3_shared(a, opt):
    a.c('===== phase 3: wait for the head outputs, project, exchange, store =====')
    a.label('L_p3')
    a('s_cmp_ge_u32 s38, 28')
    a('s_cbranch_scc1 L_p3_x')
    if opt.get('also', 1):
        if not opt.get('adapt', 1):
            for k in HI:
                a(f's_mov_b32 s{SP[k]}, 0')
        if opt.get('adapt', 1):
            a('s_waitcnt lgkmcnt(0)')
            spoll_issue(a, HI)
            if opt.get('adapt', 1) == 2:
                a('s_cmp_lt_u32 s34, 4')
                a('s_cbranch_scc1 L_p3_notyet')
            for k in LO:
                a(f's_cmp_eq_u64 {sr(SP[k],2)}, {sr(NONCE,2)}')
                a('s_cbranch_scc0 L_p3_notyet')
            stamp(a, 'f2b')
            p3_oloads(a, 0)
            p3_trs(a, 1)
            a('s_branch L_p3_hi')
            a.label('L_p3_notyet')
        if opt.get('trs1first', 1): p3_trs(a, 1)
        if opt.get('comm', 0):
            spoll_either(a, 'f2e', 'L_p3_hfirst')
        else:
            spoll_spin(a, LO, 'f2b', HI)
        stamp(a, 'f2b')
        p3_oloads(a, 0)
        if not opt.get('trs1first', 1): p3_trs(a, 1)
        a.label('L_p3_hi')
    else:
        spoll_spin(a, LO, 'f2b')
        stamp(a, 'f2b')
        spoll_issue(a, HI)
        p3_oloads(a, 0)
        p3_trs(a, 1)
    spoll_spin(a, HI, 'f2a')
    a.label('L_p3_l1')
    stamp(a, 'f2a')
    p3_oloads(a, 1)
    def products(first, tag):
        a('s_cmp_lt_u32 s34, 4')
        a(f's_cbranch_scc1 L_p3_m{tag}')
        lds_wait(a, 32, 32, 'rdok')
        a.label(f'L_p3_m{tag}')
        a('s_setprio 0')
        if opt.get('comm', 0):
            D2 = [P3_W[first], P3_W[first] + 16]
            p3_mfmas(a, first, 8, P3_D)
            p3_mfmas(a, 1 - first, 0, D2)
        else:
            p3_mfmas(a, 0, 8)
            stamp(a, 'mfB')
            p3_mfmas(a, 1, 0)
        stamp(a, 'mfA')
        a('s_cmp_ge_u32 s34, 4')
        a(f's_cbranch_scc1 L_p3_w{tag}')
        lds_wait(a, 32, 64, 'rdok')
        a.label(f'L_p3_w{tag}')
        a('s_nop 8')
        if opt.get('comm', 0):
            for r in range(0, 32, 2):
                a(f'v_pk_add_f32 {vr(P3_D[0]+r,2)}, {vr(P3_D[0]+r,2)}, {vr(D2[0]+r,2)}')
    products(0, '')
    a.label('L_p3_pack')
    for d in range(4):
        for r in range(4):
            a(f'v_cvt_pk_bf16_f32 v{96+4*d+r}, v{32+8*d+2*r}, v{32+8*d+2*r+1}')
        a(f'ds_write_b128 v3, {vr(96+4*d,4)} offset:{d*XS}')
    a.label('L_p3_x')
    a('s_waitcnt lgkmcnt(0)')
    mksrd(a, R1, P_OUT, 2048*896)
    a('s_barrier')
    stamp(a, 'X')
    a('ds_read_b32 v6, v13')
    for s in range(4):
        if FULL[0]:
            a(f'ds_read2st64_b64 {vr(128 + 4*s, 4)}, v4 offset0:{2*s} offset1:{2*s+1}')
        else:
            a(f'ds_read_b128 {vr(128 + 4*s, 4)}, v4 offset:{s*1024}')
    a('s_mov_b32 s47, 0xffff0000')
    a('s_waitcnt lgkmcnt(3)')
    a('v_cmp_ne_u32 vcc, 0, v6')
    a('s_cmp_ge_u32 s38, 28')
    a('s_cbranch_vccnz L_p3_fb')
    a('s_cbranch_scc1 L_exit')
    for s in range(2 if opt.get('x_two') else 4):
        if s: a(f's_waitcnt lgkmcnt({3 - s})')
        for r in range(4):
            a(f'v_lshlrev_b32 v{96+8*s+2*r}, 16, v{128+4*s+r}')
            a(f'v_and_b32 v{96+8*s+2*r+1}, s47, v{128+4*s+r}')
        if s % 2 == 1:
            for r in range(0, 8, 2):
                a(f'v_pk_add_f32 {vr(96+8*(s-1)+r,2)}, {vr(96+8*(s-1)+r,2)}, {vr(96+8*s+r,2)}')
    for r in range(0, 8, 2):
        a(f'v_pk_add_f32 {vr(96+r,2)}, {vr(96+r,2)}, {vr(112+r,2)}')
    for r in range(4):
        a(f'v_cvt_pk_bf16_f32 v{28+r}, v{96+2*r}, v{96+2*r+1}')
    if not FULL[0]:
        a('s_nop 1')
        a('v_permlane32_swap_b32 v28, v30')
        a('v_permlane32_swap_b32 v29, v31')
    a(f'buffer_store_dwordx4 v[28:31], v5, {sr(R1,4)}, s50 offen {opt.get("outfl", "sc1")}')
    stamp(a, 'st')
    dump_stamps(a, 0)
    a('s_endpgm')

    if opt.get('comm', 0):
        a.label('L_p3_hfirst')
        stamp(a, 'f2b')
        p3_oloads(a, 1)
        spoll_spin(a, LO, 'f2l')
        stamp(a, 'f2a')
        p3_oloads(a, 0)
        products(1, 'h')
        a('s_branch L_p3_pack')

    a.label('L_p3_fb')
    a('s_setprio 0')
    a('s_waitcnt vmcnt(0) lgkmcnt(0)')
    a('s_mov_b32 s60, 1')
    p2_srds(a)
    p2_vec1(a)
    a('s_cmp_lt_u32 s34, 4')
    a('s_cbranch_scc1 L_a_fallback')
    a('s_branch L_b_fallback')

def publish_decision(a, o, data_s, flag_s):
    a('s_mov_b32 s58, 0')
    check(a, o, True)
    a('s_cmp_lg_u32 s60, 0')
    a('s_cselect_b32 s58, 0, s58')
    if PV.get('nofb'): a('s_mov_b32 s58, 0')
    a('s_or_b32 s46, s58, s63')
    a(f's_cselect_b32 s50, 0x40000000, s{data_s}')
    a(f's_cselect_b32 s51, 0x40000000, s{flag_s}')
    a('s_cselect_b32 s63, s63, 1')

VPB = 235
def b_setup(a, part=3):
    if part & 1: b_setup1(a)
    if part & 2: b_setup2(a, part == 3)

def b_setup1(a):
    a('s_add_u32 s46, s33, 16')
    a('s_mul_i32 s46, s46, 43')
    a('s_lshr_b32 s46, s46, 7')
    a('s_add_u32 s47, s33, 32')
    a('s_mul_i32 s47, s47, 43')
    a('s_lshr_b32 s47, s47, 7')
    a('s_mul_i32 s48, s33, 43')
    a('s_lshr_b32 s48, s48, 7')
    a('s_lshl_b32 s46, s46, 6')
    a('s_lshl_b32 s47, s47, 6')
    a('s_lshl_b32 s48, s48, 6')
    a('s_add_u32 s48, s48, s40')
    a('v_and_b32 v2, 15, v1')
    a('v_lshl_add_u32 v2, v2, 2, s35')
    a('v_add_u32 v3, s46, v2')
    a('v_add_u32 v4, s47, v2')
    a('v_mov_b32 v5, s48')
    a('v_cmp_gt_u32 vcc, 16, v1')
    a('v_cmp_gt_u32 s[12:13], 32, v1')
    a('s_nop 0')
    a('v_cndmask_b32 v3, v4, v3, vcc')
    a(f'v_cndmask_b32 v{VPB}, v5, v3, s[12:13]')
    a(f'v_lshlrev_b32 v{VPB}, 7, v{VPB}')
    a(f'v_add_u32 v{VPB}, {WS_F1 + 131072}, v{VPB}')
    a('v_and_b32 v2, 3, v1')
    a('v_min_u32 v2, 2, v2')
    a('v_sub_u32 v2, s32, v2')
    a('v_max_i32 v2, 0, v2')
    a('s_sub_u32 s50, 3, s35')
    a('v_lshl_add_u32 v2, v2, 2, s50')
    a('v_add_u32 v3, s46, v2')
    a('v_add_u32 v4, s47, v2')
    a('v_cmp_gt_u32 vcc, 4, v1')
    a('v_cmp_gt_u32 s[12:13], 8, v1')
    a('s_nop 0')
    a('v_cndmask_b32 v3, v4, v3, vcc')
    a(f'v_cndmask_b32 v{VPA}, v5, v3, s[12:13]')
    a(f'v_lshlrev_b32 v{VPA}, 7, v{VPA}')
    a(f'v_add_u32 v{VPA}, {WS_F1}, v{VPA}')
    a('s_add_u32 s47, s39, 65536')
    a('s_lshl_b32 s46, s32, 2')
    a('s_add_u32 s46, s46, 3')
    a('s_sub_u32 s46, s46, s35')
    a('s_lshl_b32 s46, s46, 12')
    a(f'v_add_u32 v{VA0}, s46, v{RA}')
    a(f'v_subrev_u32 v{VA0+1}, 16384, v{VA0}')
    a(f'v_subrev_u32 v{VA0+2}, 32768, v{VA0}')
    a('s_sub_u32 s46, 65536 + 32768 + 3*4096, s39')
    a(f'v_add_u32 v{RBA}, s46, v{RA}')
    a(f'v_add_u32 v{KOF[RBA]}, s46, v{KOF[RA]}')
    for r in (RB1, RB0):
        a(f'v_add_u32 v{r}, {131072 if r == RB1 else 65536}, v{RB0}')
        a(f'v_add_u32 v{KOF[r]}, {131072 if r == RB1 else 65536}, v{KOF[RB0]}')

def b_setup2(a, edge=True):
    a('v_and_b32 v3, 31, v1')
    a('v_lshrrev_b32 v2, 5, v1')
    a('v_lshlrev_b32 v2, 4, v2')
    a('v_sub_u32 v3, v3, v2')
    a(f'v_mov_b32 v2, {NEGBIG}')
    for r in range(0, 16, 2):
        for u in range(2):
            cr = r + u
            a(f'v_cmp_le_i32 s[{10+2*u}:{11+2*u}], {cr}, v3')
        a('s_nop 0')
        for u in range(2):
            a(f'v_cndmask_b32 v{CD+r+u}, v2, 0, s[{10+2*u}:{11+2*u}]')
            if edge: a(f'v_cndmask_b32 v{CE+r+u}, 0, v2, s[{10+2*u}:{11+2*u}]')

def gen(a, label, opt):
    LSTEP = opt.get('lstep', 9)
    LATE = sum(1 << t for t in list(range(LSTEP, 9)) + list(range(9 + LSTEP, 16))) if LSTEP < 9 else 0
    if opt.get('pg', 1): a('.p2align 12')
    kernel_header(a, label)
    a('s_cmp_ge_u32 s2, 256')
    a('s_cbranch_scc1 L_done')
    stamp_init(a)
    a('s_load_dwordx16 s[4:19], s[0:1], 0')
    a('s_load_dwordx4 s[20:23], s[0:1], 64')
    a('v_lshrrev_b32 v2, 6, v0')
    a('v_and_b32 v1, 63, v0')
    a('v_readfirstlane_b32 s34, v2')
    m48 = opt.get('m48', 0)
    if m48:
        a('s_bfe_u32 s38, s2, 0x20003')
        a('s_and_b32 s32, s2, 3')
        a('s_lshl2_add_u32 s32, s32, s38')
        a('s_lshr_b32 s40, s2, 5')
        a('s_bfe_u32 s33, s2, 0x10002')
        a('s_lshl3_add_u32 s33, s33, s40')
    else:
        a('s_bfe_u32 s40, s2, 0x30003')
        a('s_and_b32 s32, s2, 1')
        a('s_lshl3_add_u32 s32, s32, s40')
        a('s_lshr_b32 s38, s2, 6')
    if opt.get('rot', 2) == 2:
        a('s_lshl1_add_u32 s63, s38, s40')
        a('s_sub_u32 s40, s63, 7')
        a('s_cselect_b32 s63, s63, s40')
    elif opt.get('rot') in (3, 4):
        a('s_lshl1_add_u32 s63, s38, s40')
        a(f's_bfe_u32 s40, s2, {0x10001 if opt["rot"] == 3 else 0x20001}')
        a('s_add_u32 s63, s63, s40')
        for k in range(2):
            a('s_sub_u32 s40, s63, 7')
            a('s_cselect_b32 s63, s63, s40')
    elif opt.get('rot') == 5:
        a('s_add_u32 s63, s38, s40')
        a('s_and_b32 s63, s63, 3')
        a('s_bfe_u32 s40, s2, 0x10001')
        a('s_xor_b32 s40, s40, s2')
        a('s_and_b32 s40, s40, 1')
        a('s_lshl1_add_u32 s63, s63, s40')
        a('s_sub_u32 s40, s63, 7')
        a('s_cselect_b32 s63, s63, s40')
    else:
        a('s_add_u32 s63, s38, s40')
        a('s_and_b32 s63, s63, 3')
        a('s_lshl_b32 s63, s63, 1')
    a('s_and_b32 s35, s34, 3')
    if not m48:
        a('s_bfe_u32 s33, s2, 0x20001')
        a('s_lshl2_add_u32 s33, s33, s38')
    def columns():
        a('s_xor_b32 s62, s33, 1')
        a('s_lshr_b32 s40, s33, 1')
        a('s_cmp_eq_u32 s40, 2')
        a('s_cselect_b32 s62, s33, s62')
        a('s_cmp_eq_u32 s40, 5')
        a('s_cselect_b32 s62, s33, s62')
    compact = opt.get('compact', 0)
    def cons_entry():
        if opt.get('codewarm', 1):
            a('s_getpc_b64 s[46:47]')
            a.label('L_pc')
            a('s_lshr_b32 s48, s2, 3')
            a('s_lshl2_add_u32 s48, s48, s34')
            a(f's_mul_i32 s48, s48, {opt.get("cwn", 5)}')
            a(f'v_min_u32 v2, {opt.get("cwn", 5) - 1}, v1')
            a('v_add_lshl_u32 v2, s48, v2, 7')
            a('v_min_u32 v2, L_done - L_pc, v2')
            a('global_load_dword v78, v2, s[46:47]')
        dispatch(a, 33, 'P1B')
    a('s_cmp_lt_u32 s34, 4')
    if compact:
        a('s_cbranch_scc1 L_cons')
    else:
        a('s_cbranch_scc0 L_loader')
        cons_entry()
        a.label('L_loader')

    XA = [240, 241, 242, 243]
    WA = [244, 245, 246]
    a.c('===== waves 4-7: phase-1 loader =====')
    a('s_setprio 3')
    a('v_lshrrev_b32 v3, 3, v1')
    a('v_lshrrev_b32 v4, 4, v1')
    a('v_and_b32 v5, 7, v1')
    a('v_xor_b32 v5, v5, v4')
    a('s_lshl2_add_u32 s40, s32, s35')
    a('v_lshl_add_u32 v3, s40, 5, v3')
    a('v_mul_u32_u24 v3, 896, v3')
    a(f'v_lshl_add_u32 v{XA[0]}, v5, 4, v3')
    a(f'v_xor_b32 v{XA[1]}, 64, v{XA[0]}')
    a(f'v_add_u32 v{XA[1]}, {8*896 - 1024}, v{XA[1]}')
    a(f'v_add_u32 v{XA[2]}, {16*896 - 2048}, v{XA[0]}')
    a(f'v_add_u32 v{XA[3]}, {16*896 - 2048}, v{XA[1]}')
    def wcalc():
        window(a, 33, 54, 37, 40)
        a('s_mul_i32 s40, s35, 192')
        a('s_movk_i32 s41, 2688')
        a('s_movk_i32 s42, -176')
        a('v_add_u32 v3, s40, v1')
        a('v_lshlrev_b32 v5, 4, v3')
        a('v_mul_u32_u24 v3, 745, v3')
        for i in range(3):
            if i:
                a(f'v_add_u32 v3, {745*64}, v3')
            a('v_lshrrev_b32 v4, 13, v3')
            a('v_and_b32 v6, 7, v4')
            a('v_mul_u32_u24 v6, 9, v6')
            a('v_lshrrev_b32 v6, 1, v6')
            a('v_bfi_b32 v6, 7, v6, v4')
            a('v_mad_i32_i24 v4, v4, s42, v5')
            a(f'v_mad_u32_u24 v{WA[i]}, v6, s41, v4')
        a('s_cmp_eq_u32 s35, 3')
        a('s_cselect_b32 s40, 0x40000000, 0')
        a(f'v_add_u32 v{WA[2]}, s40, v{WA[2]}')
        a(f's_mul_i32 s53, s63, {64*2688}')
        a('s_add_u32 s53, s54, s53')
    xfirst = opt.get('xfirst', 0)
    if not xfirst: wcalc()
    a('s_lshl_b32 s58, s35, 12')
    a('s_mul_i32 s59, s35, 3072')
    a('s_lshl_b32 s52, s63, 7')
    a(f's_mov_b32 s{R0+2}, {2048*896}')
    a(f's_mov_b32 s{R0+3}, 0x20000')
    a(f's_mov_b32 s{R1+2}, {448*2688}')
    a(f's_mov_b32 s{R1+3}, s{R0+3}')
    def gate_load():
        a('s_cmp_lg_u32 s35, 3')
        a('s_cbranch_scc1 L_nogate')
        a('v_lshl_add_u32 v2, v1, 4, s52')
        a('v_subrev_u32 v4, 896, v2')
        a('v_min_u32 v2, v2, v4')
        a(f's_mov_b32 m0, {GATE}')
        mksrd(a, R3, P_G, 896)
        a(f'buffer_load_dwordx4 v2, {sr(R3,4)}, 0 offen lds')
        a.label('L_nogate')
    a('s_mov_b32 m0, s58')
    stamp(a, 'pre')
    a('s_waitcnt lgkmcnt(0)')
    stamp(a, 'karg')
    a(f's_mov_b64 {sr(R0,2)}, {sr(P_X,2)}')
    vm = VM()
    def loads_x(g):
        for i in range(4):
            a(f'buffer_load_dwordx4 v{XA[i]}, {sr(R0,4)}, s52 offen offset:{i*1024} {opt.get("xfl", "")} lds')
        vm.add(g, 4)
    def loads_w(g):
        for i in range(3):
            a(f'buffer_load_dwordx4 v{WA[i]}, {sr(R1 if g < 7 else R2,4)}, s53 offen offset:{i*1024} {opt.get("wfl", "")} lds')
        vm.add(g, 3)
    def issue(g, x=True):
        a(f's_add_u32 m0, s59, {wslot(g)}')
        a(f's_add_u32 s3, s16, {g % 7}')
        a('s_sub_u32 s53, s3, 7')
        a('s_cselect_b32 s3, s3, s53')
        a(f's_mul_i32 s53, s3, {64*2688}')
        a(f's_add_u32 s53, s{54 if g < 7 else 55}, s53')
        loads_w(g)
        if g < 7 and x:
            a(f's_add_u32 m0, s58, {XRING + (g % 4)*16384}')
            a('s_lshl_b32 s52, s3, 7')
            loads_x(g)
    loads_x(0)
    if xfirst == 2:
        a('s_add_u32 s3, s63, 1')
        a('s_sub_u32 s53, s3, 7')
        a('s_cselect_b32 s3, s3, s53')
        a(f's_add_u32 m0, s58, {XRING + 16384}')
        a('s_lshl_b32 s52, s3, 7')
        loads_x(0)
    if xfirst: wcalc()
    a(f's_add_u32 m0, s59, {wslot(0)}')
    a(f's_mov_b64 {sr(R1,2)}, {sr(P_BW,2)}')
    loads_w(0)
    gate_load()
    a('s_mov_b32 s16, s63')
    stamp(a, 'i0')
    issue(1, xfirst != 2)
    if not opt.get('lprio', 0): a('s_setprio 0')
    if compact:
        a('s_branch L_over')
        a.label('L_cons')
        cons_entry()
        a.label('L_over')
    stamp(a, 'i1')
    def slice0():
        columns()
        window(a, 62, 55, 39, 40)
        mksrd(a, R2, P_AW, 448*2688)
        mksrd(a, RWS, P_WS, WS_END)
        mksrd(a, R3, P_DBG, 256)
        p2_scalars(a)
    def slice1():
        p3_setup(a)
        p2_vec1(a)
        p2_vec2(a)
        a('s_mov_b32 s63, 0')
    def zero_b():
        for o in (OB, OA) + ((CE,) if NQ2[0] else ()):
            if opt.get('zearly', 0.5):
                for r in range(16): a(f'v_mov_b32 v{o+r}, 0')
            else:
                zero16(a, o)
    sl = opt.get('lsl', [0.5, 6.5, 6.5, 10.5])
    slices = {}
    for g, f in zip(sl, [slice0, slice1, lambda: b_setup(a, 1), lambda: b_setup(a, 2)]):
        slices.setdefault(g, []).append(f)
    if opt.get('zearly', 0.5): slices.setdefault(opt.get('zearly', 0.5), []).append(zero_b)
    sched = opt.get('sched', {0: [2], 1: [3], 2: [4], 3: [5], 4: [6], 5: [7, 8], 6: [9], 7: [10, 11, 12, 13]})
    need = opt.get('need', {7: [7, 8, 9], 10: [10, 11], 12: [12, 13, 'go', 'p0']})
    for g in P1_BARS:
        n = vm.wait_for(*need.get(g, [g]))
        if g == P1_BARS[-1] and opt.get('pgb', 0):
            a('s_branch L_pgb')
            a('.p2align 12')
            a.label('L_pgb')
        a(f's_waitcnt vmcnt({n})')
        if g == P1_BARS[-1]:
            break
        stamp(a, f'g{g}')
        if XP and g in (2, 6): cstamp(a, 0 if g == 2 else 1)
        a('s_barrier')
        for f in slices.get(g, []): f()
        if g == opt.get('spf_g', -1):
            st = opt.get('spf_st', 128)
            a('s_mul_i32 s0, s2, 37')
            a('s_mul_i32 s1, s35, 9')
            a('s_add_u32 s0, s0, s1')
            a('s_min_u32 s0, s0, 9398')
            a('s_lshl_b32 s0, s0, 7')
            for k in range(10*128//st):
                a(f's_load_dword s1, {sr(P_AW,2)}, s0 offset:{k*st}')
        for c in sched.get(g, []):
            issue(c)
        for f in slices.get(g + 0.5, []): f()
        if g == 10 and opt.get('early0', 0):
            a(f'v_mov_b64 {vr(VPOLL,2)}, 0')
            if opt['early0'] > 1:
                a(f's_waitcnt vmcnt({vm.wait_for(12)})')
            a('s_mov_b32 exec_lo, 0x02010201')
            a('s_mov_b32 exec_hi, 1')
            a(f'buffer_load_dwordx2 {vr(VPOLL,2)}, v{VPB}, {sr(RWS,4)}, 0 offen {SC}')
            a('s_mov_b64 exec, -1')
            vm.add('e0')
        if g == 3:
            a(f'buffer_load_dwordx2 {vr(VTAG,2)}, off, {sr(R3,4)}, 0 {SC}')
            vm.add('go')
    get_nonce(a, VTAG, 'go_b')
    a('s_waitcnt lgkmcnt(0)')
    p2_srds(a)
    if opt.get('bprio', 1): a('s_setprio 3')
    stamp(a, 'g12')
    a('s_barrier')
    stamp(a, 'pb')
    staged = opt.get('staged', 1)
    m0 = 0x02010201 if opt.get('late_s1', 2) else 0x06030603
    if opt.get('narrow', 1):
        if opt.get('early0', 0):
            a('s_waitcnt vmcnt(0)')
        else:
            a(f'v_mov_b64 {vr(VPOLL,2)}, 0')
        a(f's_mov_b32 exec_lo, {m0}')
        a('s_mov_b32 exec_hi, 1')
        spin_mask(a, VPOLL, VPB, '0', 'f1b', opt.get('sleep1', 1), bool(opt.get('early0', 0)))
    else:
        spin_mask(a, VPOLL, VPB, '0', 'f1b', opt.get('sleep1', 1), False, m0 if staged else None)
    stamp(a, 'f1b')

    a.c('===== waves 4-7: attention stream b (28 full-branch tiles, then the sliding window) =====')
    a.label('L_b_restart')
    vm = VM()
    a(f'buffer_load_dwordx4 {vr(QB,4)}, v{RA}, {sr(RWS,4)}, s42 offen {SC}')
    a(f'buffer_load_dwordx4 {vr(QB+4,4)}, v{RA}, {sr(RWS,4)}, s42 offen offset:1024 {SC}')
    bsl = {s: s % 5 for s in range(7)}
    bkt = {s: 36 + 4*s for s in range(7)}
    dma_a = lambda s: dma_tile(R2, 39, (s % 4)*16384, 4*s*4096)
    dma_b = lambda s: dma_tile(R2, 47, bsl[s]*16384, bkt[s]*4096)
    late = opt.get('late_s1', 2)
    if opt.get('kdirect'):
        a(f'buffer_load_dwordx4 {vr(Kb(3),4)}, v{VD}, {sr(R2,4)}, 0 offen {SC}')
        a(f'buffer_load_dwordx4 {vr(Kb(3)+4,4)}, v{VD}, {sr(R2,4)}, 0 offen offset:1024 {SC}')
        vm.add('k0', 2)
    for k, g in enumerate(dma_a(0) + dma_b(0)):
        for x in g: a(x)
        vm.add('k0' if (k < 2 and not opt.get('kdirect')) else 's0')
    if late == 0:
        for g in dma_a(1) + dma_b(1):
            for x in g: a(x)
        vm.add('s1', 8)
    em = (~(LATE | LATE << 16)) & 0xffffffff
    if opt.get('narrow', 1):
        a(f's_mov_b32 exec_lo, {em}')
        a(f'buffer_load_dwordx2 {vr(VPOLL,2)}, v{VPB}, {sr(RWS,4)}, 0 offen {SC}')
        a('s_mov_b32 exec_lo, -1')
        vm.add('s0')
    nq2 = NQ2[0]
    QB2b, OB2b = VTMP, CE
    if not opt.get('zearly', 0.5): zero_b()
    a(f's_waitcnt vmcnt({vm.wait_for("k0")})')
    if not opt.get('x_nob'):
        if not opt.get('kdirect'):
            a(f'ds_read_b128 {vr(Kb(3),4)}, v{VD}')
            a(f'ds_read_b128 {vr(Kb(3)+4,4)}, v{VD} offset:1024')
            a('s_waitcnt lgkmcnt(0)')
        set_shift(a, Sb(0), QB, VSAV, '0', Kb(3), opt.get('quick', 0))
    a(f'ds_write_b128 v{VD}, {vr(QB,4)} offset:{QBUF}')
    a(f'ds_write_b128 v{VD}, {vr(QB+4,4)} offset:{QBUF+1024}')
    stamp(a, 'shift')
    a(f's_waitcnt vmcnt({vm.wait_for("s0")}) lgkmcnt(0)')
    if staged:
        a(f's_mov_b32 exec_lo, {em}')
        spin_mask(a, VPOLL, VPB, '0', 'f1c', 1, True)
    if late == 2:
        for g in dma_a(1) + dma_b(1):
            for x in g: a(x)
        vm.add('s1', 8)
    def late_poll():
        a(f's_mov_b32 exec_lo, {~em & 0xffffffff}')
        a('s_mov_b32 exec_hi, 0')
        a(f'buffer_load_dwordx2 {vr(VPOLL,2)}, v{VPB}, {sr(RWS,4)}, 0 offen {SC}')
        a('s_mov_b64 exec, -1')
        vm.add('pl')
    if LATE and LSTEP == 3:
        late_poll()
    if opt.get('x_delay'): a(f's_sleep {opt["x_delay"]}')
    stamp(a, 'preB0')
    a('s_barrier')
    stamp(a, 'B0')
    n2b = 28 if nq2 else 0
    def addr_b(j):
        nb = 14 if nq2 else 28
        if j >= nb:
            return (RBA, (j - nb)*4096)
        s, r = (j//2, j % 2) if nq2 else (j//4, j % 4)
        off = bsl[s]*16384 + r*4096
        return (RB1, off - 65536) if bsl[s] == 4 else (RB0, off)
    stb = Stream(37, n2b, addr_b)
    xm = opt.get('xm', 1)
    if xm == 1 and nq2:
        for i, k in enumerate(opt.get('xw', (0, 0, 1, 2))):
            stb.extra.setdefault((28, k), []).append(f'ds_write_b128 v7, {vr(OB2b+4*i,4)} offset:{i*1024}')
    if nq2:
        a(f'v_xor_b32 v2, 4096, v{VD}')
        a(f'ds_read_b128 {vr(QB2b,4)}, v2 offset:{QBUF}')
        a(f'ds_read_b128 {vr(QB2b+4,4)}, v2 offset:{QBUF+1024}')
    def zread():
        a('v_and_b32 v3, 31, v1')
        a('s_lshl_b32 s46, s35, 7')
        a(f's_add_u32 s46, s46, {ZBUF}')
        a('v_lshl_add_u32 v3, v3, 2, s46')
        a(f'ds_read_b32 v{VZ}, v3')
    def fill_b():
        if late == 1:
            for g in dma_b(1):
                for x in g: a(x)
            vm.add('s1', 4)
        if opt.get('s2fill', 0):
            for g in dma_b(2):
                for x in g: a(x)
            vm.add('s2', 4)
        else:
            zread()
            a('s_nop 0')
            pend.extend(('s2', g) for g in dma_b(2))
    pend = []
    TB9 = opt.get('tb9', 31)
    TB8 = opt.get('tb8', 29)
    bar_b = {1: 1, 5: 2, 9: 3, 13: 4, 17: 5, 21: 6, 25: 7, TB8: 8, TB9: 9}
    def pairs(tag, d):
        return [(tag, d[2*i] + d[2*i+1]) for i in range(len(d)//2)]
    def comb_write():
        a(f'v_add_u32 v7, {COMB}, v{VD}')
        a('s_nop 1')
        for i in range(4):
            a(f'ds_write_b128 v7, {vr(OB+4*i,4)} offset:{i*1024}')
        if opt.get('cflag', 1):
            lds_post(a, 48)
    def b_start(t):
        if t in bar_b:
            s = bar_b[t]
            tags = [f's{s}'] + (['pa'] if s == 5 else []) + (['pl'] if s == LSTEP - 2 else [])
            a(f's_waitcnt vmcnt({vm.wait_for(*tags)})' + {7: ' lgkmcnt(0)', 8: f' lgkmcnt({4 if TB8 == 30 else 0})'}.get(s, ''))
            if LATE and s == LSTEP - 2:
                spin_mask(a, VPOLL, VPB, '0', 'f1l', 2, True)
            if s == 5:
                spin_mask(a, VPOLL, VPA, '0', 'f1a', 2, True)
            a('s_barrier')
            assert not pend or s == 1
            if s + 2 in bsl:
                pend.extend((f's{s+2}', g) for g in dma_b(s + 2))
            elif s == 5:
                a(f'buffer_load_dwordx4 {vr(QA,4)}, v{RA}, {sr(RWS,4)}, s41 offen {SC}')
                a(f'buffer_load_dwordx4 {vr(QA+4,4)}, v{RA}, {sr(RWS,4)}, s41 offen offset:1024 {SC}')
                vm.add('s7', 2)
                pend.extend(pairs('s7', dma_tile(R1, 47, 32768, 0, voff=VA0, soff_s='0') + dma_tile(R1, 47, 49152, 0, voff=VA0+1, soff_s='0')))
            elif s == 6:
                pend.extend(pairs('s8', dma_tile(R1, 47, 65536, 0, voff=VA0+2, soff_s='0')) + pairs('s9', dma_wo(R0, W1_SLOT[0], 0)))
            elif s == 7:
                pend.extend(('s9', g) for g in dma_wo(R0, W1_SLOT[3], 3))
        if t == 29 and xm == 0:
            a('s_setprio 3')
            if nq2:
                a(f'v_xor_b32 v7, 4096, v{VD}')
                a(f'v_add_u32 v7, {COMB}, v7')
                for i in range(4):
                    a(f'ds_write_b128 v7, {vr(OB2b+4*i,4)} offset:{i*1024}')
                lds_post(a, 64)
                a('v_xor_b32 v2, 4, v2')
                a(f'v_add_u32 v7, {COMB}, v{VD}')
                a.label('L_bx')
                a('ds_read_b32 v3, v2')
                for i in range(4):
                    a(f'ds_read_b128 {vr(OB2b+4*i,4)}, v7 offset:{i*1024}')
                a('s_waitcnt lgkmcnt(0)')
                a('v_cmp_eq_u32 vcc, 0, v3')
                a('s_cbranch_vccnz L_bx')
                for r in range(16):
                    a(f'v_add_f32 v{OB+r}, v{OB+r}, v{OB2b+r}')
            comb_write()
        if t == 29 and xm == 1 and nq2:
            a(f'v_add_u32 v7, {COMB}, v{VD}')
            for i in range(4):
                a(f'ds_read_b128 {vr(OB2b+4*i,4)}, v7 offset:{i*1024}')
        if t == opt.get('prio_t', 33):
            a('s_setprio 2')
    def b_slot(t):
        if LATE and t == 4*(LSTEP - 2) - 3 - opt.get('pl_lead', 2):
            late_poll()
        if t == opt.get('pa_t', 14):
            a(f'buffer_load_dwordx2 {vr(VPOLL,2)}, v{VPA}, {sr(RWS,4)}, 0 offen {SC}')
            vm.add('pa')
        for rep in range(2 if (t < 3 and not opt.get('s2fill', 0)) else 1):
            if pend:
                tag, g = pend.pop(0)
                for x in g: a(x)
                vm.add(tag, sum('buffer_load' in x for x in g))
    def b_end(t):
        if t == 26:
            set_shift(a, Sb(28), QA, VSAV+2, vr(CD, 16), Kb(stb.tile(28)))
        if t == 27 and xm == 1 and nq2:
            a(f'v_xor_b32 v7, 4096, v{VD}')
            a(f'v_add_u32 v7, {COMB}, v7')
        if t == 29:
            if xm == 1:
                if nq2:
                    a('s_waitcnt lgkmcnt(4)')
                    for r in range(16):
                        a(f'v_add_f32 v{OB+r}, v{OB+r}, v{OB2b+r}')
                comb_write()
            gate_factor(a, -1)
        if t == 30:
            for r in range(16):
                a(f'v_xor_b32 v{CD+r}, {NEGBIG}, v{CD+r}')
        if t == 34:
            p3_bases(a, W2_SLOT)
        if t == 35:
            lds_post(a, 32)
    cin_b = lambda t: vr(CD, 16) if t in (28, 36) else '0'
    own = lambda t, n2: t >= n2 or t % 2 == 1
    pipeline(a, stb, lambda t: QA if t >= 28 else (QB if own(t, n2b) else QB2b), lambda t: OA if t >= 28 else (OB if own(t, n2b) else OB2b),
             cin_b, b_start, b_slot, b_end, 'b', fill_b, lambda: None)
    a('s_nop 11')
    stamp(a, 'endP')
    if opt.get('x_hint'): flag_prep(a, 6, 0)
    finalize(a, OA, 43, 45)
    if opt.get('x_hint'):
        flag_fire(a, 6, 's51', 0, PACK[0])
        a('s_mov_b32 s51, 0x40000000')
    stamp(a, 'st2')
    fbflag_publish(a)
    lds_wait(a, 16, 32, 'w2ok')
    p3_trs(a, 0)
    p3_addr(a)
    flag_prep(a, 6)
    a('s_waitcnt lgkmcnt(7)')
    bv = opt.get('bvec', 0)
    if opt.get('bearly', 1) and not bv: spoll_issue(a, LO)
    a('s_waitcnt vmcnt(0)')
    flag_fire(a, 6, 's51', 2, PACK[0])
    stamp(a, 'fs')
    a('s_setprio 0')
    if bv:
        a('s_cmp_ge_u32 s38, 28')
        a('s_cbranch_scc1 L_p3_x')
        a('v_lshlrev_b32 v36, 7, v1')
        if bv == 2:
            a('s_mov_b64 exec, 0xff')
            a(f'buffer_load_dwordx2 v[38:39], v36, {sr(RWS,4)}, s7 offen {SC}')
            a('s_mov_b64 exec, -1')
        p3_trs(a, 1)
        a('s_mov_b64 exec, 0xff')
        a(f's_mov_b32 s61, {SPIN_LIMIT}')
        if bv == 2:
            a('s_branch L_bv_chk')
        a.label('L_bv_lp')
        a(f'buffer_load_dwordx2 v[38:39], v36, {sr(RWS,4)}, s7 offen {SC}')
        a.label('L_bv_chk')
        a('ds_read_b32 v37, v13')
        a('s_waitcnt vmcnt(0) lgkmcnt(0)')
        a('v_cmp_ne_u32 vcc, 0, v37')
        a('s_cbranch_vccnz L_bv_out')
        a(f'v_cmp_ne_u64 vcc, {sr(NONCE,2)}, v[38:39]')
        a('s_sub_u32 s61, s61, 1')
        a('s_cselect_b64 vcc, 0, vcc')
        a('s_cbranch_vccz L_bv_ok')
        a('s_mov_b64 exec, vcc')
        a('s_branch L_bv_lp')
        a.label('L_bv_out')
        a('s_mov_b64 exec, -1')
        a('s_branch L_p3_x')
        a.label('L_bv_ok')
        a('s_mov_b64 exec, -1')
        p3_oloads(a, 0)
        a('s_branch L_p3_l1')
    if not opt.get('bearly', 1): spoll_issue(a, LO)
    p3_shared(a, opt)

    a.c('===== rerun requested: true row maxima of both branches, split into three bf16 terms =====')
    a.label('L_b_fallback')
    b_setup(a)
    true_max_B(a)
    a('s_mov_b32 exec_lo, 0')
    a(f'v_mov_b64 {vr(QA+6,2)}, 0')
    a('s_mov_b32 exec_lo, -1')
    for i in range(16):
        a(f'v_mov_b32 v{Sb(1)+i}, {NEGBIG}')
    for i in range(9):
        skip = a.new('fbA')
        a(f's_cmp_lt_u32 s40, {i}')
        a(f's_cbranch_scc1 {skip}')
        a(f's_sub_u32 s48, s40, {i}')
        a('s_lshl_b32 s48, s48, 12')
        a(f'buffer_load_dwordx4 {vr(K0,4)}, v{KOF[RA]}, {sr(R1,4)}, s48 offen {SC}')
        a(f'buffer_load_dwordx4 {vr(K0+4,4)}, v{KOF[RA]}, {sr(R1,4)}, s48 offen offset:1024 {SC}')
        a('s_waitcnt vmcnt(0)')
        qk(a, Sb(0), K0, QA, {0: vr(CD, 16), 8: vr(CE, 16)}.get(i, '0'), 0)
        qk(a, Sb(0), K0, QA, None, 1)
        a('s_nop 15')
        for r in range(16):
            a(f'v_max_f32 v{Sb(1)+r}, v{Sb(1)+r}, v{Sb(0)+r}')
        a.label(skip)
    split3(a, Sb(1), VSAV+2)
    if opt.get('zearly', 0.5): zero_b()
    a(f'v_mov_b32 v{VPOLL}, s{NONCE}')
    a(f'v_mov_b32 v{VPOLL+1}, s{NONCE+1}')
    a('s_barrier')
    a('s_branch L_b_restart')

    def first_setup():
        window(a, 33, 36, 37, 40)
        a('v_and_b32 v3, 15, v1')
        a('v_lshrrev_b32 v4, 4, v1')
        a('v_lshrrev_b32 v5, 1, v3')
        a('v_xor_b32 v5, v5, v4')
        a('s_lshl_b32 s40, s34, 12')
        a('v_lshl_add_u32 v6, v3, 7, s40')
        a(f'v_lshl_add_u32 v{XR[0]}, v5, 4, v6')
        a(f'v_xor_b32 v{XR[1]}, 64, v{XR[0]}')
        a('v_bfe_u32 v5, v1, 2, 2')
        a('v_lshl_add_u32 v5, v4, 2, v5')
        a(f'v_mul_u32_u24 v5, {2*WP}, v5')
        a('v_and_b32 v6, 3, v1')
        a('v_lshl_add_u32 v5, v6, 3, v5')
        a(f's_add_u32 s40, s37, {WRING}')
        a(f'v_add_u32 v{WRB}, s40, v5')
        a(f'v_lshlrev_b32 v{VGA}, 4, v4')
        a(f'v_add_u32 v{VGA}, {GATE}, v{VGA}')
        a(f'v_mov_b32 v2, {LDS_SIZE}')
        a('s_mov_b32 vcc_lo, 0x00010001')
        a('s_mov_b32 vcc_hi, 0x00010001')
        a(f'v_cndmask_b32 v{VGA}, v2, v{VGA}, vcc')
        a('s_waitcnt lgkmcnt(0)')
        stamp(a, 'karg')
    def later_setup(var):
        G = []
        def grp(f, atomic=False):
            n0 = len(a.lines)
            f()
            L = a.lines[n0:]
            del a.lines[n0:]
            if atomic: G.append(L)
            else: G.extend([x] for x in L)
        def tag():
            sk = a.new('notag')
            a('s_or_b32 s53, s2, s34')
            a(f's_cbranch_scc1 {sk}')
            a(f's_memrealtime {sr(NONCE,2)}')
            a('s_waitcnt lgkmcnt(0)')
            a(f's_lshl_b64 {sr(NONCE,2)}, {sr(NONCE,2)}, 1')
            a(f's_or_b32 s{NONCE}, s{NONCE}, 1')
            a(f'v_mov_b32 v{VGO}, s{NONCE}')
            a(f'v_mov_b32 v{VGO+1}, s{NONCE+1}')
            a('s_mov_b64 exec, 1')
            a(f'buffer_store_dwordx2 {vr(VGO,2)}, off, {sr(R3,4)}, 0 {SC}')
            a('s_mov_b64 exec, -1')
            a.label(sk)
        def rest1():
            columns()
            window(a, 62, 38, 39, 40)
            a(f'v_add_u32 v{WRL}, s39, v{WRL}')
            a(f'v_add_u32 v{WRA}, {WRING}, v{WRL}')
            a(f'v_add_u32 v{WRE}, {WE}, v{WRL}')
            if ZPAD[0]:
                a(f'v_mov_b32 v2, {LDS_SIZE}')
                a('s_mov_b32 vcc_lo, 0x88888888')
                a('s_mov_b32 vcc_hi, 0x88888888')
                for r in ZP:
                    a(f'v_cndmask_b32 v{ZP[r]}, v{r}, v2, vcc')
            a('v_lshlrev_b32 v2, 4, v3')
            a(f'v_lshl_add_u32 v{VST}, v4, 9, v2')
            a('v_cmp_eq_u32 vcc, 12, v3')
            a('v_mov_b32 v2, 0x3f803f80')
            a(f's_mov_b32 s50, {f32bits(CSCALE)}')
            a(f's_mov_b32 s51, {f32bits(CSCALE)}')
            a(f'v_cndmask_b32 v{VPAD}, 0, v2, vcc')
            p2_scalars(a)
            a('s_lshl_b32 s46, s62, 6')
            a('s_add_u32 s46, s46, s40')
            a('s_lshl_b32 s46, s46, 7')
            a(f's_add_u32 s3, s46, {WS_F1}')
            a('s_lshl_b32 s46, s33, 6')
            a('s_add_u32 s46, s46, s40')
            a('s_lshl_b32 s46, s46, 7')
            a(f's_add_u32 s52, s46, {WS_F1 + 131072}')
            mksrd(a, RWS, P_WS, WS_END)
        def fwarm():
            a('v_lshlrev_b32 v2, 3, v1')
            a(f'v_mov_b32 v{VGO}, 0')
            a(f'v_mov_b32 v{VGO+1}, 0')
            a('s_add_u32 s46, s45, 2048')
            flag_fire(a, VGO, 's45')
            flag_fire(a, VGO, 's46')
            if opt.get('fw1', 0):
                flag_fire(a, VGO, 's52')
        def rest2():
            p2_srds(a)
            p3_setup(a)
            store_offsets(a, var, 33, 1)
            store_offsets(a, var, 62, 0)
            prefill(a, var)
        grp(lambda: mksrd(a, R3, P_DBG, 256))
        grp(tag, True)
        grp(rest1)
        grp(rest2)
        if opt.get('fwarm', 1): grp(fwarm, True)
        return G
    later = []
    curvar = [None]
    def hookB(u):
        if u == 14:
            while later: a.lines.extend(later.pop(0))
        if u == 22:
            a(f'buffer_load_dwordx2 {vr(VGO,2)}, off, {sr(R3,4)}, 0 {SC}')
        if u == NU - 1 and not opt.get('zlate', 0):
            for N in range(NZ1, 14):
                a(f'ds_read_b128 {vr(ZG[N-NZ1],4)}, v{VGA} offset:{N*64}')
    def hookA(u):
        if opt.get('zlate', 0) and u == opt.get('nf', 8) - 3:
            for N in range(NZ1, 14):
                a(f'ds_read_b128 {vr(XF+4*(N-NZ1),4)}, v{VGA} offset:{N*64}')
        if opt.get('zlate', 0) and u == opt.get('nf', 8):
            for N in range(NZ1, 14):
                zmfma(a, N, XF+4*(N-NZ1))
        if u == opt.get('nf', 8):
            stamp(a, 'preF')
            a('s_waitcnt vmcnt(0)')
            get_nonce(a, VGO, 'go_a')
            flag_store(a, VGO, 's52')
            stamp(a, 'flagB')
        if u == 37:
            prefill(a, curvar[0], PKA)
    for var in VARIANTS:
        if opt.get('pgv') is not None:
            a('.p2align 12')
            if opt['pgv']: a(f'.fill {opt["pgv"]//4}, 4, 0xbf800000')
        a.c(f'===== waves 0-3: phase-1 products, section kinds {var} =====')
        a.label(f'P1B_{var}')
        first_setup()
        later.extend(later_setup(var))
        if not opt.get('sliced', 0):
            while len(later) > opt.get('fwarm', 1): a.lines.extend(later.pop(0))
        stamp(a, 'g0')
        a('s_barrier')
        first_reads(a, False)
        gemm_pass(a, var, False, hookB, p1_epi(var, PK, True))
        stamp(a, 'stB')
        if not opt.get('zlate', 0):
            a('s_waitcnt lgkmcnt(0)')
            for N in range(NZ1, 14):
                zmfma(a, N, ZG[N-NZ1])
        stamp(a, 'g7')
        a('s_barrier')
        first_reads(a, True)
        curvar[0] = var
        gemm_pass(a, var, True, hookA, p1_epi(var, PKA, False))
        a(f'v_mov_b32 v{PKA+24}, v{VST}')
        a('s_branch L_a_attn')
    if opt.get('pga'): a('.p2align 12')
    a.c('===== waves 0-3: attention stream a (36 full-branch tiles) =====')
    a.label('L_a_attn')
    stamp(a, 'endA')
    a('v_and_b32 v3, 31, v1')
    a('s_lshl_b32 s46, s35, 7')
    a(f's_add_u32 s46, s46, {ZBUF}')
    a('v_lshl_add_u32 v3, v3, 2, s46')
    a('s_mov_b64 exec, 0xffff')
    a(f'ds_write2_b32 v3, v{ZD}, v{ZD+4} offset1:16')
    a('s_mov_b64 exec, -1')
    a(f'ds_read_b32 v{VZ}, v3')
    p2_vec1(a)
    a('s_mov_b32 s63, 0')
    a('s_add_u32 s45, s45, 2048')
    a.label('L_a_restart')
    vm = VM()
    a('v_and_b32 v2, 31, v1')
    a(f'v_mov_b32 v3, {FBFLAG}')
    a('v_lshl_add_u32 v2, v2, 2, v3')
    a(f'ds_write_b32 v2, v{VZERO}')
    if opt.get('st_t0', 3) < 0:
        for t in range(3):
            tile_stores(a, PKA+8*t, PKA+24, SOFF[t], SC)
        vm.add('st', 6)
    QB2a, OB2a, CT = QA, OA, 192
    zero16(a, OB)
    if nq2: zero16(a, OB2a)
    a(f'v_xor_b32 v2, 4096, v{VD}')
    a('s_waitcnt lgkmcnt(0)')
    stamp(a, 'preB0')
    a('s_barrier')
    stamp(a, 'B0')
    n2a = 32 if nq2 else 0
    def addr_a(j):
        if nq2:
            return (RB0, ((j//2) % 4)*16384 + (j % 2)*4096) if j < 16 else (RA, (j - 16)*4096)
        return (RA, ((j//4) % 4)*16384 + (j % 4)*4096)
    sta = Stream(36, n2a, addr_a)
    if nq2:
        a(f'ds_read_b128 {vr(QB2a,4)}, v2 offset:{QBUF}')
        a(f'ds_read_b128 {vr(QB2a+4,4)}, v2 offset:{QBUF+1024}')
    a(f'ds_read_b128 {vr(QB,4)}, v{VD} offset:{QBUF}')
    a(f'ds_read_b128 {vr(QB+4,4)}, v{VD} offset:{QBUF+1024}')
    def fill_a():
        if late == 1:
            for g in dma_a(1):
                for x in g: a(x)
            vm.add('s1', 4)
        if opt.get('s2fill', 0):
            for g in dma_a(2):
                for x in g: a(x)
            vm.add('s2', 4)
        else:
            a('s_nop 5')
            pend.extend(('s2', g) for g in dma_a(2))
    pend = []
    def a_start(t):
        if t % 4 == 1 and t <= 29:
            s = (t + 3)//4
            if s >= 2 or late == 1:
                a(f's_waitcnt vmcnt({vm.wait_for(f"s{s}")})' + (' lgkmcnt(0)' if s >= 7 else ''))
            a('s_barrier')
            assert not pend or s == 1
            if s + 2 <= 8:
                pend.extend((f's{s+2}', g) for g in dma_a(s + 2))
            elif s == 7:
                mksrd(a, R3, P_AWO, 448*896)
                if opt.get('w2touch', 1):
                    a('s_and_b32 s46, s36, 3')
                    a('s_lshl_b32 s46, s46, 2')
                    a('s_add_u32 s46, s46, s35')
                    a('s_mul_i32 s46, s46, 14')
                    a('s_add_u32 s46, s46, 224')
                    a('v_min_u32 v3, 13, v1')
                    a('v_add_u32 v3, s46, v3')
                    a('v_mul_u32_u24 v3, 896, v3')
                    a('s_lshl_b32 s46, s37, 7')
                    a(f'buffer_load_dword v{VPOLL}, v3, {sr(R3,4)}, s46 offen')
                    vm.add('touch')
                pend.extend(pairs('wo', dma_wo(R0, W1_SLOT[1], 1) + dma_wo(R0, W1_SLOT[2], 2)))
            else:
                pend.extend(pairs('wo', dma_wo(R3, W2_SLOT[1], 1) + dma_wo(R3, W2_SLOT[0], 0)))
        if t == opt.get('st_t0', 3) + opt.get('st_lag', 7):
            a(f's_waitcnt vmcnt({vm.wait_for("st")})')
            flag_store(a, 4, 's3')
            vm.add('fl')
    def a_slot(t):
        st0 = opt.get('st_t0', 3)
        if st0 <= t < st0 + 3:
            t -= st0
            tile_stores(a, PKA+8*t, PKA+24, SOFF[t], SC)
            vm.add('st', 2)
            t += st0
        for rep in range(2 if (t < 3 and not opt.get('s2fill', 0)) else 1):
            if pend:
                tag, g = pend.pop(0)
                for x in g: a(x)
                vm.add(tag, sum('buffer_load' in x for x in g))
    def a_end(t):
        def comb_reads():
            a('ds_read_b32 v220, v221')
            for i in range(4):
                a(f'ds_read_b128 {vr(CT+4*i,4)}, v7 offset:{i*1024}')
        if t == opt.get('crd_t', 31):
            a(f'v_add_u32 v222, {COMB}, v{VD}')
            a(f'v_xor_b32 v7, {4096 if nq2 else 0}, v222')
            a(f's_xor_b32 s46, s35, {int(nq2)}')
            a(f's_lshl2_add_u32 s46, s46, {FBFLAG + 48}')
            a('v_mov_b32 v221, s46')
            comb_reads()
        if t == opt.get('crd_t', 31) + 2:
            a.label('L_comb_chk')
            a('v_cmp_ne_u32 vcc, 0, v220')
            a('s_cbranch_vccnz L_comb_ok')
            comb_reads()
            a('s_waitcnt lgkmcnt(0)')
            a('s_branch L_comb_chk')
            a.label('L_comb_ok')
            if nq2:
                for r in range(16):
                    a(f'v_add_f32 v{OB2a+r}, v{OB2a+r}, v{CT+r}')
                for i in range(4):
                    w = f'ds_write_b128 v7, {vr(OB2a+4*i,4)} offset:{i*1024}'
                    if opt.get('aw', 1): sta.extra.setdefault((t + 1, i), []).append(w)
                    else: a(w)
        if t == 28:
            gate_factor(a, +1)
        if t == 33:
            p3_bases(a, W1_SLOT)
        if t == opt.get('touch_t', 20):
            p2_vec2(a)
    pipeline(a, sta, lambda t: QB if own(t, n2a) else QB2a, lambda t: OB if own(t, n2a) else OB2a, lambda t: '0',
             a_start, a_slot, a_end, 'a', fill_a, lambda: None)
    a(f's_waitcnt vmcnt({vm.wait_for("wo")}) lgkmcnt(0)')
    a('s_barrier')
    a('s_setprio 3')
    if nq2:
        for i in range(4):
            a(f'ds_read_b128 {vr(CT+4*i,4)}, v222 offset:{i*1024}')
    flag_prep(a, 24, 0)
    a('s_nop 3' if nq2 else 's_nop 7')
    a('s_waitcnt lgkmcnt(0)')
    stamp(a, 'endP')
    for r in range(16):
        a(f'v_add_f32 v{OB+r}, v{OB+r}, v{CT+r}')
    finalize(a, OB, 44, 45)
    stamp(a, 'st2')
    fbflag_publish(a)
    for g in dma_wo(R3, W2_SLOT[2], 2) + dma_wo(R3, W2_SLOT[3], 3):
        for x in g: a(x)
    p3_addr(a)
    if not opt.get('aprio', 1): a('s_setprio 0')
    a('s_waitcnt vmcnt(8)')
    flag_fire(a, 24, 's51', 0, PACK[0])
    stamp(a, 'fs')
    if opt.get('aearly', 1): spoll_issue(a, LO)
    p3_trs(a, 0)
    a('s_waitcnt vmcnt(1) lgkmcnt(6)')
    if not opt.get('aearly', 1): spoll_issue(a, LO)
    lds_post(a, 16)
    if opt.get('x_delaya'): a(f's_sleep {opt["x_delaya"]}')
    stamp(a, 'w2')
    a('s_branch L_p3')

    a.label('L_a_fallback')
    for r in SOFF + [3]:
        a(f's_mov_b32 s{r}, 0x40000000')
    for r in range(3):
        a(f'v_mov_b32 v{PKA+24+r}, 0')
    a('s_barrier')
    a('s_branch L_a_restart')

    a.label('L_exit')
    dump_stamps(a, 0)
    a.label('L_done')
    a('s_endpgm')
    return 256

DOC = """;
"""
def build(path, **opt):
    global SLEEP2, FULLFLAG, BST
    BST = opt.get('bst', 'sc1')
    ZPAD[0] = opt.get('zpad', 0)
    NQ2[0] = opt.get('nq2', 1)
    DENSE[0] = opt.get('dense', 1)
    KVF[0] = opt.get('kvf', 'sc1')
    REORD[0] = opt.get('reord', 0); EPIW[0] = opt.get('epiw', 3)
    FULL[0] = opt.get('full', 1)
    PACK[0] = opt.get('pack', 0)
    SWAPH[0] = opt.get('swaph', 0)
    XP.clear(); XP.update(opt.get('xp', {}))
    XNOWO[:] = [1] if opt.get('x_nowo') else []
    P1_BARS[:] = opt.get('bars', [0, 1, 2, 3, 4, 5, 6, 7, 10, 12])
    PV.clear(); PV.update(opt.get('pv', dict(slot=1, prio='dec', lag=3, altend=29)))
    SLEEP2 = opt.get('sleep2', 3); FULLFLAG = opt.get('fullflag', 1)
    a = Asm()
    hdr = open('cdna_kernels/' + NAME + '.s.ref').read().split('\n')
    head = [l for l in hdr if l.startswith(';') and '@launch' not in l]
    out = '\n'.join(head) + '\n'
    out += f'; @launch grid=(256,1,1) block=(512,1,1) lds={LDS_SIZE}\n'
    out += DOC
    out += '.amdgcn_target "amdgcn-amd-amdhsa--gfx950"\n.text\n'
    v = gen(a, NAME + '_kernel', opt)
    out += a.text()
    out += '.section .rodata,"a"\n.p2align 6\n'
    out += kernel_desc(NAME + '_kernel', v, 102)
    open(path, 'w').write(out)

SETS = {
 'A': ['g0', 'g1', 'g5', 'g6', 'endB', 'g7', 'g10', 'g12'],
 'B': ['preF', 'flagB', 'pb', 'poll0', 'f1b', 'endA', 'preB0', 'B0'],
 'C': ['B0', 'p0', 'q1', 'q5', 'q9', 'q17', 'q25', 'endP'],
 'D': ['endP', 'st2', 'B9', 'flag2', 'f2b', 'mfB', 'preC', 'C'],
 'E': ['endP', 'flag2', 'C', 'f2a', 'mfA', 'st'],
 'H': ['st2', 'p2w', 'fs', 'f2b0', 'f2bx', 'f2b1', 'f2b2', 'f2b'],
 'I': ['endB', 'g7', 'flagB', 'g12', 'f1b', 'preB0', 'B0', 'endP'],
 'J': ['st2', 'flag2', 'fack', 'fs', 'f2b', 'mfB', 'C', 'f2a'],
 'K': ['endP', 'st2', 'fs', 'w2', 'f2b', 'f2a', 'mfA', 'X'],
 'L': ['B9', 'C', 'f2a', 'mfB', 'mfA', 'X', 'st'],
 'M': ['g1', 'g6', 'endB', 'g7', 'flagB', 'g12', 'preB0', 'B0'],
 'N': ['g1', 'endB', 'g7', 'preF', 'flagB', 'g12', 'f1b', 'endA'],
 'O': ['B0', 'q1', 'q5', 'q9', 'q17', 'q25', 'q33', 'endP'],
 'P': ['f1b', 'shift', 'preB0', 'B0', 'p0', 'q1', 'q5', 'endP'],
 'Q': ['q1', 'q5', 'q9', 'q13', 'q17', 'q21', 'q25', 'q29'],
 'R': ['q25', 'q29', 'endP', 'st2', 'fs', 'f2a', 'mfA', 'X'],
 'S': ['g1', 'g2', 'g6', 'g7', 'g10', 'g12', 'f1b', 'endA'],
 'T': ['pre', 'karg', 'i0', 'i1', 'g0', 'g1', 'g2', 'g6'],
 'U': ['g1', 'h1', 'g2', 'h2', 'g3', 'h6', 'endB', 'endA'],
 'Z': [],
 'F': ['g6', 'endB', 'g7', 'preF', 'flagB', 'g10', 'g12', 'B0'],
 'G': ['q17', 'q21', 'q25', 'p29', 'q30', 'p33', 'q33', 'endP'],
}
def build_all(tag, sets='ABCDE', **opt):
    common.DIAG = False
    build(f'work/{tag}.s', **opt)
    common.DIAG = True
    for k in sets:
        common.STAMPS = SETS[k]
        build(f'work/{tag}_{k}.s', **opt)
        s = open(f'work/{tag}_{k}.s').read()
        open(f'work/{tag}_{k}.s', 'w').write('; STAMPS start ' + ' '.join(SETS[k]) + '\n' + s)
    common.DIAG = False

if __name__ == '__main__':
    build_all('v22', 'Z')
```
